```python
import torch

def _softmax(x, axis=-1):
    return torch.softmax(x, dim=axis)

def _gelu(x):
    return torch.nn.functional.gelu(x, approximate='tanh')

def _silu(x):
    return torch.nn.functional.silu(x)

def _sigmoid(x):
    return torch.sigmoid(x)

def _layernorm(x, axis=-1, eps=1e-05):
    m = x.mean(dim=axis, keepdim=True)
    v = x.var(dim=axis, keepdim=True, unbiased=False)
    return (x - m) / torch.sqrt(v + eps)

def _scatter_add(tgt, idx, src, axis=0):
    return tgt.clone().index_add_(axis, idx, src)

def _segment_sum(src, seg, n):
    out = torch.zeros((n,) + src.shape[1:], dtype=src.dtype)
    return out.index_add_(0, seg, src)

def _pad(x, pw):
    flat = tuple((v for pair in reversed(pw) for v in pair))
    return torch.nn.functional.pad(x, flat)
kernel_name = 'standalone__factorization_afm__recsys'

def setup_inputs():

    _w = lambda a: (lambda t: t.to(torch.bfloat16) if t.is_floating_point() else t)(torch.as_tensor(a))
    B, F, D, V = (4096, 26, 128, min(1000000, 100000))
    A = D
    ii, jj = tuple(torch.triu_indices(F, F, 1).unbind(0))
    return {'idx': _w((lambda lo, hi, *s: torch.randint(lo, hi, s))(0, V, B, F).to(torch.int64)), 'table': _w((lambda *s: torch.randn(*s, dtype=torch.bfloat16) * 0.2)(V, D)), 'ii': _w(ii.to(torch.int64)), 'jj': _w(jj.to(torch.int64)), 'W': _w((lambda *s: torch.randn(*s, dtype=torch.bfloat16) * 1.6)(D, A) * (1.0 / D ** 0.5)), 'b': _w((lambda *s: torch.randn(*s, dtype=torch.bfloat16) * 1.6)(A)), 'h': _w((lambda *s: torch.randn(*s, dtype=torch.bfloat16) * 1.6)(A)), 'p': _w((lambda *s: torch.randn(*s, dtype=torch.bfloat16) * 0.2)(D))}

def reference(idx, table, ii, jj, W, b, h, p):
    emb = table[idx]
    ei = emb[:, ii, :].clone()
    ej = emb[:, jj, :].clone()
    pair = ei * ej
    hid = pair @ W + b
    hid = 0.5 * (hid + torch.abs(hid))
    e = hid @ h
    alpha = _softmax(e, axis=-1)
    pooled = torch.einsum('bp,bpd->bd', alpha, pair)
    return pooled @ p
```

```python
import sys
ROUND_HID = int(sys.argv[1]) if len(sys.argv) > 1 else 0
ROUND_E = int(sys.argv[2]) if len(sys.argv) > 2 else 0
NAME = "standalone__factorization_afm__recsys"
hdr = open("cdna_kernels/%s.s.ref" % NAME).read().split("\n")
L = []
for line in hdr:
    if line.startswith("; @launch"):
        L.append("; @launch grid=(4096,1,1) block=(64,1,1) lds=8192")
        break
    L.append(line)
def e(s): L.append("    " + s)
L += ['.amdgcn_target "amdgcn-amd-amdhsa--gfx950"', ".text", ".globl %s_kernel" % NAME, ".p2align 8",
      ".type %s_kernel,@function" % NAME, "%s_kernel:" % NAME]
STR = 272
e("s_cmp_ge_u32 s2, 4096")
e("s_cbranch_scc1 L_done")
e("s_load_dwordx4 s[4:7], s[0:1], 0")
e("s_load_dwordx4 s[8:11], s[0:1], 16")
e("s_load_dwordx4 s[12:15], s[0:1], 32")
e("s_load_dwordx4 s[16:19], s[0:1], 48")
e("s_load_dwordx2 s[20:21], s[0:1], 64")
e("s_waitcnt lgkmcnt(0)")
def srd(d, b, n):
    e(f"s_mov_b32 s{d}, s{b}"); e(f"s_mov_b32 s{d+1}, s{b+1}"); e(f"s_mov_b32 s{d+2}, {n}"); e(f"s_mov_b32 s{d+3}, 0x00020000")
srd(24, 4, 4096*26*4)
srd(28, 6, 100000*256)
srd(32, 8, 325*4)
srd(36, 10, 325*4)
srd(40, 12, 128*128*2)
srd(44, 14, 256)
srd(48, 16, 256)
srd(52, 18, 256)
srd(56, 20, 4096*2)
e("s_mul_i32 s3, s2, 104")
e("v_and_b32 v1, 31, v0")
e("v_lshrrev_b32 v2, 5, v0")
e("v_lshrrev_b32 v3, 4, v0")
e("v_and_b32 v4, 15, v0")
for q in range(7):
    e(f"v_add_u32 v5, {q*4}, v3")
    e("v_min_u32 v5, 25, v5")
    e("v_lshlrev_b32 v6, 2, v5")
    e(f"buffer_load_dword v{10+q}, v6, s[24:27], s3 offen")
e("s_waitcnt vmcnt(0)")
e("v_lshlrev_b32 v7, 4, v4")
for q in range(7):
    e(f"v_lshl_add_u32 v{10+q}, v{10+q}, 8, v7")
    e(f"buffer_load_dwordx4 v[{20+4*q}:{23+4*q}], v{10+q}, s[28:31], 0 offen")
e("s_waitcnt vmcnt(0)")
e(f"s_mov_b32 s60, {STR}")
for q in range(7):
    e(f"v_add_u32 v5, {q*4}, v3")
    e("v_min_u32 v5, 25, v5")
    e("v_mul_lo_u32 v6, v5, s60")
    e("v_add_u32 v6, v6, v7")
    e(f"ds_write_b128 v6, v[{20+4*q}:{23+4*q}]")
e("s_waitcnt lgkmcnt(0)")
e("v_lshlrev_b32 v5, 14, v2")
e("v_lshl_add_u32 v5, v1, 1, v5")
for i in range(4): e(f"s_mov_b32 s{61+i}, {4096*i}")
for t in range(4):
    for s in range(8):
        for j in range(8):
            dl = 8*s + j
            off = (dl % 16)*256 + 64*t
            e(f"buffer_load_ushort v{64 + s*8 + j}, v5, s[40:43], s{61+dl//16} offen offset:{off}")
        if s % 4 == 3: e("s_waitcnt vmcnt(0)")
    for r in range(32):
        e(f"v_lshl_or_b32 v{64+2*r}, v{65+2*r}, 16, v{64+2*r}")
        e(f"v_accvgpr_write_b32 a{t*32+r}, v{64+2*r}")
e("v_lshlrev_b32 v5, 7, v2")
for s in range(8):
    e(f"buffer_load_dwordx4 a[{128+4*s}:{131+4*s}], v5, s[52:55], 0 offen offset:{16*s}")
e("v_lshlrev_b32 v5, 3, v2")
for t in range(4):
    for g in range(4):
        e(f"buffer_load_dwordx2 v[{64+(t*4+g)*2}:{65+(t*4+g)*2}], v5, s[44:47], 0 offen offset:{(32*t+8*g)*2}")
        e(f"buffer_load_dwordx2 v[{96+(t*4+g)*2}:{97+(t*4+g)*2}], v5, s[48:51], 0 offen offset:{(32*t+8*g)*2}")
e("s_waitcnt vmcnt(0)")
for q in range(32):
    e(f"v_lshlrev_b32 v{128+2*q}, 16, v{64+q}")
    e(f"v_and_b32 v{129+2*q}, 0xffff0000, v{64+q}")
    e(f"v_lshlrev_b32 v{192+2*q}, 16, v{96+q}")
    e(f"v_and_b32 v{193+2*q}, 0xffff0000, v{96+q}")
e("v_lshlrev_b32 v8, 7, v2")
for tile in range(11):
    e(f"v_add_u32 v5, {32*tile}, v1")
    e("v_lshlrev_b32 v5, 2, v5")
    e("buffer_load_dword v6, v5, s[32:35], 0 offen")
    e("buffer_load_dword v7, v5, s[36:39], 0 offen")
    e("s_waitcnt vmcnt(0)")
    e("v_mul_lo_u32 v6, v6, s60"); e("v_add_u32 v6, v6, v8")
    e("v_mul_lo_u32 v7, v7, s60"); e("v_add_u32 v7, v7, v8")
    for s in range(8):
        e(f"ds_read_b128 v[32:35], v6 offset:{16*s}")
        e(f"ds_read_b128 v[36:39], v7 offset:{16*s}")
        e("s_waitcnt lgkmcnt(0)")
        for q in range(4):
            e(f"v_lshlrev_b32 v40, 16, v{32+q}")
            e(f"v_and_b32 v41, 0xffff0000, v{32+q}")
            e(f"v_lshlrev_b32 v42, 16, v{36+q}")
            e(f"v_and_b32 v43, 0xffff0000, v{36+q}")
            e("v_mul_f32 v40, v40, v42")
            e("v_mul_f32 v41, v41, v43")
            e(f"v_cvt_pk_bf16_f32 v{44+q}, v40, v41")
        e("s_nop 1")
        for t in range(4):
            if s == 0:
                c = "0" if ROUND_HID == 2 else f"v[{128+16*t}:{143+16*t}]"
            else:
                c = f"v[{64+16*t}:{79+16*t}]"
            e(f"v_mfma_f32_32x32x16_bf16 v[{64+16*t}:{79+16*t}], a[{(t*8+s)*4}:{(t*8+s)*4+3}], v[44:47], {c}")
        c = "0" if s == 0 else "v[48:63]"
        e(f"v_mfma_f32_32x32x16_bf16 v[48:63], a[{128+4*s}:{131+4*s}], v[44:47], {c}")
    e("s_nop 15"); e("s_nop 7")
    e(f"v_mov_b32 v{21+tile}, v48")
    e("v_mov_b32 v9, 0")
    for r in range(64):
        if ROUND_HID == 2:
            e(f"v_cvt_pk_bf16_f32 v40, v{64+r}, v{64+r}")
            e(f"v_lshlrev_b32 v40, 16, v40")
            e(f"v_add_f32 v{64+r}, v40, v{128+r}")
        if ROUND_HID:
            e(f"v_cvt_pk_bf16_f32 v40, v{64+r}, v{64+r}")
            e(f"v_lshlrev_b32 v40, 16, v40")
            e(f"v_max_f32 v40, 0, v40")
        else:
            e(f"v_max_f32 v40, 0, v{64+r}")
        e(f"v_fmac_f32 v9, v40, v{192+r}")
    e("v_mov_b32 v40, v9")
    e("s_nop 1")
    e("v_permlane32_swap_b32 v40, v9")
    e("s_nop 1")
    e(f"v_add_f32 v{10+tile}, v40, v9")
    if ROUND_E:
        e(f"v_cvt_pk_bf16_f32 v{10+tile}, v{10+tile}, v{10+tile}")
        e(f"v_lshlrev_b32 v{10+tile}, 16, v{10+tile}")
e("v_cmp_gt_u32 vcc, 5, v1")
e("v_mov_b32 v40, 0xff800000")
e("s_nop 1")
e("v_cndmask_b32 v20, v40, v20, vcc")
e("v_mov_b32 v40, v10")
for t in range(1, 11): e(f"v_max_f32 v40, v40, v{10+t}")
e("v_lshlrev_b32 v41, 2, v0")
def xorred(v, op):
    for m in (1, 2, 4, 8, 16):
        e(f"v_xor_b32 v42, {m*4}, v41")
        e(f"ds_bpermute_b32 v43, v42, v{v}")
        e("s_waitcnt lgkmcnt(0)")
        e(f"{op} v{v}, v{v}, v43")
xorred(40, "v_max_f32")
e("v_mov_b32 v44, 0"); e("v_mov_b32 v45, 0")
e("s_mov_b32 s61, 0x3fb8aa3b")
for t in range(11):
    e(f"v_sub_f32 v46, v{10+t}, v40")
    e("v_mul_f32 v46, s61, v46")
    e("v_exp_f32 v46, v46")
    e("s_nop 0")
    e("v_add_f32 v44, v44, v46")
    e(f"v_fmac_f32 v45, v46, v{21+t}")
xorred(44, "v_add_f32")
xorred(45, "v_add_f32")
e("v_rcp_f32 v44, v44")
e("s_nop 0")
e("v_mul_f32 v45, v45, v44")
e("v_cvt_pk_bf16_f32 v45, v45, v45")
e("v_cmp_eq_u32 vcc, 0, v0")
e("s_and_saveexec_b64 s[62:63], vcc")
e("s_lshl_b32 s3, s2, 1")
e("v_mov_b32 v46, s3")
e("buffer_store_short v45, v46, s[56:59], 0 offen")
L.append("L_done:")
e("s_endpgm")
L += ['.section .rodata,"a"', ".p2align 6", ".amdhsa_kernel %s_kernel" % NAME,
      "  .amdhsa_next_free_vgpr 416", "  .amdhsa_next_free_sgpr 96", "  .amdhsa_accum_offset 256",
      "  .amdhsa_group_segment_fixed_size 0", "  .amdhsa_kernarg_size 88", "  .amdhsa_user_sgpr_count 2",
      "  .amdhsa_user_sgpr_kernarg_segment_ptr 1", "  .amdhsa_system_sgpr_workgroup_id_x 1",
      "  .amdhsa_float_denorm_mode_32 3",
      ".end_amdhsa_kernel"]
print("\n".join(L))
```

```python
import re, heapq
def vr(b, n=1, p='v'):
    return [f"{p}{b+i}" for i in range(n)]
def rng(b, n, p='v'):
    return f"{p}{b}" if n == 1 else f"{p}[{b}:{b+n-1}]"
class Op:
    def __init__(s, text, kind, R=(), W=(), C=(), covers=None, lat=0, prio=None, cost=1, passes=4):
        s.text = text; s.kind = kind; s.R = list(R); s.W = list(W); s.C = list(C)
        s.covers = covers; s.lat = lat; s.prio = prio; s.cost = cost; s.passes = passes
        s.preds = {}; s.succs = {}; s.pos = None; s.gap = None; s.dl = 1e18
VALUK = ("valu", "dpp", "trans", "perm", "readlane")
MF_RAW = {2: 5, 4: 8, 8: 12, 16: 20}; MF_COV = {2: 4, 4: 6, 8: 10, 16: 18}; MF_WAR = {2: 1, 4: 3, 8: 7, 16: 15}
def hazard(p, c, typ, reg):
    if typ == "RAW":
        if p.kind in VALUK:
            if reg[0] == 's' or reg == 'vcc':
                if c.kind in VALUK: return 2
                if c.kind in ("vmem",): return 5
                return 1
            if c.kind == "mfma": return 2
            if c.kind in ("dpp", "perm"): return 2
            if c.kind == "readlane": return 1
            if p.kind == "trans" and c.kind in VALUK: return 1
            return 0
        if p.kind == "mfma":
            if c.kind == "mfma":
                if reg in c.C and reg not in c.AB:
                    if c.C == p.W and c.passes == p.passes: return 2 if p.passes == 2 else 0
                    return MF_COV[p.passes]
                return MF_RAW[p.passes]
            return MF_RAW[p.passes]
        return 0
    if typ == "WAW":
        if p.kind == "mfma":
            if c.kind == "mfma":
                return 0 if (c.W == p.W and c.passes == p.passes) else MF_COV[p.passes]
            return MF_RAW[p.passes]
        return 0
    if typ == "WAR":
        if p.kind == "mfma" and reg in p.C and c.kind in VALUK: return MF_WAR[p.passes]
        if p.kind == "vmem" and getattr(p, "wide_store", False) and c.kind in VALUK: return 2
        return 0
def mfma(text, D, A, B, C, passes=4):
    o = Op(text, "mfma", R=list(A) + list(B) + list(C), W=D, C=C, passes=passes); o.AB = set(A) | set(B); return o
def build_deps(ops):
    lw = {}; rd = {}
    def edge(p, c, h):
        if p is c: return
        if c.preds.get(p, -1) < h: c.preds[p] = h; p.succs[c] = h
    for o in ops:
        for r in o.R:
            if r in lw: edge(lw[r], o, hazard(lw[r], o, "RAW", r))
        for r in o.W:
            if r in lw: edge(lw[r], o, hazard(lw[r], o, "WAW", r))
            for q in rd.get(r, ()): edge(q, o, hazard(q, o, "WAR", r))
        for r in o.R: rd.setdefault(r, []).append(o)
        for r in o.W: lw[r] = o; rd[r] = []
        if o.covers:
            for l in o.covers: edge(l, o, max(o.lat, 0))
def schedule(ops, min_fill=2, max_fill=4, look=12):
    build_deps(ops)
    M = [o for o in ops if o.kind == "mfma"]; F = [o for o in ops if o.kind != "mfma"]
    for i, o in enumerate(ops): o.seq = i
    for g, o in enumerate(M): o.g = g
    n = len(M)
    for o in ops:
        if o.kind == "mfma": o.dl = o.g
        else:
            assert o.prio is not None, o.text
            o.dl = o.prio
    out = []; cur = [0]
    remaining = {o: len(o.preds) for o in ops}
    ready = [(o.dl, o.seq, o) for o in F if remaining[o] == 0]; heapq.heapify(ready)
    tot = sum(o.cost for o in F); done = [0]; nops = [0]
    def ok_at(o):
        return max([p.pos + 1 + h for p, h in o.preds.items()] + [0])
    def emit(o):
        o.pos = cur[0]; out.append(o); cur[0] += 1
        if o.kind != "mfma": done[0] += o.cost
        for s in o.succs:
            remaining[s] -= 1
            if remaining[s] == 0 and s.kind != "mfma": heapq.heappush(ready, (s.dl, s.seq, s))
    def nop(k):
        while k > 0:
            q = min(k, 16); x = Op(f"s_nop {q-1}", "nop"); x.pos = cur[0]; out.append(x); cur[0] += q; k -= q; nops[0] += q
    def pick(maxdl=None):
        tmp = []; res = None
        while ready:
            it = heapq.heappop(ready)
            if maxdl is not None and it[0] > maxdl: tmp.append(it); break
            if ok_at(it[2]) <= cur[0]: res = it[2]; break
            tmp.append(it)
        for it in tmp: heapq.heappush(ready, it)
        return res
    def force(o):
        for p in sorted(o.preds, key=lambda x: x.seq):
            if p.pos is None:
                assert p.kind != "mfma", ("mfma order violated", p.text, o.text)
                force(p); settle(p)
                for i, it in enumerate(ready):
                    if it[2] is p: ready.pop(i); heapq.heapify(ready); break
                if p.pos is None: emit(p)
    def settle(o):
        while o.pos is None and ok_at(o) > cur[0]:
            need = ok_at(o) - cur[0]
            x = pick()
            if x is not None: emit(x)
            elif o.kind == "wait": break
            else: nop(need)
    starved = 0
    for g, m in enumerate(M):
        force(m); settle(m); emit(m)
        k = 0
        while True:
            x = pick(maxdl=g + 1) if k >= min_fill else pick(maxdl=g + look)
            if x is None: break
            emit(x); k += x.cost
            if k >= max_fill: break
        if k < min_fill: starved += min_fill - k
    while ready:
        x = pick()
        if x is None:
            it = min(ready, key=lambda t: ok_at(t[2])); ready.remove(it); heapq.heapify(ready)
            x = it[2]
            if x.kind != "wait": nop(ok_at(x) - cur[0])
        emit(x)
    assert all(o.pos is not None for o in ops)
    stats = dict(n_mfma=n, n_fill=len(F), fill_cost=tot, nops=nops[0], starved=starved)
    return out, stats
def finalize(out, vm_before=0):
    lines = []; vm = []
    for o in out:
        if o.kind == "vmem": vm.append(o)
        if o.kind == "wait":
            last = max((vm.index(l) for l in o.covers if l in vm), default=-1)
            ncnt = len(vm) - 1 - last
            if getattr(o, "extra_after", None) is not None and last < 0: ncnt += o.extra_after
            assert ncnt <= 63
            lines.append(f"s_waitcnt vmcnt({ncnt})")
        else: lines.append(o.text)
    return lines
def verify(out):
    lw = {}; rd = {}; bad = 0; pos = 0
    for o in out:
        if o.kind == "nop": pos += int(o.text.split()[1]) + 1; continue
        o.vp = pos
        def chk(p, typ, r):
            nonlocal bad
            h = hazard(p, o, typ, r)
            if o.vp - p.vp - 1 < h: bad += 1; print("HAZARD", typ, r, "|", p.text, "->", o.text, o.vp - p.vp - 1, h)
            if p.seq > o.seq: bad += 1; print("ORDER", typ, r, p.text, "->", o.text)
        for r in o.R:
            if r in lw: chk(lw[r], "RAW", r)
        for r in o.W:
            if r in lw and lw[r] is not o: chk(lw[r], "WAW", r)
            for q in rd.get(r, ()):
                if q is not o: chk(q, "WAR", r)
        for r in o.R: rd.setdefault(r, []).append(o)
        for r in o.W: lw[r] = o; rd[r] = []
        pos += 1
    return bad
def est_cycles(out):
    t = 0; pipe = 0
    for o in out:
        if o.kind == "mfma":
            t = max(t, pipe); pipe = t + 4 * o.passes; t += 8 if o.passes > 2 else 4
        elif o.kind == "nop": t += 4 * (int(o.text.split()[1]) + 1)
        else: t += 4 * o.cost
    return t
```

```python
import sys, math, struct
from sched import *
NAME = "standalone__factorization_afm__recsys"
opts = dict(a.split("=") for a in sys.argv[1:] if "=" in a)
MRED = int(opts.get("m", 0))
LAT_FAR = int(opts.get("latfar", 560)); LAT_NEAR = int(opts.get("latnear", 300))
DBG = int(opts.get("dbg", 0))
YT = [6,0,4,4,2,3,6,9,3,7,0,1,8,5,3,4]
ZT = [5,2,7,7,9,7,1,0,1,5,4,8,2,9,6,8]
K10 = [("", lambda n: n), ("quad_perm:[1,0,3,2]", lambda n: n ^ 1), ("quad_perm:[2,3,0,1]", lambda n: n ^ 2)]
seen = set(); inval = 0
for k, (_, pi) in enumerate(K10):
    for n in range(16):
        a, b = ZT[n], YT[pi(n)]; key = (min(a, b), max(a, b))
        if a == b or key in seen: inval |= 1 << (16 * k + n)
        else: seen.add(key)
assert len(seen) == 45
POS = [YT.index(c) for c in range(10)]
FULL = "row_mask:0xf bank_mask:0xf"
BIAS = 0; VA = 32; VB = 64; VC = 96; F = [128, 144]; TMP = 160; ACC = 168; RR = 184; D9 = 192; NRING = 6; D9M = 216
MASKC = 220; H = 224; NEGINF = 226; MX = 227; NUM = 228; DEN = 232; IDX = 236; GOFF = 248; OOFF = 249; RF = 240
AW = 0; AN9 = 128; AH = 192
S_IDX = 4; S_TAB = 6; S_W = 8; S_B = 10; S_H = 12; S_P = 14; S_OUT = 16; S_WAVE = 18; S_MA = 20; S_MB = 22; S_MAX = 24; S_T = 26; S_OM = 30
LN9 = 32768
CSC = 0.5 * math.log2(math.e)
def f32(x): return "0x%08x" % struct.unpack("<I", struct.pack("<f", x))[0]
L = []
def e(s): L.append("    " + s)
hdr = open("cdna_kernels/%s.s.ref" % NAME).read().split("\n")
for line in hdr:
    if line.startswith("; @launch"):
        L.append("; @launch grid=(256,1,1) block=(256,1,1) lds=34816"); break
    L.append(line)
L += ['.amdgcn_target "amdgcn-amd-amdhsa--gfx950"', ".text", ".globl %s_kernel" % NAME, ".p2align 8",
      ".type %s_kernel,@function" % NAME, "%s_kernel:" % NAME]
e("s_cmp_ge_u32 s2, 256"); e("s_cbranch_scc1 L_done")
e("s_load_dwordx4 s[4:7], s[0:1], 0"); e("s_load_dwordx4 s[8:11], s[0:1], 32")
e("s_load_dwordx4 s[12:15], s[0:1], 48"); e("s_load_dwordx2 s[16:17], s[0:1], 64")
T = D9
vN, vG, vL, vOX, vOY, vOZ, vW0, vW1, vWN0, vWN1, vT0, vT1, vT2, vTR = T, T+1, T+2, T+3, T+4, T+5, T+6, T+7, T+8, T+9, T+10, T+11, T+12, T+16
e(f"v_lshrrev_b32 v{vT0}, 6, v0")
e(f"v_and_b32 v{vN}, 15, v0")
e(f"v_readfirstlane_b32 s{S_WAVE}, v{vT0}")
e(f"v_bfe_u32 v{vG}, v0, 4, 2")
e(f"v_and_b32 v{vL}, 63, v0")
def nib(tab): return sum(v << (4 * i) for i, v in enumerate(tab))
e(f"s_mov_b32 s{S_T}, 0x{nib(YT) & 0xffffffff:08x}"); e(f"s_mov_b32 s{S_T+1}, 0x{nib(YT) >> 32:08x}")
e(f"s_mov_b32 s{S_T+2}, 0x{nib(ZT) & 0xffffffff:08x}"); e(f"s_mov_b32 s{S_T+3}, 0x{nib(ZT) >> 32:08x}")
e(f"s_lshl_b32 s3, s2, 2"); e(f"s_add_u32 s3, s3, s{S_WAVE}")
e(f"s_mul_i32 s19, s3, 416")
e(f"v_lshlrev_b32 v{vOX}, 2, v{vN}")
e(f"v_lshrrev_b64 v[{vT0}:{vT0+1}], v{vOX}, s[{S_T}:{S_T+1}]")
e(f"v_and_b32 v{vOY}, 15, v{vT0}")
e(f"v_lshrrev_b64 v[{vT0}:{vT0+1}], v{vOX}, s[{S_T+2}:{S_T+3}]")
e(f"v_and_b32 v{vOZ}, 15, v{vT0}")
e(f"v_add_u32 v{vOX}, s19, v{vOX}")
e(f"v_lshl_add_u32 v{vOY}, v{vOY}, 2, s19")
e(f"v_lshl_add_u32 v{vOZ}, v{vOZ}, 2, s19")
e(f"v_lshlrev_b32 v{GOFF}, 4, v{vG}")
e(f"s_lshl_b32 s{S_T}, s{S_WAVE}, 13")
e(f"v_lshrrev_b32 v{vT0}, 1, v{vN}")
e(f"v_xor_b32 v{vT0}, v{vT0}, v{vG}")
e(f"v_lshlrev_b32 v{vT0}, 5, v{vT0}")
e(f"v_and_b32 v{vT1}, 1, v0")
e(f"v_lshl_add_u32 v{vT0}, v{vT1}, 4, v{vT0}")
e(f"v_lshl_add_u32 v{vT0}, v{vG}, 8, v{vT0}")
e(f"v_add_u32 v{vW0}, s{S_T}, v{vT0}")
e(f"v_xor_b32 v{vW1}, 0x80, v{vW0}")
e(f"v_lshl_add_u32 v{vWN0}, v{vN}, 8, v{GOFF}")
e(f"v_add_u32 v{vWN0}, s{S_T}, v{vWN0}")
e(f"v_add_u32 v{vWN1}, 0x1000, v{vWN0}")
e(f"s_mov_b32 m0, s{S_T}")
e("s_waitcnt lgkmcnt(0)")
vm = []
def vmem(s, tag): e(s); vm.append(tag)
def vwait(tag):
    last = max(i for i, t in enumerate(vm) if t == tag)
    e(f"s_waitcnt vmcnt({len(vm) - 1 - last})")
def idx_load(el, k):
    off = [vOX, vOY, vOZ][k]
    vmem(f"global_load_dword v{IDX + 3*el + k}, v{off}, s[{S_IDX}:{S_IDX+1}] offset:{104*el + (64 if k else 0)}", f"idx{el}")
for k in range(3): idx_load(0, k)
for half in range(2):
    for q in range(4):
        vmem(f"global_load_lds_dwordx4 v{vW1 if q & 2 else vW0}, s[{S_W}:{S_W+1}] offset:{1024*q}", "wdma")
    if half == 0:
        e(f"s_add_u32 s{S_T+1}, s{S_T}, 0x1000"); e(f"v_add_u32 v{vW0}, 0x1000, v{vW0}"); e(f"s_mov_b32 m0, s{S_T+1}"); e(f"v_add_u32 v{vW1}, 0x1000, v{vW1}")
WN = F[0]; HB = ACC; WHA = RR
for ks in range(4): vmem(f"global_load_dwordx4 {rng(HB+4*ks,4)}, v{GOFF}, s[{S_H}:{S_H+1}] offset:{64*ks}", "wn")
for uu in range(2):
    for ks in range(4): vmem(f"global_load_dwordx4 {rng(WN+16*uu+4*ks,4)}, v{vWN1 if uu else vWN0}, s[{S_W}:{S_W+1}] offset:{64*ks}", "wn")
e(f"v_lshlrev_b32 v{vL}, 2, v{vL}")
vmem(f"global_load_dword v{TMP}, v{vL}, s[{S_P}:{S_P+1}]", "small")
e(f"v_lshrrev_b32 v{vT0}, 2, v{vN}"); e(f"v_lshlrev_b32 v{vT0}, 5, v{vT0}")
e(f"v_and_b32 v{vT1}, 3, v{vN}"); e(f"v_lshl_add_u32 v{vT0}, v{vT1}, 1, v{vT0}")
e(f"v_lshlrev_b32 v{vT1}, 3, v{vG}"); e(f"v_add_u32 v{vT0}, v{vT0}, v{vT1}")
for q in range(2): vmem(f"global_load_ushort v{H+q}, v{vT0}, s[{S_H}:{S_H+1}] offset:{128*q}", "small")
for t in range(8): vmem(f"global_load_dwordx2 {rng(BIAS+16+2*t,2)}, v{vT1}, s[{S_B}:{S_B+1}] offset:{32*t}", "small")
for el in range(1, 4):
    for k in range(3): idx_load(el, k)
vwait("idx0")
for k in range(3): e(f"v_lshl_add_u32 v{IDX+k}, v{IDX+k}, 8, v{GOFF}")
for k, V in ((0, VA), (1, VB), (2, VC)):
    for q in range(4): vmem(f"global_load_dwordx4 {rng(V+16+4*q,4)}, v{IDX+k}, s[{S_TAB}:{S_TAB+1}] offset:{64*q}", f"view{k}")
e(f"v_mov_b32 v{NEGINF}, 0xff800000")
for r in range(4): e(f"v_mov_b32 v{MASKC+r}, 0")
e(f"s_mov_b32 s{S_MA}, 0x{inval & 0xffffffff:08x}"); e(f"s_mov_b32 s{S_MA+1}, 0x{inval >> 32:08x}")
e(f"v_cndmask_b32 v{MASKC}, v{MASKC}, v{NEGINF}, s[{S_MA}:{S_MA+1}]")
e(f"s_mov_b32 s{S_MA}, 0xff"); e(f"s_mov_b32 s{S_MA+1}, 0"); e(f"s_mov_b32 s{S_MB}, 0xff00"); e(f"s_mov_b32 s{S_MB+1}, 0")
e(f"s_mov_b32 s{S_OM}, 0x00010001"); e(f"s_mov_b32 s{S_OM+1}, 0x00010001")
e(f"s_lshl_b32 s3, s3, 3"); e(f"v_lshl_add_u32 v{OOFF}, v{vG}, 1, s3")
e(f"v_lshrrev_b32 v{vT0}, 2, v{vN}")
e(f"v_and_b32 v{vT1}, 1, v{vG}"); e(f"v_lshl_or_b32 v{vT1}, v{vT1}, 2, v{vT0}")
e(f"v_lshl_add_u32 v{vT0}, v{vG}, 3, v{vT0}"); e(f"v_lshlrev_b32 v{vT0}, 8, v{vT0}")
e(f"v_lshl_add_u32 v{vT0}, v{vT1}, 5, v{vT0}")
e(f"v_and_b32 v{vT1}, 3, v{vN}"); e(f"v_lshl_add_u32 v{vTR}, v{vT1}, 3, v{vT0}")
for t in range(1, 8): e(f"v_xor_b32 v{vTR+t}, {t << 5}, v{vTR}")
vwait("wn")
for uu in range(2):
    for ks in range(4):
        c = "0" if ks == 0 else rng(WHA+4*uu, 4)
        e(f"v_mfma_f32_16x16x32_bf16 {rng(WHA+4*uu,4)}, {rng(HB+4*ks,4)}, {rng(WN+16*uu+4*ks,4)}, {c}")
vwait("small")
e(f"v_add_u32 v{vL}, {LN9}, v{vL}")
e(f"ds_write_b32 v{vL}, v{TMP} offset:256")
e(f"ds_write_b32 v{vL}, v{MASKC+1} offset:768")
e(f"s_mov_b32 s{S_T+2}, {f32(CSC)}")
for q in range(2):
    e(f"v_lshlrev_b32 v{H+q}, 16, v{H+q}"); e(f"v_mul_f32 v{H+q}, s{S_T+2}, v{H+q}")
e(f"s_lshl_b32 s{S_T+1}, s{S_WAVE}, 6"); e(f"s_add_u32 s{S_T+1}, s{S_T+1}, {LN9}")
e(f"v_lshl_add_u32 v{vT2}, v{vN}, 1, s{S_T+1}")
for uu in range(2):
    a = WHA + 4 * uu
    e(f"v_mul_f32 v{a}, s{S_T+2}, v{a}")
    e(f"v_cvt_pk_bf16_f32 v{a+1}, v{a}, v{a}")
    e(f"v_lshlrev_b32 v{a+2}, 16, v{a+1}")
    e(f"v_sub_f32 v{a+2}, v{a}, v{a+2}")
    e(f"v_cvt_pk_bf16_f32 v{a+2}, v{a+2}, v{a+2}")
    e(f"ds_write_b16 v{vT2}, v{a+1} offset:{32*uu}")
    e(f"ds_write_b16 v{vT2}, v{a+2} offset:{512+32*uu}")
if MRED:
    e(f"v_lshrrev_b32 v{vT0}, 3, v{vN}"); e(f"v_lshlrev_b32 v{vT0}, 6, v{vT0}"); e(f"v_and_b32 v{vT1}, 7, v{vN}")
    e(f"v_lshl_add_u32 v{vT0}, v{vT1}, 1, v{vT0}"); e(f"v_add_u32 v{vT0}, v{vT0}, v{GOFF}")
    raise SystemExit("MRED prologue not finished")
for q in range(16):
    s = BIAS + 16 + q
    e(f"v_lshlrev_b32 v{BIAS+2*q}, 16, v{s}"); e(f"v_and_b32 v{BIAS+2*q+1}, 0xffff0000, v{s}")
vNA = T + 24
for var in range(4):
    e(f"v_subrev_u32 v{vNA+var}, {4*var}, v{vN}"); e(f"v_min_u32 v{vNA+var}, 3, v{vNA+var}")
    e(f"v_lshl_add_u32 v{vNA+var}, v{vNA+var}, 8, v{GOFF}")
vwait("idx3")
for k in range(3, 12): e(f"v_lshl_add_u32 v{IDX+k}, v{IDX+k}, 8, v{GOFF}")
e("s_waitcnt lgkmcnt(0)")
e("s_barrier")
for t in range(8):
    for ks in range(4):
        for u in range(2):
            e(f"ds_read_b64_tr_b16 {rng(AW+(t*4+ks)*4+2*u,2,'a')}, v{vTR+t} offset:{8192*ks+1024*u}")
for var in range(4):
    for ks in range(4):
        e(f"ds_read_b128 {rng(AN9+16*var+4*ks,4,'a')}, v{vNA+var} offset:{LN9+64*ks}")
ops = []
TT = [0.0, 0.0]
def at(t, inc): TT[0] = t; TT[1] = inc
def valu(text, R, W, kind="valu", **kw):
    o = Op(text, kind, R, W, prio=TT[0], **kw); TT[0] += TT[1]; ops.append(o); return o
PER = 36 + MRED
def view_load(V, ireg):
    ls = []
    for q in range(4):
        o = Op(f"global_load_dwordx4 {rng(V+16+4*q,4)}, v{ireg}, s[{S_TAB}:{S_TAB+1}] offset:{64*q}", "vmem", R=[f"v{ireg}"], W=vr(V+16+4*q,4), prio=-1e9)
        ops.append(o); ls.append(o)
    return ls
def view_unpack(V, ls, lat, extra_after=None):
    w = Op("wait", "wait", R=vr(V+16,16), W=vr(V+16,16), covers=ls, lat=lat, prio=TT[0]); w.extra_after = extra_after; ops.append(w)
    for q in range(16):
        s = V + 16 + q
        valu(f"v_lshlrev_b32 v{V+2*q}, 16, v{s}", [f"v{s}"], [f"v{V+2*q}"])
        valu(f"v_and_b32 v{V+2*q+1}, 0xffff0000, v{s}", [f"v{s}"], [f"v{V+2*q+1}"])
def form(fb, muls, gs):
    at((gs - 1) * PER + 0.2, (PER - 2.5) / (16 + 32 * len(muls)))
    for i in range(32):
        d = TMP + i % 8
        for j, (P, ctrl, Q, mk) in enumerate(muls):
            if ctrl: valu(f"v_mul_f32_dpp v{d}, v{P+i}, v{Q+i} {ctrl} {mk}", [f"v{P+i}", f"v{Q+i}"] + ([f"v{d}"] if j else []), [f"v{d}"], "dpp")
            else: valu(f"v_mul_f32 v{d}, v{P+i}, v{Q+i}", [f"v{P+i}", f"v{Q+i}"], [f"v{d}"])
        if i % 2: valu(f"v_cvt_pk_bf16_f32 v{fb+i//2}, v{d-1}, v{d}", [f"v{d-1}", f"v{d}"], [f"v{fb+i//2}"])
tile_ctr = [0]
def step_mm(fb, r, d9, var, cinit, gs):
    for t in range(8):
        at(gs * PER + 4 * t + 6.1, 1.0)
        acc = ACC + 4 * (tile_ctr[0] % 4); tile_ctr[0] += 1
        for ks in range(4):
            c = BIAS + 4 * t if ks == 0 else acc
            a = AW + (t * 4 + ks) * 4
            ops.append(mfma(f"v_mfma_f32_16x16x32_bf16 {rng(acc,4)}, {rng(a,4,'a')}, {rng(fb+4*ks,4)}, {rng(c,4)}", vr(acc,4), vr(a,4,'a'), vr(fb+4*ks,4), vr(c,4)))
        for k in range(4):
            i = 4 * t + k
            if i == 0: valu(f"v_mul_f32_dpp v{r}, v{H+i//16}, |v{acc+k}| row_newbcast:{i%16} {FULL}", [f"v{H+i//16}", f"v{acc+k}"], [f"v{r}"], "dpp")
            else: valu(f"v_fmac_f32_dpp v{r}, v{H+i//16}, |v{acc+k}| row_newbcast:{i%16} {FULL}", [f"v{H+i//16}", f"v{acc+k}", f"v{r}"], [f"v{r}"], "dpp")
    for ks in range(4):
        a = AN9 + 16 * var + 4 * ks
        if ks == 0 and cinit is not None:
            ct, cr = ("0", []) if cinit == 0 else (rng(cinit, 4), vr(cinit, 4))
        else: ct, cr = rng(d9, 4), vr(d9, 4)
        ops.append(mfma(f"v_mfma_f32_16x16x32_bf16 {rng(d9,4)}, {rng(a,4,'a')}, {rng(fb+4*ks,4)}, {ct}", vr(d9,4), vr(a,4,'a'), vr(fb+4*ks,4), cr))
def swap(w, a, b): valu(f"v_permlane{w}_swap_b32 v{a}, v{b}", [f"v{a}", f"v{b}"], [f"v{a}", f"v{b}"], "perm")
def add(d, a, b): valu(f"v_add_f32 v{d}, v{a}, v{b}", [f"v{a}", f"v{b}"], [f"v{d}"])
def tred(r):
    swap(32, r, r+2); add(r, r, r+2); swap(32, r+1, r+3); add(r+1, r+1, r+3); swap(16, r, r+1); add(r, r, r+1)
def softmax(el, ES):
    E = [x[0] for x in ES]
    valu(f"v_max3_f32 v{MX}, v{E[0]}, v{E[1]}, v{E[2]}", [f"v{x}" for x in E[:3]], [f"v{MX}"])
    valu(f"v_max3_f32 v{MX}, v{MX}, v{E[3]}, v{E[4]}", [f"v{MX}", f"v{E[3]}", f"v{E[4]}"], [f"v{MX}"])
    valu(f"v_max_f32 v{MX}, v{MX}, v{E[5]}", [f"v{MX}", f"v{E[5]}"], [f"v{MX}"])
    for c in ("row_ror:8 " + FULL, "row_ror:4 " + FULL, "row_ror:2 " + FULL, "row_ror:1 " + FULL, "row_bcast:15 row_mask:0xa bank_mask:0xf", "row_bcast:31 row_mask:0xc bank_mask:0xf"):
        valu(f"v_max_f32_dpp v{MX}, v{MX}, v{MX} {c}", [f"v{MX}"], [f"v{MX}"], "dpp")
    valu(f"v_readlane_b32 s{S_MAX}, v{MX}, 63", [f"v{MX}"], [f"s{S_MAX}"], "readlane")
    for i, (x, s) in enumerate(ES):
        valu(f"v_subrev_f32 v{x}, s{S_MAX}, v{x}", [f"s{S_MAX}", f"v{x}"], [f"v{x}"])
        valu(f"v_exp_f32 v{x}, v{x}", [f"v{x}"], [f"v{x}"], "trans", cost=2)
        if i == 0: valu(f"v_mul_f32 v{NUM+el}, v{x}, v{s}", [f"v{x}", f"v{s}"], [f"v{NUM+el}"])
        else: valu(f"v_fmac_f32 v{NUM+el}, v{x}, v{s}", [f"v{x}", f"v{s}", f"v{NUM+el}"], [f"v{NUM+el}"])
        if i == 1: add(DEN+el, ES[0][0], x)
        elif i > 1: add(DEN+el, DEN+el, x)
lg = Op("s_waitcnt lgkmcnt(0)", "salu", R=[], W=vr(0, 256, 'a'), prio=-1)
at(-100, 0.01)
view_unpack(VA, [], 0, extra_after=8); view_unpack(VB, [], 0, extra_after=4)
ops.append(lg)
pendZ = ([], 0, 0)
gs = 0; grp = 0; rset = 0
tiles = {}
for el in range(4):
    X, Z = (VA, VC) if el % 2 == 0 else (VC, VA); Y = VB
    tiles[el] = []
    for s in range(20):
        if s == 8: at((gs - 5) * PER, 3.5 * PER / 32); view_unpack(Z, pendZ[0], pendZ[1], extra_after=pendZ[2])
        if s < 8: mu = [(Y, f"row_newbcast:{POS[s]}", X, FULL)]
        elif s < 11: mu = [(Y, K10[s-8][0], Z, FULL)]
        elif s < 13: mu = [(Y, f"row_newbcast:{POS[s-3]}", X, FULL)]
        else: mu = [(X, f"row_ror:{s-12}", X, FULL)]
        fb = F[gs % 2]
        form(fb, mu, gs)
        if el < 3:
            if s == 10: pendX = view_load(Z, IDX + 3 * (el + 1))
            if s == 12: pendY = view_load(Y, IDX + 3 * (el + 1) + 1)
            if s == 19 and el % 2 == 1: pendZ = (view_load(X, IDX + 3 * (el + 1) + 2), LAT_NEAR, None)
        var = s % 4
        if var == 0: d9 = D9 + 4 * (grp % NRING); grp += 1; rb = RR + 4 * (rset % 2); rset += 1
        step_mm(fb, rb + var, d9, var, (MASKC if s == 8 else 0) if var == 0 else None, gs)
        gs += 1
        if var == 3:
            at(gs * PER + 4, 3.0); tred(rb); add(d9, d9, d9 + 2); add(d9, d9, rb); tiles[el].append((d9, d9 + 1))
    if el < 3: at((gs - 6) * PER, 2.5 * PER / 32); view_unpack(Z, pendX, LAT_FAR)
    if el % 2 == 0:
        fb = F[gs % 2]
        form(fb, [(X, "row_ror:8", X, "row_mask:0xf bank_mask:0x3"), (Z, "row_ror:8", Z, "row_mask:0xf bank_mask:0xc")], gs)
        pendZ = (view_load(X, IDX + 3 * (el + 1) + 2), LAT_NEAR, None)
        rb = RR + 4 * (rset % 2); rset += 1
        step_mm(fb, rb, D9M, 0, 0, gs); gs += 1
        at(gs * PER + 4, 2.0)
        swap(32, rb, rb+2); add(rb, rb, rb+2); swap(16, rb, rb+1); add(rb, rb, rb+1)
        add(D9M, D9M, D9M + 2); add(D9M, D9M, rb)
        valu(f"v_cndmask_b32 v{D9M+2}, v{NEGINF}, v{D9M}, s[{S_MA}:{S_MA+1}]", [f"v{NEGINF}", f"v{D9M}"], [f"v{D9M+2}"])
        valu(f"v_cndmask_b32 v{D9M+3}, v{NEGINF}, v{D9M}, s[{S_MB}:{S_MB+1}]", [f"v{NEGINF}", f"v{D9M}"], [f"v{D9M+3}"])
    if el < 3: at((gs - 3.5 - (1 - el % 2)) * PER, 2.4 * PER / 32); view_unpack(Y, pendY, LAT_FAR)
    at(gs * PER + 28, 2.0)
    softmax(el, tiles[el] + [(D9M + 2 + el % 2, D9M + 1)])
tred(NUM); tred(DEN)
for c in (8, 4, 2, 1):
    for r in (NUM, DEN): valu(f"v_add_f32_dpp v{r}, v{r}, v{r} row_ror:{c} {FULL}", [f"v{r}"], [f"v{r}"], "dpp")
valu(f"v_rcp_f32 v{DEN}, v{DEN}", [f"v{DEN}"], [f"v{DEN}"], "trans", cost=2)
valu(f"v_mul_f32 v{NUM}, v{NUM}, v{DEN}", [f"v{NUM}", f"v{DEN}"], [f"v{NUM}"])
valu(f"v_cvt_pk_bf16_f32 v{NUM}, v{NUM}, v{NUM}", [f"v{NUM}"], [f"v{NUM}"])
out, st = schedule(ops)
bad = verify(out)
print(st, "hazards", bad, "est cycles", est_cycles(out), file=sys.stderr)
assert bad == 0
for s in finalize(out): e(s)
e(f"s_mov_b64 exec, s[{S_OM}:{S_OM+1}]")
e(f"global_store_short v{OOFF}, v{NUM}, s[{S_OUT}:{S_OUT+1}]")
L.append("L_done:")
e("s_endpgm")
L += ['.section .rodata,"a"', ".p2align 6", ".amdhsa_kernel %s_kernel" % NAME,
      "  .amdhsa_next_free_vgpr 512", "  .amdhsa_next_free_sgpr 40", "  .amdhsa_accum_offset 256",
      "  .amdhsa_group_segment_fixed_size 0", "  .amdhsa_kernarg_size 88", "  .amdhsa_user_sgpr_count 2",
      "  .amdhsa_user_sgpr_kernarg_segment_ptr 1", "  .amdhsa_system_sgpr_workgroup_id_x 1",
      "  .amdhsa_float_denorm_mode_32 3",
      ".end_amdhsa_kernel"]
print("\n".join(L))
```

```python
import sys, math, struct
from sched import *
NAME = "standalone__factorization_afm__recsys"
opts = dict(a.split("=") for a in sys.argv[1:] if "=" in a)
MRED = int(opts.get("m", 0))
LAT_FAR = int(opts.get("latfar", 560)); LAT_NEAR = int(opts.get("latnear", 300))
DBG = int(opts.get("dbg", 0))
YT = [6,0,4,4,2,3,6,9,3,7,0,1,8,5,3,4]
ZT = [5,2,7,7,9,7,1,0,1,5,4,8,2,9,6,8]
K10 = [("", lambda n: n), ("quad_perm:[1,0,3,2]", lambda n: n ^ 1), ("quad_perm:[2,3,0,1]", lambda n: n ^ 2)]
seen = set(); inval = 0
for k, (_, pi) in enumerate(K10):
    for n in range(16):
        a, b = ZT[n], YT[pi(n)]; key = (min(a, b), max(a, b))
        if a == b or key in seen: inval |= 1 << (16 * k + n)
        else: seen.add(key)
assert len(seen) == 45
POS = [YT.index(c) for c in range(10)]
FULL = "row_mask:0xf bank_mask:0xf"
BIAS = 0; VA = 32; VB = 64; VC = 96; F = [128, 144]; TMP = 160; ACC = 168; RR = 184; D9 = 192; NRING = 6; D9M = 216
MASKC = 220; H = 224; NEGINF = 226; MX = 227; NUM = 228; DEN = 232; IDX = 236; GOFF = 248; OOFF = 249; RF = 240
AW = 0; AN9 = 128; AH = 192
S_IDX = 4; S_TAB = 6; S_W = 8; S_B = 10; S_H = 12; S_P = 14; S_OUT = 16; S_WAVE = 18; S_MA = 20; S_MB = 22; S_MAX = 24; S_T = 26; S_OM = 30
LN9 = 32768
CSC = 0.5 * math.log2(math.e)
def f32(x): return "0x%08x" % struct.unpack("<I", struct.pack("<f", x))[0]
L = []
def e(s): L.append("    " + s)
hdr = open("cdna_kernels/%s.s.ref" % NAME).read().split("\n")
for line in hdr:
    if line.startswith("; @launch"):
        L.append("; @launch grid=(256,1,1) block=(256,1,1) lds=34816"); break
    L.append(line)
L += ['.amdgcn_target "amdgcn-amd-amdhsa--gfx950"', ".text", ".globl %s_kernel" % NAME, ".p2align 8",
      ".type %s_kernel,@function" % NAME, "%s_kernel:" % NAME]
NST = [0]
def stamp():
    if DBG: e(f"s_memrealtime s[{40+2*NST[0]}:{41+2*NST[0]}]"); NST[0] += 1
e("s_cmp_ge_u32 s2, 256"); e("s_cbranch_scc1 L_done")
stamp(); e("s_load_dwordx4 s[4:7], s[0:1], 0"); e("s_load_dwordx4 s[8:11], s[0:1], 32")
e("s_load_dwordx4 s[12:15], s[0:1], 48"); e("s_load_dwordx2 s[16:17], s[0:1], 64")
T = D9
vN, vG, vL, vOX, vOY, vOZ, vW0, vW1, vWN0, vWN1, vT0, vT1, vT2, vTR = T, T+1, T+2, T+3, T+4, T+5, T+6, T+7, T+8, T+9, T+10, T+11, T+12, T+16
e(f"v_lshrrev_b32 v{vT0}, 6, v0")
e(f"v_and_b32 v{vN}, 15, v0")
e(f"v_readfirstlane_b32 s{S_WAVE}, v{vT0}")
e(f"v_bfe_u32 v{vG}, v0, 4, 2")
e(f"v_and_b32 v{vL}, 63, v0")
def nib(tab): return sum(v << (4 * i) for i, v in enumerate(tab))
e(f"s_mov_b32 s{S_T}, 0x{nib(YT) & 0xffffffff:08x}"); e(f"s_mov_b32 s{S_T+1}, 0x{nib(YT) >> 32:08x}")
e(f"s_mov_b32 s{S_T+2}, 0x{nib(ZT) & 0xffffffff:08x}"); e(f"s_mov_b32 s{S_T+3}, 0x{nib(ZT) >> 32:08x}")
e(f"s_lshl_b32 s3, s2, 2"); e(f"s_add_u32 s3, s3, s{S_WAVE}")
e(f"s_mul_i32 s19, s3, 416")
e(f"v_lshlrev_b32 v{vOX}, 2, v{vN}")
e(f"v_lshrrev_b64 v[{vT0}:{vT0+1}], v{vOX}, s[{S_T}:{S_T+1}]")
e(f"v_and_b32 v{vOY}, 15, v{vT0}")
e(f"v_lshrrev_b64 v[{vT0}:{vT0+1}], v{vOX}, s[{S_T+2}:{S_T+3}]")
e(f"v_and_b32 v{vOZ}, 15, v{vT0}")
e(f"v_add_u32 v{vOX}, s19, v{vOX}")
e(f"v_lshl_add_u32 v{vOY}, v{vOY}, 2, s19")
e(f"v_lshl_add_u32 v{vOZ}, v{vOZ}, 2, s19")
e(f"v_lshlrev_b32 v{GOFF}, 4, v{vG}")
e(f"s_lshl_b32 s{S_T}, s{S_WAVE}, 13")
e(f"v_lshrrev_b32 v{vT0}, 1, v{vN}")
e(f"v_xor_b32 v{vT0}, v{vT0}, v{vG}")
e(f"v_lshlrev_b32 v{vT0}, 5, v{vT0}")
e(f"v_and_b32 v{vT1}, 1, v0")
e(f"v_lshl_add_u32 v{vT0}, v{vT1}, 4, v{vT0}")
e(f"v_lshl_add_u32 v{vT0}, v{vG}, 8, v{vT0}")
e(f"v_add_u32 v{vW0}, s{S_T}, v{vT0}")
e(f"v_xor_b32 v{vW1}, 0x80, v{vW0}")
e(f"v_lshl_add_u32 v{vWN0}, v{vN}, 8, v{GOFF}")
e(f"v_add_u32 v{vWN0}, s{S_T}, v{vWN0}")
e(f"v_add_u32 v{vWN1}, 0x1000, v{vWN0}")
e(f"s_mov_b32 m0, s{S_T}")
e("s_waitcnt lgkmcnt(0)")
stamp()
vm = []
def vmem(s, tag): e(s); vm.append(tag)
def vwait(tag):
    last = max(i for i, t in enumerate(vm) if t == tag)
    e(f"s_waitcnt vmcnt({len(vm) - 1 - last})")
def idx_load(el, k):
    off = [vOX, vOY, vOZ][k]
    vmem(f"global_load_dword v{IDX + 3*el + k}, v{off}, s[{S_IDX}:{S_IDX+1}] offset:{104*el + (64 if k else 0)}", f"idx{el}")
for k in range(3): idx_load(0, k)
PF = int(opts.get("pf", 0))
if PF:
    e("s_getpc_b64 s[32:33]")
    e(f"v_lshlrev_b32 v{vT2}, 7, v0")
    for k in range(PF):
        vmem(f"global_load_dword v{250+k}, v{vT2}, s[32:33]", "pf")
        if k + 1 < PF: e(f"v_add_u32 v{vT2}, 0x8000, v{vT2}")
for half in range(2):
    for q in range(4):
        vmem(f"global_load_lds_dwordx4 v{vW1 if q & 2 else vW0}, s[{S_W}:{S_W+1}] offset:{1024*q}", "wdma")
    if half == 0:
        e(f"s_add_u32 s{S_T+1}, s{S_T}, 0x1000"); e(f"v_add_u32 v{vW0}, 0x1000, v{vW0}"); e(f"s_mov_b32 m0, s{S_T+1}"); e(f"v_add_u32 v{vW1}, 0x1000, v{vW1}")
WN = F[0]; HB = ACC; WHA = RR
for ks in range(4): vmem(f"global_load_dwordx4 {rng(HB+4*ks,4)}, v{GOFF}, s[{S_H}:{S_H+1}] offset:{64*ks}", "wn")
for uu in range(2):
    for ks in range(4): vmem(f"global_load_dwordx4 {rng(WN+16*uu+4*ks,4)}, v{vWN1 if uu else vWN0}, s[{S_W}:{S_W+1}] offset:{64*ks}", "wn")
e(f"v_lshlrev_b32 v{vL}, 2, v{vL}")
vmem(f"global_load_dword v{TMP}, v{vL}, s[{S_P}:{S_P+1}]", "small")
e(f"v_lshrrev_b32 v{vT0}, 2, v{vN}"); e(f"v_lshlrev_b32 v{vT0}, 5, v{vT0}")
e(f"v_and_b32 v{vT1}, 3, v{vN}"); e(f"v_lshl_add_u32 v{vT0}, v{vT1}, 1, v{vT0}")
e(f"v_lshlrev_b32 v{vT1}, 3, v{vG}"); e(f"v_add_u32 v{vT0}, v{vT0}, v{vT1}")
for q in range(2): vmem(f"global_load_ushort v{H+q}, v{vT0}, s[{S_H}:{S_H+1}] offset:{128*q}", "small")
for t in range(8): vmem(f"global_load_dwordx2 {rng(BIAS+16+2*t,2)}, v{vT1}, s[{S_B}:{S_B+1}] offset:{32*t}", "small")
for el in range(1, 4):
    for k in range(3): idx_load(el, k)
vwait("idx0"); stamp()
for k in range(3): e(f"v_lshl_add_u32 v{IDX+k}, v{IDX+k}, 8, v{GOFF}")
for k, V in ((0, VA), (1, VB), (2, VC)):
    for q in range(4): vmem(f"global_load_dwordx4 {rng(V+16+4*q,4)}, v{IDX+k}, s[{S_TAB}:{S_TAB+1}] offset:{64*q}", f"view{k}")
e(f"v_mov_b32 v{NEGINF}, 0xff800000")
for r in range(4): e(f"v_mov_b32 v{MASKC+r}, 0")
e(f"s_mov_b32 s{S_MA}, 0x{inval & 0xffffffff:08x}"); e(f"s_mov_b32 s{S_MA+1}, 0x{inval >> 32:08x}")
e(f"v_cndmask_b32 v{MASKC}, v{MASKC}, v{NEGINF}, s[{S_MA}:{S_MA+1}]")
e(f"s_mov_b32 s{S_MA}, 0xff"); e(f"s_mov_b32 s{S_MA+1}, 0"); e(f"s_mov_b32 s{S_MB}, 0xff00"); e(f"s_mov_b32 s{S_MB+1}, 0")
e(f"s_mov_b32 s{S_OM}, 0x00010001"); e(f"s_mov_b32 s{S_OM+1}, 0x00010001")
e(f"s_lshl_b32 s3, s3, 3"); e(f"v_lshl_add_u32 v{OOFF}, v{vG}, 1, s3")
e(f"v_lshrrev_b32 v{vT0}, 2, v{vN}")
e(f"v_and_b32 v{vT1}, 1, v{vG}"); e(f"v_lshl_or_b32 v{vT1}, v{vT1}, 2, v{vT0}")
e(f"v_lshl_add_u32 v{vT0}, v{vG}, 3, v{vT0}"); e(f"v_lshlrev_b32 v{vT0}, 8, v{vT0}")
e(f"v_lshl_add_u32 v{vT0}, v{vT1}, 5, v{vT0}")
e(f"v_and_b32 v{vT1}, 3, v{vN}"); e(f"v_lshl_add_u32 v{vTR}, v{vT1}, 3, v{vT0}")
for t in range(1, 8): e(f"v_xor_b32 v{vTR+t}, {t << 5}, v{vTR}")
vwait("wn"); stamp()
for uu in range(2):
    for ks in range(4):
        c = "0" if ks == 0 else rng(WHA+4*uu, 4)
        e(f"v_mfma_f32_16x16x32_bf16 {rng(WHA+4*uu,4)}, {rng(HB+4*ks,4)}, {rng(WN+16*uu+4*ks,4)}, {c}")
vwait("small")
e(f"v_add_u32 v{vL}, {LN9}, v{vL}")
e(f"ds_write_b32 v{vL}, v{TMP} offset:256")
e(f"ds_write_b32 v{vL}, v{MASKC+1} offset:768")
e(f"s_mov_b32 s{S_T+2}, {f32(CSC)}")
for q in range(2):
    e(f"v_lshlrev_b32 v{H+q}, 16, v{H+q}"); e(f"v_mul_f32 v{H+q}, s{S_T+2}, v{H+q}")
e(f"s_lshl_b32 s{S_T+1}, s{S_WAVE}, 6"); e(f"s_add_u32 s{S_T+1}, s{S_T+1}, {LN9}")
e(f"v_lshl_add_u32 v{vT2}, v{vN}, 1, s{S_T+1}")
for uu in range(2):
    a = WHA + 4 * uu
    e(f"v_mul_f32 v{a}, s{S_T+2}, v{a}")
    e(f"v_cvt_pk_bf16_f32 v{a+1}, v{a}, v{a}")
    e(f"v_lshlrev_b32 v{a+2}, 16, v{a+1}")
    e(f"v_sub_f32 v{a+2}, v{a}, v{a+2}")
    e(f"v_cvt_pk_bf16_f32 v{a+2}, v{a+2}, v{a+2}")
    e(f"ds_write_b16 v{vT2}, v{a+1} offset:{32*uu}")
    e(f"ds_write_b16 v{vT2}, v{a+2} offset:{512+32*uu}")
if MRED:
    e(f"v_lshrrev_b32 v{vT0}, 3, v{vN}"); e(f"v_lshlrev_b32 v{vT0}, 6, v{vT0}"); e(f"v_and_b32 v{vT1}, 7, v{vN}")
    e(f"v_lshl_add_u32 v{vT0}, v{vT1}, 1, v{vT0}"); e(f"v_add_u32 v{vT0}, v{vT0}, v{GOFF}")
    raise SystemExit("MRED prologue not finished")
for q in range(16):
    s = BIAS + 16 + q
    e(f"v_lshlrev_b32 v{BIAS+2*q}, 16, v{s}"); e(f"v_and_b32 v{BIAS+2*q+1}, 0xffff0000, v{s}")
vNA = T + 24
for var in range(4):
    e(f"v_subrev_u32 v{vNA+var}, {4*var}, v{vN}"); e(f"v_min_u32 v{vNA+var}, 3, v{vNA+var}")
    e(f"v_lshl_add_u32 v{vNA+var}, v{vNA+var}, 8, v{GOFF}")
vwait("idx3")
for k in range(3, 12): e(f"v_lshl_add_u32 v{IDX+k}, v{IDX+k}, 8, v{GOFF}")
e("s_waitcnt lgkmcnt(0)")
stamp(); e("s_barrier"); stamp()
for t in range(8):
    for ks in range(4):
        for u in range(2):
            e(f"ds_read_b64_tr_b16 {rng(AW+(t*4+ks)*4+2*u,2,'a')}, v{vTR+t} offset:{8192*ks+1024*u}")
for var in range(4):
    for ks in range(4):
        e(f"ds_read_b128 {rng(AN9+16*var+4*ks,4,'a')}, v{vNA+var} offset:{LN9+64*ks}")
ops = []
TT = [0.0, 0.0]
def at(t, inc): TT[0] = t; TT[1] = inc
def valu(text, R, W, kind="valu", **kw):
    o = Op(text, kind, R, W, prio=TT[0], **kw); TT[0] += TT[1]; ops.append(o); return o
PER = 36 + MRED
def view_load(V, ireg):
    ls = []
    for q in range(4):
        o = Op(f"global_load_dwordx4 {rng(V+16+4*q,4)}, v{ireg}, s[{S_TAB}:{S_TAB+1}] offset:{64*q}", "vmem", R=[f"v{ireg}"], W=vr(V+16+4*q,4), prio=-1e9)
        ops.append(o); ls.append(o)
    return ls
def view_unpack(V, ls, lat, extra_after=None):
    w = Op("wait", "wait", R=vr(V+16,16), W=vr(V+16,16), covers=ls, lat=lat, prio=TT[0]); w.extra_after = extra_after; ops.append(w)
    for q in range(16):
        s = V + 16 + q
        valu(f"v_lshlrev_b32 v{V+2*q}, 16, v{s}", [f"v{s}"], [f"v{V+2*q}"])
        valu(f"v_and_b32 v{V+2*q+1}, 0xffff0000, v{s}", [f"v{s}"], [f"v{V+2*q+1}"])
def form(fb, muls, gs):
    at((gs - 1) * PER + 0.2, (PER - 2.5) / (16 + 32 * len(muls)))
    for i in range(32):
        d = TMP + i % 8
        for j, (P, ctrl, Q, mk) in enumerate(muls):
            if ctrl: valu(f"v_mul_f32_dpp v{d}, v{P+i}, v{Q+i} {ctrl} {mk}", [f"v{P+i}", f"v{Q+i}"] + ([f"v{d}"] if j else []), [f"v{d}"], "dpp")
            else: valu(f"v_mul_f32 v{d}, v{P+i}, v{Q+i}", [f"v{P+i}", f"v{Q+i}"], [f"v{d}"])
        if i % 2: valu(f"v_cvt_pk_bf16_f32 v{fb+i//2}, v{d-1}, v{d}", [f"v{d-1}", f"v{d}"], [f"v{fb+i//2}"])
tile_ctr = [0]
def step_mm(fb, r, d9, var, cinit, gs):
    for t in range(8):
        at(gs * PER + 4 * t + 6.1, 1.0)
        acc = ACC + 4 * (tile_ctr[0] % 4); tile_ctr[0] += 1
        for ks in range(4):
            c = BIAS + 4 * t if ks == 0 else acc
            a = AW + (t * 4 + ks) * 4
            ops.append(mfma(f"v_mfma_f32_16x16x32_bf16 {rng(acc,4)}, {rng(a,4,'a')}, {rng(fb+4*ks,4)}, {rng(c,4)}", vr(acc,4), vr(a,4,'a'), vr(fb+4*ks,4), vr(c,4)))
        for k in range(4):
            i = 4 * t + k
            if i == 0: valu(f"v_mul_f32_dpp v{r}, v{H+i//16}, |v{acc+k}| row_newbcast:{i%16} {FULL}", [f"v{H+i//16}", f"v{acc+k}"], [f"v{r}"], "dpp")
            else: valu(f"v_fmac_f32_dpp v{r}, v{H+i//16}, |v{acc+k}| row_newbcast:{i%16} {FULL}", [f"v{H+i//16}", f"v{acc+k}", f"v{r}"], [f"v{r}"], "dpp")
    for ks in range(4):
        a = AN9 + 16 * var + 4 * ks
        if ks == 0 and cinit is not None:
            ct, cr = ("0", []) if cinit == 0 else (rng(cinit, 4), vr(cinit, 4))
        else: ct, cr = rng(d9, 4), vr(d9, 4)
        ops.append(mfma(f"v_mfma_f32_16x16x32_bf16 {rng(d9,4)}, {rng(a,4,'a')}, {rng(fb+4*ks,4)}, {ct}", vr(d9,4), vr(a,4,'a'), vr(fb+4*ks,4), cr))
def swap(w, a, b): valu(f"v_permlane{w}_swap_b32 v{a}, v{b}", [f"v{a}", f"v{b}"], [f"v{a}", f"v{b}"], "perm")
def add(d, a, b): valu(f"v_add_f32 v{d}, v{a}, v{b}", [f"v{a}", f"v{b}"], [f"v{d}"])
def tred(r):
    swap(32, r, r+2); add(r, r, r+2); swap(32, r+1, r+3); add(r+1, r+1, r+3); swap(16, r, r+1); add(r, r, r+1)
def softmax(el, ES):
    E = [x[0] for x in ES]
    valu(f"v_max3_f32 v{MX}, v{E[0]}, v{E[1]}, v{E[2]}", [f"v{x}" for x in E[:3]], [f"v{MX}"])
    valu(f"v_max3_f32 v{MX}, v{MX}, v{E[3]}, v{E[4]}", [f"v{MX}", f"v{E[3]}", f"v{E[4]}"], [f"v{MX}"])
    valu(f"v_max_f32 v{MX}, v{MX}, v{E[5]}", [f"v{MX}", f"v{E[5]}"], [f"v{MX}"])
    for c in ("row_ror:8 " + FULL, "row_ror:4 " + FULL, "row_ror:2 " + FULL, "row_ror:1 " + FULL, "row_bcast:15 row_mask:0xa bank_mask:0xf", "row_bcast:31 row_mask:0xc bank_mask:0xf"):
        valu(f"v_max_f32_dpp v{MX}, v{MX}, v{MX} {c}", [f"v{MX}"], [f"v{MX}"], "dpp")
    valu(f"v_readlane_b32 s{S_MAX}, v{MX}, 63", [f"v{MX}"], [f"s{S_MAX}"], "readlane")
    for i, (x, s) in enumerate(ES):
        valu(f"v_subrev_f32 v{x}, s{S_MAX}, v{x}", [f"s{S_MAX}", f"v{x}"], [f"v{x}"])
        valu(f"v_exp_f32 v{x}, v{x}", [f"v{x}"], [f"v{x}"], "trans", cost=2)
        if i == 0: valu(f"v_mul_f32 v{NUM+el}, v{x}, v{s}", [f"v{x}", f"v{s}"], [f"v{NUM+el}"])
        else: valu(f"v_fmac_f32 v{NUM+el}, v{x}, v{s}", [f"v{x}", f"v{s}", f"v{NUM+el}"], [f"v{NUM+el}"])
        if i == 1: add(DEN+el, ES[0][0], x)
        elif i > 1: add(DEN+el, DEN+el, x)
lg = Op("s_waitcnt lgkmcnt(0)", "salu", R=[], W=vr(0, 256, 'a'), prio=-1)
at(-100, 0.01)
view_unpack(VA, [], 0, extra_after=8); view_unpack(VB, [], 0, extra_after=4)
ops.append(lg)
pendZ = ([], 0, 0)
gs = 0; grp = 0; rset = 0
tiles = {}
for el in range(4):
    X, Z = (VA, VC) if el % 2 == 0 else (VC, VA); Y = VB
    tiles[el] = []
    for s in range(20):
        if s == 8: at((gs - 5) * PER, 3.5 * PER / 32); view_unpack(Z, pendZ[0], pendZ[1], extra_after=pendZ[2])
        if s < 8: mu = [(Y, f"row_newbcast:{POS[s]}", X, FULL)]
        elif s < 11: mu = [(Y, K10[s-8][0], Z, FULL)]
        elif s < 13: mu = [(Y, f"row_newbcast:{POS[s-3]}", X, FULL)]
        else: mu = [(X, f"row_ror:{s-12}", X, FULL)]
        fb = F[gs % 2]
        form(fb, mu, gs)
        if el < 3:
            if s == 10: pendX = view_load(Z, IDX + 3 * (el + 1))
            if s == 12: pendY = view_load(Y, IDX + 3 * (el + 1) + 1)
            if s == 19 and el % 2 == 1: pendZ = (view_load(X, IDX + 3 * (el + 1) + 2), LAT_NEAR, None)
        var = s % 4
        if var == 0: d9 = D9 + 4 * (grp % NRING); grp += 1; rb = RR + 4 * (rset % 2); rset += 1
        step_mm(fb, rb + var, d9, var, (MASKC if s == 8 else 0) if var == 0 else None, gs)
        gs += 1
        if var == 3:
            at(gs * PER + 4, 3.0); tred(rb); add(d9, d9, d9 + 2); add(d9, d9, rb); tiles[el].append((d9, d9 + 1))
    if el < 3: at((gs - 6) * PER, 2.5 * PER / 32); view_unpack(Z, pendX, LAT_FAR)
    if el % 2 == 0:
        fb = F[gs % 2]
        form(fb, [(X, "row_ror:8", X, "row_mask:0xf bank_mask:0x3"), (Z, "row_ror:8", Z, "row_mask:0xf bank_mask:0xc")], gs)
        pendZ = (view_load(X, IDX + 3 * (el + 1) + 2), LAT_NEAR, None)
        rb = RR + 4 * (rset % 2); rset += 1
        step_mm(fb, rb, D9M, 0, 0, gs); gs += 1
        at(gs * PER + 4, 2.0)
        swap(32, rb, rb+2); add(rb, rb, rb+2); swap(16, rb, rb+1); add(rb, rb, rb+1)
        add(D9M, D9M, D9M + 2); add(D9M, D9M, rb)
        valu(f"v_cndmask_b32 v{D9M+2}, v{NEGINF}, v{D9M}, s[{S_MA}:{S_MA+1}]", [f"v{NEGINF}", f"v{D9M}"], [f"v{D9M+2}"])
        valu(f"v_cndmask_b32 v{D9M+3}, v{NEGINF}, v{D9M}, s[{S_MB}:{S_MB+1}]", [f"v{NEGINF}", f"v{D9M}"], [f"v{D9M+3}"])
    if el < 3: at((gs - 3.5 - (1 - el % 2)) * PER, 2.4 * PER / 32); view_unpack(Y, pendY, LAT_FAR)
    at(gs * PER + 28, 2.0)
    softmax(el, tiles[el] + [(D9M + 2 + el % 2, D9M + 1)])
tred(NUM); tred(DEN)
for c in (8, 4, 2, 1):
    for r in (NUM, DEN): valu(f"v_add_f32_dpp v{r}, v{r}, v{r} row_ror:{c} {FULL}", [f"v{r}"], [f"v{r}"], "dpp")
valu(f"v_rcp_f32 v{DEN}, v{DEN}", [f"v{DEN}"], [f"v{DEN}"], "trans", cost=2)
valu(f"v_mul_f32 v{NUM}, v{NUM}, v{DEN}", [f"v{NUM}", f"v{DEN}"], [f"v{NUM}"])
valu(f"v_cvt_pk_bf16_f32 v{NUM}, v{NUM}, v{NUM}", [f"v{NUM}"], [f"v{NUM}"])
out, st = schedule(ops)
bad = verify(out)
print(st, "hazards", bad, "est cycles", est_cycles(out), file=sys.stderr)
assert bad == 0
nm = 0
for s in finalize(out):
    if s.startswith("v_mfma"):
        if nm % (PER * 8) == 0: stamp()
        nm += 1
    e(s)
stamp()
if DBG:
    e("s_load_dwordx2 s[36:37], s[0:1], 80"); e("s_waitcnt lgkmcnt(0)")
    e("s_lshl_b32 s3, s3, 4")
    e(f"v_mov_b32 v1, s3")
    for k in range(NST[0]):
        e(f"v_mov_b32 v2, s{40+2*k}"); e(f"global_store_dword v1, v2, s[36:37] offset:{4*k}")
    e(f"v_mov_b32 v2, {NST[0]}"); e(f"global_store_dword v1, v2, s[36:37] offset:124")
e(f"s_mov_b64 exec, s[{S_OM}:{S_OM+1}]")
e(f"global_store_short v{OOFF}, v{NUM}, s[{S_OUT}:{S_OUT+1}]")
L.append("L_done:")
e("s_endpgm")
L += ['.section .rodata,"a"', ".p2align 6", ".amdhsa_kernel %s_kernel" % NAME,
      "  .amdhsa_next_free_vgpr 512", "  .amdhsa_next_free_sgpr 100", "  .amdhsa_accum_offset 256",
      "  .amdhsa_group_segment_fixed_size 0", "  .amdhsa_kernarg_size 88", "  .amdhsa_user_sgpr_count 2",
      "  .amdhsa_user_sgpr_kernarg_segment_ptr 1", "  .amdhsa_system_sgpr_workgroup_id_x 1",
      "  .amdhsa_float_denorm_mode_32 3",
      ".end_amdhsa_kernel"]
print("\n".join(L))
```

```python
import sys, math, struct
from sched import *
NAME = "standalone__factorization_afm__recsys"
opts = dict(a.split("=") for a in sys.argv[1:] if "=" in a)
MRED = int(opts.get("m", 0))
LAT_FAR = int(opts.get("latfar", 560)); LAT_NEAR = int(opts.get("latnear", 300))
DBG = int(opts.get("dbg", 0))
YT = [6,0,4,4,2,3,6,9,3,7,0,1,8,5,3,4]
ZT = [5,2,7,7,9,7,1,0,1,5,4,8,2,9,6,8]
K10 = [("", lambda n: n), ("quad_perm:[1,0,3,2]", lambda n: n ^ 1), ("quad_perm:[2,3,0,1]", lambda n: n ^ 2)]
seen = set(); inval = 0
for k, (_, pi) in enumerate(K10):
    for n in range(16):
        a, b = ZT[n], YT[pi(n)]; key = (min(a, b), max(a, b))
        if a == b or key in seen: inval |= 1 << (16 * k + n)
        else: seen.add(key)
assert len(seen) == 45
POS = [YT.index(c) for c in range(10)]
FULL = "row_mask:0xf bank_mask:0xf"
BIAS = 0; VA = 32; VB = 64; VC = 96; F = [128, 144]; TMP = 160; ACC = 168; RR = 184; D9 = 192; NRING = 6; D9M = 216
MASKC = 220; H = 224; NEGINF = 226; MX = 227; NUM = 228; DEN = 232; IDX = 236; GOFF = 248; OOFF = 249; RF = 240
AW = 0; AN9 = 128; AH = 192
S_IDX = 4; S_TAB = 6; S_W = 8; S_B = 10; S_H = 12; S_P = 14; S_OUT = 16; S_WAVE = 18; S_MA = 20; S_MB = 22; S_MAX = 24; S_T = 26; S_OM = 30
LN9 = 32768
CSC = 0.5 * math.log2(math.e)
def f32(x): return "0x%08x" % struct.unpack("<I", struct.pack("<f", x))[0]
L = []
def e(s): L.append("    " + s)
hdr = open("cdna_kernels/%s.s.ref" % NAME).read().split("\n")
for line in hdr:
    if line.startswith("; @launch"):
        L.append("; @launch grid=(256,1,1) block=(256,1,1) lds=34816"); break
    L.append(line)
L += ['.amdgcn_target "amdgcn-amd-amdhsa--gfx950"', ".text", ".globl %s_kernel" % NAME, ".p2align 8",
      ".type %s_kernel,@function" % NAME, "%s_kernel:" % NAME]
NST = [0]
def stamp():
    if DBG: e(f"s_memrealtime s[{40+2*NST[0]}:{41+2*NST[0]}]"); NST[0] += 1
e("s_cmp_ge_u32 s2, 256"); e("s_cbranch_scc1 L_done")
stamp(); e("s_load_dwordx4 s[4:7], s[0:1], 0"); e("s_load_dwordx4 s[8:11], s[0:1], 32")
e("s_load_dwordx4 s[12:15], s[0:1], 48"); e("s_load_dwordx2 s[16:17], s[0:1], 64")
T = D9
vN, vG, vL, vOX, vOY, vOZ, vW0, vW1, vWN0, vWN1, vT0, vT1, vT2, vTR = T, T+1, T+2, T+3, T+4, T+5, T+6, T+7, T+8, T+9, T+10, T+11, T+12, T+16
e(f"v_lshrrev_b32 v{vT0}, 6, v0")
e(f"v_and_b32 v{vN}, 15, v0")
e(f"v_readfirstlane_b32 s{S_WAVE}, v{vT0}")
e(f"v_bfe_u32 v{vG}, v0, 4, 2")
e(f"v_and_b32 v{vL}, 63, v0")
def nib(tab): return sum(v << (4 * i) for i, v in enumerate(tab))
e(f"s_mov_b32 s{S_T}, 0x{nib(YT) & 0xffffffff:08x}"); e(f"s_mov_b32 s{S_T+1}, 0x{nib(YT) >> 32:08x}")
e(f"s_mov_b32 s{S_T+2}, 0x{nib(ZT) & 0xffffffff:08x}"); e(f"s_mov_b32 s{S_T+3}, 0x{nib(ZT) >> 32:08x}")
e(f"s_lshl_b32 s3, s2, 2"); e(f"s_add_u32 s3, s3, s{S_WAVE}")
e(f"s_mul_i32 s19, s3, 416")
e(f"v_lshlrev_b32 v{vOX}, 2, v{vN}")
e(f"v_lshrrev_b64 v[{vT0}:{vT0+1}], v{vOX}, s[{S_T}:{S_T+1}]")
e(f"v_and_b32 v{vOY}, 15, v{vT0}")
e(f"v_lshrrev_b64 v[{vT0}:{vT0+1}], v{vOX}, s[{S_T+2}:{S_T+3}]")
e(f"v_and_b32 v{vOZ}, 15, v{vT0}")
e(f"v_add_u32 v{vOX}, s19, v{vOX}")
e(f"v_lshl_add_u32 v{vOY}, v{vOY}, 2, s19")
e(f"v_lshl_add_u32 v{vOZ}, v{vOZ}, 2, s19")
e(f"v_lshlrev_b32 v{GOFF}, 4, v{vG}")
e(f"s_lshl_b32 s{S_T}, s{S_WAVE}, 13")
e(f"v_lshrrev_b32 v{vT0}, 1, v{vN}")
e(f"v_xor_b32 v{vT0}, v{vT0}, v{vG}")
e(f"v_lshlrev_b32 v{vT0}, 5, v{vT0}")
e(f"v_and_b32 v{vT1}, 1, v0")
e(f"v_lshl_add_u32 v{vT0}, v{vT1}, 4, v{vT0}")
e(f"v_lshl_add_u32 v{vT0}, v{vG}, 8, v{vT0}")
e(f"v_add_u32 v{vW0}, s{S_T}, v{vT0}")
e(f"v_xor_b32 v{vW1}, 0x80, v{vW0}")
e(f"v_lshl_add_u32 v{vWN0}, v{vN}, 8, v{GOFF}")
e(f"v_add_u32 v{vWN0}, s{S_T}, v{vWN0}")
e(f"v_add_u32 v{vWN1}, 0x1000, v{vWN0}")
e(f"s_mov_b32 m0, s{S_T}")
e("s_waitcnt lgkmcnt(0)")
stamp()
vm = []
def vmem(s, tag): e(s); vm.append(tag)
def vwait(tag):
    last = max(i for i, t in enumerate(vm) if t == tag)
    e(f"s_waitcnt vmcnt({len(vm) - 1 - last})")
def idx_load(el, k):
    off = [vOX, vOY, vOZ][k]
    vmem(f"global_load_dword v{IDX + 3*el + k}, v{off}, s[{S_IDX}:{S_IDX+1}] offset:{104*el + (64 if k else 0)}", f"idx{el}")
for k in range(3): idx_load(0, k)
PF = int(opts.get("pf", 0))
if PF:
    e("s_getpc_b64 s[32:33]")
    e(f"v_lshlrev_b32 v{vT2}, 7, v0")
    for k in range(PF):
        vmem(f"global_load_dword v{250+k}, v{vT2}, s[32:33]", "pf")
        if k + 1 < PF: e(f"v_add_u32 v{vT2}, 0x8000, v{vT2}")
for half in range(2):
    for q in range(4):
        vmem(f"global_load_lds_dwordx4 v{vW1 if q & 2 else vW0}, s[{S_W}:{S_W+1}] offset:{1024*q}", "wdma")
    if half == 0:
        e(f"s_add_u32 s{S_T+1}, s{S_T}, 0x1000"); e(f"v_add_u32 v{vW0}, 0x1000, v{vW0}"); e(f"s_mov_b32 m0, s{S_T+1}"); e(f"v_add_u32 v{vW1}, 0x1000, v{vW1}")
WN = F[0]; HB = ACC; WHA = RR
for ks in range(4): vmem(f"global_load_dwordx4 {rng(HB+4*ks,4)}, v{GOFF}, s[{S_H}:{S_H+1}] offset:{64*ks}", "wn")
for uu in range(2):
    for ks in range(4): vmem(f"global_load_dwordx4 {rng(WN+16*uu+4*ks,4)}, v{vWN1 if uu else vWN0}, s[{S_W}:{S_W+1}] offset:{64*ks}", "wn")
e(f"v_lshlrev_b32 v{vL}, 2, v{vL}")
vmem(f"global_load_dword v{TMP}, v{vL}, s[{S_P}:{S_P+1}]", "small")
e(f"v_lshrrev_b32 v{vT0}, 2, v{vN}"); e(f"v_lshlrev_b32 v{vT0}, 5, v{vT0}")
e(f"v_and_b32 v{vT1}, 3, v{vN}"); e(f"v_lshl_add_u32 v{vT0}, v{vT1}, 1, v{vT0}")
e(f"v_lshlrev_b32 v{vT1}, 3, v{vG}"); e(f"v_add_u32 v{vT0}, v{vT0}, v{vT1}")
for q in range(2): vmem(f"global_load_ushort v{H+q}, v{vT0}, s[{S_H}:{S_H+1}] offset:{128*q}", "small")
for t in range(8): vmem(f"global_load_dwordx2 {rng(BIAS+16+2*t,2)}, v{vT1}, s[{S_B}:{S_B+1}] offset:{32*t}", "small")
for el in range(1, 4):
    for k in range(3): idx_load(el, k)
vwait("idx0"); stamp()
for k in range(3): e(f"v_lshl_add_u32 v{IDX+k}, v{IDX+k}, 8, v{GOFF}")
for k, V in ((0, VA), (1, VB), (2, VC)):
    for q in range(4): vmem(f"global_load_dwordx4 {rng(V+16+4*q,4)}, v{IDX+k}, s[{S_TAB}:{S_TAB+1}] offset:{64*q}", f"view{k}")
e(f"v_mov_b32 v{NEGINF}, 0xff800000")
for r in range(4): e(f"v_mov_b32 v{MASKC+r}, 0")
e(f"s_mov_b32 s{S_MA}, 0x{inval & 0xffffffff:08x}"); e(f"s_mov_b32 s{S_MA+1}, 0x{inval >> 32:08x}")
e(f"v_cndmask_b32 v{MASKC}, v{MASKC}, v{NEGINF}, s[{S_MA}:{S_MA+1}]")
e(f"s_mov_b32 s{S_MA}, 0xff"); e(f"s_mov_b32 s{S_MA+1}, 0"); e(f"s_mov_b32 s{S_MB}, 0xff00"); e(f"s_mov_b32 s{S_MB+1}, 0")
e(f"s_mov_b32 s{S_OM}, 0x00010001"); e(f"s_mov_b32 s{S_OM+1}, 0x00010001")
e(f"s_lshl_b32 s3, s3, 3"); e(f"v_lshl_add_u32 v{OOFF}, v{vG}, 1, s3")
e(f"v_lshrrev_b32 v{vT0}, 2, v{vN}")
e(f"v_and_b32 v{vT1}, 1, v{vG}"); e(f"v_lshl_or_b32 v{vT1}, v{vT1}, 2, v{vT0}")
e(f"v_lshl_add_u32 v{vT0}, v{vG}, 3, v{vT0}"); e(f"v_lshlrev_b32 v{vT0}, 8, v{vT0}")
e(f"v_lshl_add_u32 v{vT0}, v{vT1}, 5, v{vT0}")
e(f"v_and_b32 v{vT1}, 3, v{vN}"); e(f"v_lshl_add_u32 v{vTR}, v{vT1}, 3, v{vT0}")
for t in range(1, 8): e(f"v_xor_b32 v{vTR+t}, {t << 5}, v{vTR}")
vwait("wn"); stamp()
for uu in range(2):
    for ks in range(4):
        c = "0" if ks == 0 else rng(WHA+4*uu, 4)
        e(f"v_mfma_f32_16x16x32_bf16 {rng(WHA+4*uu,4)}, {rng(HB+4*ks,4)}, {rng(WN+16*uu+4*ks,4)}, {c}")
vwait("small")
e(f"v_add_u32 v{vL}, {LN9}, v{vL}")
e(f"ds_write_b32 v{vL}, v{TMP} offset:256")
e(f"ds_write_b32 v{vL}, v{MASKC+1} offset:768")
e(f"s_mov_b32 s{S_T+2}, {f32(CSC)}")
for q in range(2):
    e(f"v_lshlrev_b32 v{H+q}, 16, v{H+q}"); e(f"v_mul_f32 v{H+q}, s{S_T+2}, v{H+q}")
e(f"s_lshl_b32 s{S_T+1}, s{S_WAVE}, 6"); e(f"s_add_u32 s{S_T+1}, s{S_T+1}, {LN9}")
e(f"v_lshl_add_u32 v{vT2}, v{vN}, 1, s{S_T+1}")
for uu in range(2):
    a = WHA + 4 * uu
    e(f"v_mul_f32 v{a}, s{S_T+2}, v{a}")
    e(f"v_cvt_pk_bf16_f32 v{a+1}, v{a}, v{a}")
    e(f"v_lshlrev_b32 v{a+2}, 16, v{a+1}")
    e(f"v_sub_f32 v{a+2}, v{a}, v{a+2}")
    e(f"v_cvt_pk_bf16_f32 v{a+2}, v{a+2}, v{a+2}")
    e(f"ds_write_b16 v{vT2}, v{a+1} offset:{32*uu}")
    e(f"ds_write_b16 v{vT2}, v{a+2} offset:{512+32*uu}")
if MRED:
    e(f"v_lshrrev_b32 v{vT0}, 3, v{vN}"); e(f"v_lshlrev_b32 v{vT0}, 6, v{vT0}"); e(f"v_and_b32 v{vT1}, 7, v{vN}")
    e(f"v_lshl_add_u32 v{vT0}, v{vT1}, 1, v{vT0}"); e(f"v_add_u32 v{vT0}, v{vT0}, v{GOFF}")
    raise SystemExit("MRED prologue not finished")
for q in range(16):
    s = BIAS + 16 + q
    e(f"v_lshlrev_b32 v{BIAS+2*q}, 16, v{s}"); e(f"v_and_b32 v{BIAS+2*q+1}, 0xffff0000, v{s}")
vNA = T + 24
for var in range(4):
    e(f"v_subrev_u32 v{vNA+var}, {4*var}, v{vN}"); e(f"v_min_u32 v{vNA+var}, 3, v{vNA+var}")
    e(f"v_lshl_add_u32 v{vNA+var}, v{vNA+var}, 8, v{GOFF}")
vwait("idx3")
for k in range(3, 12): e(f"v_lshl_add_u32 v{IDX+k}, v{IDX+k}, 8, v{GOFF}")
e("s_waitcnt lgkmcnt(0)")
stamp(); e("s_barrier"); stamp()
for t in range(8):
    for ks in range(4):
        for u in range(2):
            e(f"ds_read_b64_tr_b16 {rng(AW+(t*4+ks)*4+2*u,2,'a')}, v{vTR+t} offset:{8192*ks+1024*u}")
for var in range(4):
    for ks in range(4):
        e(f"ds_read_b128 {rng(AN9+16*var+4*ks,4,'a')}, v{vNA+var} offset:{LN9+64*ks}")
ops = []
TT = [0.0, 0.0]
def at(t, inc): TT[0] = t; TT[1] = inc
def valu(text, R, W, kind="valu", **kw):
    o = Op(text, kind, R, W, prio=TT[0], **kw); TT[0] += TT[1]; ops.append(o); return o
PER = 36 + MRED
def view_load(V, ireg):
    ls = []
    for q in range(4):
        o = Op(f"global_load_dwordx4 {rng(V+16+4*q,4)}, v{ireg}, s[{S_TAB}:{S_TAB+1}] offset:{64*q}", "vmem", R=[f"v{ireg}"], W=vr(V+16+4*q,4), prio=-1e9)
        ops.append(o); ls.append(o)
    return ls
def view_unpack(V, ls, lat, extra_after=None):
    w = Op("wait", "wait", R=vr(V+16,16), W=vr(V+16,16), covers=ls, lat=lat, prio=TT[0]); w.extra_after = extra_after; ops.append(w)
    for q in range(16):
        s = V + 16 + q
        valu(f"v_lshlrev_b32 v{V+2*q}, 16, v{s}", [f"v{s}"], [f"v{V+2*q}"])
        valu(f"v_and_b32 v{V+2*q+1}, 0xffff0000, v{s}", [f"v{s}"], [f"v{V+2*q+1}"])
def form(fb, muls, gs):
    at((gs - 1) * PER + 0.2, (PER - 2.5) / (16 + 32 * len(muls)))
    for i in range(32):
        d = TMP + i % 8
        for j, (P, ctrl, Q, mk) in enumerate(muls):
            if ctrl: valu(f"v_mul_f32_dpp v{d}, v{P+i}, v{Q+i} {ctrl} {mk}", [f"v{P+i}", f"v{Q+i}"] + ([f"v{d}"] if j else []), [f"v{d}"], "dpp")
            else: valu(f"v_mul_f32 v{d}, v{P+i}, v{Q+i}", [f"v{P+i}", f"v{Q+i}"], [f"v{d}"])
        if i % 2: valu(f"v_cvt_pk_bf16_f32 v{fb+i//2}, v{d-1}, v{d}", [f"v{d-1}", f"v{d}"], [f"v{fb+i//2}"])
tile_ctr = [0]
def step_mm(fb, r, d9, var, cinit, gs):
    for t in range(8):
        at(gs * PER + 4 * t + 6.1, 1.0)
        acc = ACC + 4 * (tile_ctr[0] % 4); tile_ctr[0] += 1
        for ks in range(4):
            c = BIAS + 4 * t if ks == 0 else acc
            a = AW + (t * 4 + ks) * 4
            ops.append(mfma(f"v_mfma_f32_16x16x32_bf16 {rng(acc,4)}, {rng(a,4,'a')}, {rng(fb+4*ks,4)}, {rng(c,4)}", vr(acc,4), vr(a,4,'a'), vr(fb+4*ks,4), vr(c,4)))
        for k in range(4):
            i = 4 * t + k
            if i == 0: valu(f"v_mul_f32_dpp v{r}, v{H+i//16}, |v{acc+k}| row_newbcast:{i%16} {FULL}", [f"v{H+i//16}", f"v{acc+k}"], [f"v{r}"], "dpp")
            else: valu(f"v_fmac_f32_dpp v{r}, v{H+i//16}, |v{acc+k}| row_newbcast:{i%16} {FULL}", [f"v{H+i//16}", f"v{acc+k}", f"v{r}"], [f"v{r}"], "dpp")
    for ks in range(4):
        a = AN9 + 16 * var + 4 * ks
        if ks == 0 and cinit is not None:
            ct, cr = ("0", []) if cinit == 0 else (rng(cinit, 4), vr(cinit, 4))
        else: ct, cr = rng(d9, 4), vr(d9, 4)
        ops.append(mfma(f"v_mfma_f32_16x16x32_bf16 {rng(d9,4)}, {rng(a,4,'a')}, {rng(fb+4*ks,4)}, {ct}", vr(d9,4), vr(a,4,'a'), vr(fb+4*ks,4), cr))
def swap(w, a, b): valu(f"v_permlane{w}_swap_b32 v{a}, v{b}", [f"v{a}", f"v{b}"], [f"v{a}", f"v{b}"], "perm")
def add(d, a, b): valu(f"v_add_f32 v{d}, v{a}, v{b}", [f"v{a}", f"v{b}"], [f"v{d}"])
def tred(r):
    swap(32, r, r+2); add(r, r, r+2); swap(32, r+1, r+3); add(r+1, r+1, r+3); swap(16, r, r+1); add(r, r, r+1)
def softmax(el, ES):
    E = [x[0] for x in ES]
    valu(f"v_max3_f32 v{MX}, v{E[0]}, v{E[1]}, v{E[2]}", [f"v{x}" for x in E[:3]], [f"v{MX}"])
    valu(f"v_max3_f32 v{MX}, v{MX}, v{E[3]}, v{E[4]}", [f"v{MX}", f"v{E[3]}", f"v{E[4]}"], [f"v{MX}"])
    valu(f"v_max_f32 v{MX}, v{MX}, v{E[5]}", [f"v{MX}", f"v{E[5]}"], [f"v{MX}"])
    for c in ("row_ror:8 " + FULL, "row_ror:4 " + FULL, "row_ror:2 " + FULL, "row_ror:1 " + FULL, "row_bcast:15 row_mask:0xa bank_mask:0xf", "row_bcast:31 row_mask:0xc bank_mask:0xf"):
        valu(f"v_max_f32_dpp v{MX}, v{MX}, v{MX} {c}", [f"v{MX}"], [f"v{MX}"], "dpp")
    valu(f"v_readlane_b32 s{S_MAX}, v{MX}, 63", [f"v{MX}"], [f"s{S_MAX}"], "readlane")
    for i, (x, s) in enumerate(ES):
        valu(f"v_subrev_f32 v{x}, s{S_MAX}, v{x}", [f"s{S_MAX}", f"v{x}"], [f"v{x}"])
        valu(f"v_exp_f32 v{x}, v{x}", [f"v{x}"], [f"v{x}"], "trans", cost=2)
        if i == 0: valu(f"v_mul_f32 v{NUM+el}, v{x}, v{s}", [f"v{x}", f"v{s}"], [f"v{NUM+el}"])
        else: valu(f"v_fmac_f32 v{NUM+el}, v{x}, v{s}", [f"v{x}", f"v{s}", f"v{NUM+el}"], [f"v{NUM+el}"])
        if i == 1: add(DEN+el, ES[0][0], x)
        elif i > 1: add(DEN+el, DEN+el, x)
lg = Op("s_waitcnt lgkmcnt(0)", "salu", R=[], W=vr(0, 256, 'a'), prio=-1)
at(-100, 0.01)
view_unpack(VA, [], 0, extra_after=8); view_unpack(VB, [], 0, extra_after=4)
ops.append(lg)
pendZ = ([], 0, 0)
gs = 0; grp = 0; rset = 0
tiles = {}
for el in range(4):
    X, Z = (VA, VC) if el % 2 == 0 else (VC, VA); Y = VB
    tiles[el] = []
    for s in range(20):
        if s == 8: at((gs - 5) * PER, 3.5 * PER / 32); view_unpack(Z, pendZ[0], pendZ[1], extra_after=pendZ[2])
        if s < 8: mu = [(Y, f"row_newbcast:{POS[s]}", X, FULL)]
        elif s < 11: mu = [(Y, K10[s-8][0], Z, FULL)]
        elif s < 13: mu = [(Y, f"row_newbcast:{POS[s-3]}", X, FULL)]
        else: mu = [(X, f"row_ror:{s-12}", X, FULL)]
        fb = F[gs % 2]
        form(fb, mu, gs)
        if el < 3:
            if s == 10: pendX = view_load(Z, IDX + 3 * (el + 1))
            if s == 12: pendY = view_load(Y, IDX + 3 * (el + 1) + 1)
            if s == 19 and el % 2 == 1: pendZ = (view_load(X, IDX + 3 * (el + 1) + 2), LAT_NEAR, None)
        var = s % 4
        if var == 0: d9 = D9 + 4 * (grp % NRING); grp += 1; rb = RR + 4 * (rset % 2); rset += 1
        step_mm(fb, rb + var, d9, var, (MASKC if s == 8 else 0) if var == 0 else None, gs)
        gs += 1
        if var == 3:
            at(gs * PER + 4, 3.0); tred(rb); add(d9, d9, d9 + 2); add(d9, d9, rb); tiles[el].append((d9, d9 + 1))
    if el < 3: at((gs - 6) * PER, 2.5 * PER / 32); view_unpack(Z, pendX, LAT_FAR)
    if el % 2 == 0:
        fb = F[gs % 2]
        form(fb, [(X, "row_ror:8", X, "row_mask:0xf bank_mask:0x3"), (Z, "row_ror:8", Z, "row_mask:0xf bank_mask:0xc")], gs)
        pendZ = (view_load(X, IDX + 3 * (el + 1) + 2), LAT_NEAR, None)
        rb = RR + 4 * (rset % 2); rset += 1
        step_mm(fb, rb, D9M, 0, 0, gs); gs += 1
        at(gs * PER + 4, 2.0)
        swap(32, rb, rb+2); add(rb, rb, rb+2); swap(16, rb, rb+1); add(rb, rb, rb+1)
        add(D9M, D9M, D9M + 2); add(D9M, D9M, rb)
        valu(f"v_cndmask_b32 v{D9M+2}, v{NEGINF}, v{D9M}, s[{S_MA}:{S_MA+1}]", [f"v{NEGINF}", f"v{D9M}"], [f"v{D9M+2}"])
        valu(f"v_cndmask_b32 v{D9M+3}, v{NEGINF}, v{D9M}, s[{S_MB}:{S_MB+1}]", [f"v{NEGINF}", f"v{D9M}"], [f"v{D9M+3}"])
    if el < 3: at((gs - 3.5 - (1 - el % 2)) * PER, 2.4 * PER / 32); view_unpack(Y, pendY, LAT_FAR)
    at(gs * PER + 28, 2.0)
    softmax(el, tiles[el] + [(D9M + 2 + el % 2, D9M + 1)])
tred(NUM); tred(DEN)
for c in (8, 4, 2, 1):
    for r in (NUM, DEN): valu(f"v_add_f32_dpp v{r}, v{r}, v{r} row_ror:{c} {FULL}", [f"v{r}"], [f"v{r}"], "dpp")
valu(f"v_rcp_f32 v{DEN}, v{DEN}", [f"v{DEN}"], [f"v{DEN}"], "trans", cost=2)
valu(f"v_mul_f32 v{NUM}, v{NUM}, v{DEN}", [f"v{NUM}", f"v{DEN}"], [f"v{NUM}"])
valu(f"v_cvt_pk_bf16_f32 v{NUM}, v{NUM}, v{NUM}", [f"v{NUM}"], [f"v{NUM}"])
out, st = schedule(ops)
bad = verify(out)
print(st, "hazards", bad, "est cycles", est_cycles(out), file=sys.stderr)
assert bad == 0
nm = 0
for s in finalize(out):
    if s.startswith("v_mfma"):
        if nm % (PER * 8) == 0: stamp()
        nm += 1
    e(s)
stamp()
if DBG == 2:
    e("s_load_dwordx2 s[36:37], s[0:1], 72"); e("s_waitcnt lgkmcnt(0)")
    e("s_cmp_lg_u32 s3, 0x1000"); e("s_cbranch_scc1 L_nodbg")
    e(f"v_mov_b32 v1, 0")
    sel = list(range(1, 9)) + list(range(NST[0] - 8, NST[0]))
    for j, k in enumerate(sel):
        e(f"s_sub_u32 s38, s{40+2*k}, s40"); e(f"v_mov_b32 v2, s38"); e(f"global_store_dword v1, v2, s[36:37] offset:{4*j}")
    L.append("L_nodbg:")
if DBG == 1:
    e("s_load_dwordx2 s[36:37], s[0:1], 80"); e("s_waitcnt lgkmcnt(0)")
    e("s_lshl_b32 s3, s3, 4")
    e(f"v_mov_b32 v1, s3")
    for k in range(NST[0]):
        e(f"v_mov_b32 v2, s{40+2*k}"); e(f"global_store_dword v1, v2, s[36:37] offset:{4*k}")
    e(f"v_mov_b32 v2, {NST[0]}"); e(f"global_store_dword v1, v2, s[36:37] offset:124")
e(f"s_mov_b64 exec, s[{S_OM}:{S_OM+1}]")
e(f"global_store_short v{OOFF}, v{NUM}, s[{S_OUT}:{S_OUT+1}]")
L.append("L_done:")
e("s_endpgm")
L += ['.section .rodata,"a"', ".p2align 6", ".amdhsa_kernel %s_kernel" % NAME,
      "  .amdhsa_next_free_vgpr 512", "  .amdhsa_next_free_sgpr 100", "  .amdhsa_accum_offset 256",
      "  .amdhsa_group_segment_fixed_size 0", "  .amdhsa_kernarg_size 88", "  .amdhsa_user_sgpr_count 2",
      "  .amdhsa_user_sgpr_kernarg_segment_ptr 1", "  .amdhsa_system_sgpr_workgroup_id_x 1",
      "  .amdhsa_float_denorm_mode_32 3",
      ".end_amdhsa_kernel"]
print("\n".join(L))
```

```python
import re, heapq
def vr(b, n=1, p='v'):
    return [f"{p}{b+i}" for i in range(n)]
def rng(b, n, p='v'):
    return f"{p}{b}" if n == 1 else f"{p}[{b}:{b+n-1}]"
class Op:
    def __init__(s, text, kind, R=(), W=(), C=(), covers=None, lat=0, prio=None, cost=1, passes=4):
        s.text = text; s.kind = kind; s.R = list(R); s.W = list(W); s.C = list(C)
        s.covers = covers; s.lat = lat; s.prio = prio; s.cost = cost; s.passes = passes
        s.preds = {}; s.succs = {}; s.pos = None; s.gap = None; s.dl = 1e18; s.nb = -1e18
VALUK = ("valu", "dpp", "trans", "perm", "readlane")
MF_RAW = {2: 5, 4: 8, 8: 12, 16: 20}; MF_COV = {2: 4, 4: 6, 8: 10, 16: 18}; MF_WAR = {2: 1, 4: 3, 8: 7, 16: 15}
def hazard(p, c, typ, reg):
    if typ == "RAW":
        if p.kind in VALUK:
            if reg[0] == 's' or reg == 'vcc':
                if c.kind in VALUK: return 2
                if c.kind in ("vmem",): return 5
                return 1
            if c.kind == "mfma": return 2
            if c.kind in ("dpp", "perm"): return 2
            if c.kind == "readlane": return 1
            if p.kind == "trans" and c.kind in VALUK: return 1
            return 0
        if p.kind == "mfma":
            if c.kind == "mfma":
                if reg in c.C and reg not in c.AB:
                    if c.C == p.W and c.passes == p.passes: return 2 if p.passes == 2 else 0
                    return MF_COV[p.passes]
                return MF_RAW[p.passes]
            return MF_RAW[p.passes]
        return 0
    if typ == "WAW":
        if p.kind == "mfma":
            if c.kind == "mfma":
                return 0 if (c.W == p.W and c.passes == p.passes) else MF_COV[p.passes]
            return MF_RAW[p.passes]
        return 0
    if typ == "WAR":
        if p.kind == "mfma" and reg in p.C and c.kind in VALUK: return MF_WAR[p.passes]
        if p.kind == "vmem" and getattr(p, "wide_store", False) and c.kind in VALUK: return 2
        return 0
def mfma(text, D, A, B, C, passes=4):
    o = Op(text, "mfma", R=list(A) + list(B) + list(C), W=D, C=C, passes=passes); o.AB = set(A) | set(B); return o
def build_deps(ops):
    lw = {}; rd = {}
    def edge(p, c, h):
        if p is c: return
        if c.preds.get(p, -1) < h: c.preds[p] = h; p.succs[c] = h
    for o in ops:
        for r in o.R:
            if r in lw: edge(lw[r], o, hazard(lw[r], o, "RAW", r))
        for r in o.W:
            if r in lw: edge(lw[r], o, hazard(lw[r], o, "WAW", r))
            for q in rd.get(r, ()): edge(q, o, hazard(q, o, "WAR", r))
        for r in o.R: rd.setdefault(r, []).append(o)
        for r in o.W: lw[r] = o; rd[r] = []
        if o.covers:
            for l in o.covers: edge(l, o, max(o.lat, 0))
def schedule(ops, min_fill=2, max_fill=4, look=12):
    build_deps(ops)
    M = [o for o in ops if o.kind == "mfma"]; F = [o for o in ops if o.kind != "mfma"]
    for i, o in enumerate(ops): o.seq = i
    for g, o in enumerate(M): o.g = g
    n = len(M)
    for o in ops:
        if o.kind == "mfma": o.dl = o.g
        else:
            assert o.prio is not None, o.text
            o.dl = o.prio
    out = []; cur = [0]; curg = [-1]
    remaining = {o: len(o.preds) for o in ops}
    ready = [(o.dl, o.seq, o) for o in F if remaining[o] == 0]; heapq.heapify(ready)
    tot = sum(o.cost for o in F); done = [0]; nops = [0]
    def ok_at(o):
        return max([p.pos + 1 + h for p, h in o.preds.items()] + [0])
    def emit(o):
        o.pos = cur[0]; out.append(o); cur[0] += 1
        if o.kind != "mfma": done[0] += o.cost
        for s in o.succs:
            remaining[s] -= 1
            if remaining[s] == 0 and s.kind != "mfma": heapq.heappush(ready, (s.dl, s.seq, s))
    def nop(k):
        while k > 0:
            q = min(k, 16); x = Op(f"s_nop {q-1}", "nop"); x.pos = cur[0]; out.append(x); cur[0] += q; k -= q; nops[0] += q
    def pick(maxdl=None):
        tmp = []; res = None
        while ready:
            it = heapq.heappop(ready)
            if maxdl is not None and it[0] > maxdl: tmp.append(it); break
            if ok_at(it[2]) <= cur[0] and it[2].nb <= curg[0]: res = it[2]; break
            tmp.append(it)
        for it in tmp: heapq.heappush(ready, it)
        return res
    def force(o):
        for p in sorted(o.preds, key=lambda x: x.seq):
            if p.pos is None:
                assert p.kind != "mfma", ("mfma order violated", p.text, o.text)
                force(p); settle(p)
                for i, it in enumerate(ready):
                    if it[2] is p: ready.pop(i); heapq.heapify(ready); break
                if p.pos is None: emit(p)
    def settle(o):
        while o.pos is None and ok_at(o) > cur[0]:
            need = ok_at(o) - cur[0]
            x = pick()
            if x is not None: emit(x)
            elif o.kind == "wait": break
            else: nop(need)
    starved = 0
    for g, m in enumerate(M):
        force(m); settle(m); emit(m); curg[0] = g
        k = 0
        while True:
            x = pick(maxdl=g + 1) if k >= min_fill else pick(maxdl=g + look)
            if x is None: break
            emit(x); k += x.cost
            if k >= max_fill: break
        if k < min_fill: starved += min_fill - k
    curg[0] = 1e18
    while ready:
        x = pick()
        if x is None:
            it = min(ready, key=lambda t: ok_at(t[2])); ready.remove(it); heapq.heapify(ready)
            x = it[2]
            if x.kind != "wait": nop(ok_at(x) - cur[0])
        emit(x)
    assert all(o.pos is not None for o in ops)
    stats = dict(n_mfma=n, n_fill=len(F), fill_cost=tot, nops=nops[0], starved=starved)
    return out, stats
def finalize(out, vm_before=0):
    lines = []; vm = []
    for o in out:
        if o.kind == "vmem": vm.append(o)
        if o.kind == "wait":
            last = max((vm.index(l) for l in o.covers if l in vm), default=-1)
            ncnt = len(vm) - 1 - last
            if getattr(o, "extra_after", None) is not None and last < 0: ncnt += o.extra_after
            assert ncnt <= 63
            lines.append(f"s_waitcnt vmcnt({ncnt})")
        else: lines.append(o.text)
    return lines
def verify(out):
    lw = {}; rd = {}; bad = 0; pos = 0
    for o in out:
        if o.kind == "nop": pos += int(o.text.split()[1]) + 1; continue
        o.vp = pos
        def chk(p, typ, r):
            nonlocal bad
            h = hazard(p, o, typ, r)
            if o.vp - p.vp - 1 < h: bad += 1; print("HAZARD", typ, r, "|", p.text, "->", o.text, o.vp - p.vp - 1, h)
            if p.seq > o.seq: bad += 1; print("ORDER", typ, r, p.text, "->", o.text)
        for r in o.R:
            if r in lw: chk(lw[r], "RAW", r)
        for r in o.W:
            if r in lw and lw[r] is not o: chk(lw[r], "WAW", r)
            for q in rd.get(r, ()):
                if q is not o: chk(q, "WAR", r)
        for r in o.R: rd.setdefault(r, []).append(o)
        for r in o.W: lw[r] = o; rd[r] = []
        pos += 1
    return bad
def est_cycles(out):
    t = 0; pipe = 0
    for o in out:
        if o.kind == "mfma":
            t = max(t, pipe); pipe = t + 4 * o.passes; t += 8 if o.passes > 2 else 4
        elif o.kind == "nop": t += 4 * (int(o.text.split()[1]) + 1)
        else: t += 4 * o.cost
    return t
```

```python
import sys, math, struct
from sched import *
NAME = "standalone__factorization_afm__recsys"
opts = dict(a.split("=") for a in sys.argv[1:] if "=" in a)
MRED = int(opts.get("m", 0))
LAT_FAR = int(opts.get("latfar", 560)); LAT_NEAR = int(opts.get("latnear", 300))
DBG = int(opts.get("dbg", 0)); PF = int(opts.get("pf", 1))
YT = [6,0,4,4,2,3,6,9,3,7,0,1,8,5,3,4]
ZT = [5,2,7,7,9,7,1,0,1,5,4,8,2,9,6,8]
K10 = [("", lambda n: n), ("quad_perm:[1,0,3,2]", lambda n: n ^ 1), ("quad_perm:[2,3,0,1]", lambda n: n ^ 2)]
seen = set(); inval = 0
for k, (_, pi) in enumerate(K10):
    for n in range(16):
        a, b = ZT[n], YT[pi(n)]; key = (min(a, b), max(a, b))
        if a == b or key in seen: inval |= 1 << (16 * k + n)
        else: seen.add(key)
assert len(seen) == 45
POS = [YT.index(c) for c in range(10)]
FULL = "row_mask:0xf bank_mask:0xf"
BIAS = 0; VX = 32; VY = 64; VZ = 96; F = [128, 144]; TMP = 160; ACC = 168; RR = 184; D9 = 192; D9M = 212
MASKC = 216; RF = 220
H = 232; NEGINF = 234; MX = 235; NUM = 236; DEN = 237; TA = 238; TB = 239; TC = 240; E0 = 241; S0 = 242
IDX = 243; OX = 246; OY = 247; OZ = 248; GOFF = 249; OOFF = 250; VCS = 251; PFR = 252
AW = 0; AN9 = 128; AH = 192
S_IDX = 4; S_TAB = 6; S_W = 8; S_B = 10; S_H = 12; S_P = 14; S_OUT = 16; S_WAVE = 18; S_MA = 20; S_MAX = 24; S_T = 26; S_OM = 30; S_IT = 22; S_INC = 23
LN9 = 32768
CSC = 0.5 * math.log2(math.e)
def f32(x): return "0x%08x" % struct.unpack("<I", struct.pack("<f", x))[0]
L = []
def e(s): L.append("    " + s)
hdr = open("cdna_kernels/%s.s.ref" % NAME).read().split("\n")
for line in hdr:
    if line.startswith("; @launch"):
        L.append("; @launch grid=(256,1,1) block=(256,1,1) lds=34816"); break
    L.append(line)
L += ['.amdgcn_target "amdgcn-amd-amdhsa--gfx950"', ".text", ".globl %s_kernel" % NAME, ".p2align 8",
      ".type %s_kernel,@function" % NAME, "%s_kernel:" % NAME]
NST = [0]
def stamp():
    if DBG: e(f"s_memrealtime s[{40+2*NST[0]}:{41+2*NST[0]}]"); NST[0] += 1
PER = 36 + MRED; NSTEP = 21; PIT = PER * NSTEP
ops = []
TT = [0.0, 0.0]; IT = [0]
def at(t, inc): TT[0] = t; TT[1] = inc
def push(o): o.it = IT[0]; ops.append(o); return o
def valu(text, R, W, kind="valu", **kw):
    o = Op(text, kind, R, W, prio=round(TT[0] + 1e-4, 3), **kw); TT[0] += TT[1]; return push(o)
def view_load(raw, ireg):
    return [valu(f"global_load_dwordx4 {rng(raw+4*q,4)}, v{ireg}, s[{S_TAB}:{S_TAB+1}] offset:{64*q}", [f"v{ireg}"], vr(raw+4*q,4), "vmem") for q in range(4)]
def wait_for(regs, ls, lat):
    return push(Op("wait", "wait", R=regs, W=regs, covers=ls, lat=lat, prio=round(TT[0] + 1e-4, 3)))
def unpack(V, raw):
    for q in range(16):
        s = raw + q
        valu(f"v_lshlrev_b32 v{V+2*q}, 16, v{s}", [f"v{s}"], [f"v{V+2*q}"])
        valu(f"v_and_b32 v{V+2*q+1}, 0xffff0000, v{s}", [f"v{s}"], [f"v{V+2*q+1}"])
def form(fb, P, ctrl, Q, gs):
    at((gs - 1) * PER + 0.2, (PER - 2.5) / 48)
    for i in range(32):
        d = TMP + i % 8
        if ctrl: valu(f"v_mul_f32_dpp v{d}, v{P+i}, v{Q+i} {ctrl} {FULL}", [f"v{P+i}", f"v{Q+i}"], [f"v{d}"], "dpp")
        else: valu(f"v_mul_f32 v{d}, v{P+i}, v{Q+i}", [f"v{P+i}", f"v{Q+i}"], [f"v{d}"])
        if i % 2: valu(f"v_cvt_pk_bf16_f32 v{fb+i//2}, v{d-1}, v{d}", [f"v{d-1}", f"v{d}"], [f"v{fb+i//2}"])
def mm(D, A, B, ct, cr):
    push(mfma(f"v_mfma_f32_16x16x32_bf16 {rng(D,4)}, {rng(A,4,'a')}, {rng(B,4)}, {ct}", vr(D,4), vr(A,4,'a'), vr(B,4), cr))
def step_mm(fb, r, d9, var, cinit, gs):
    pos = gs * PER
    def ninth():
        for ks in range(4):
            if ks == 0 and cinit is not None: ct, cr = ("0", []) if cinit == 0 else (rng(cinit, 4), vr(cinit, 4))
            else: ct, cr = rng(d9, 4), vr(d9, 4)
            mm(d9, AN9 + 16 * var + 4 * ks, fb + 4 * ks, ct, cr)
    first = True
    for t in range(8):
        acc = ACC + 4 * (t % 4)
        for ks in range(4):
            c = BIAS + 4 * t if ks == 0 else acc
            mm(acc, AW + (t * 4 + ks) * 4, fb + 4 * ks, rng(c, 4), vr(c, 4))
        pos += 4
        q = t // 2
        if q < MRED:
            at(pos + 2.1, 1.0)
            for c in range(2):
                d = RF + 4 * q + 2 * (t % 2) + c
                valu(f"v_cvt_pk_bf16_f32 v{d}, |v{acc+2*c}|, |v{acc+2*c+1}|", [f"v{acc+2*c}", f"v{acc+2*c+1}"], [f"v{d}"])
        else:
            at(pos + 2.1, 1.0)
            for k in range(4):
                i = 4 * t + k
                if first: valu(f"v_mul_f32_dpp v{r}, v{H+i//16}, |v{acc+k}| row_newbcast:{i%16} {FULL}", [f"v{H+i//16}", f"v{acc+k}"], [f"v{r}"], "dpp"); first = False
                else: valu(f"v_fmac_f32_dpp v{r}, v{H+i//16}, |v{acc+k}| row_newbcast:{i%16} {FULL}", [f"v{H+i//16}", f"v{acc+k}", f"v{r}"], [f"v{r}"], "dpp")
        if MRED and t == 1: ninth(); pos += 4
        if MRED and t % 2 == 1 and t >= 3 and (t - 3) // 2 < MRED:
            qq = (t - 3) // 2
            mm(d9, AH + 16 * qq + 4 * var, RF + 4 * qq, rng(d9, 4), vr(d9, 4)); pos += 1
    if not MRED: ninth()
def swap(w, a, b): valu(f"v_permlane{w}_swap_b32 v{a}, v{b}", [f"v{a}", f"v{b}"], [f"v{a}", f"v{b}"], "perm")
def add(d, a, b): valu(f"v_add_f32 v{d}, v{a}, v{b}", [f"v{a}", f"v{b}"], [f"v{d}"])
def mov(d, a): valu(f"v_mov_b32 v{d}, v{a}", [f"v{a}"], [f"v{d}"])
def tred(r):
    swap(32, r, r+2); add(r, r, r+2); swap(32, r+1, r+3); add(r+1, r+1, r+3); swap(16, r, r+1); add(r, r, r+1)
def softmax(ES, last):
    E = [x[0] for x in ES]
    valu(f"v_max3_f32 v{MX}, v{E[0]}, v{E[1]}, v{E[2]}", [f"v{x}" for x in E[:3]], [f"v{MX}"])
    valu(f"v_max3_f32 v{MX}, v{MX}, v{E[3]}, v{E[4]}", [f"v{MX}", f"v{E[3]}", f"v{E[4]}"], [f"v{MX}"])
    valu(f"v_max_f32 v{MX}, v{MX}, v{E[5]}", [f"v{MX}", f"v{E[5]}"], [f"v{MX}"])
    for c in ("row_ror:8 " + FULL, "row_ror:4 " + FULL, "row_ror:2 " + FULL, "row_ror:1 " + FULL, "row_bcast:15 row_mask:0xa bank_mask:0xf", "row_bcast:31 row_mask:0xc bank_mask:0xf"):
        valu(f"v_max_f32_dpp v{MX}, v{MX}, v{MX} {c}", [f"v{MX}"], [f"v{MX}"], "dpp")
    valu(f"v_mul_f32 v{MX}, v{VCS}, v{MX}", [f"v{MX}", f"v{VCS}"], [f"v{MX}"])
    valu(f"v_readlane_b32 s{S_MAX}, v{MX}, 63", [f"v{MX}"], [f"s{S_MAX}"], "readlane")
    for i, (x, s) in enumerate(ES):
        valu(f"v_fma_f32 v{x}, v{x}, v{VCS}, -s{S_MAX}", [f"s{S_MAX}", f"v{x}", f"v{VCS}"], [f"v{x}"])
        valu(f"v_exp_f32 v{x}, v{x}", [f"v{x}"], [f"v{x}"], "trans", cost=2)
        if i == 0: valu(f"v_mul_f32 v{NUM}, v{x}, v{s}", [f"v{x}", f"v{s}"], [f"v{NUM}"])
        else: valu(f"v_fmac_f32 v{NUM}, v{x}, v{s}", [f"v{x}", f"v{s}", f"v{NUM}"], [f"v{NUM}"])
        if i == 1: add(DEN, ES[0][0], x)
        elif i > 1: add(DEN, DEN, x)
    swap(32, NUM, DEN)
    o1 = len(ops); mov(TC, TB); mov(TB, TA); add(TA, NUM, DEN)
    for o in ops[o1:]: o.rot = True
def salu(text, R, W): return valu(text, R, W, "salu")
STEPS = [("star", c) for c in range(8)] + [("k10", k) for k in range(3)] + [("star", 8), ("star", 9)] + [("ror", t) for t in (1, 2, 3)] + [("ror8", 8)] + [("ror", t) for t in (4, 5, 6, 7)]
def do_form(si, gs):
    kind, a = STEPS[si]
    reg = si if si < 16 else si - 1
    fb = VZ if kind == "ror8" else F[reg % 2]
    if kind == "star": form(fb, VY, f"row_newbcast:{POS[a]}", VX, gs)
    elif kind == "k10": form(fb, VY, K10[a][0], VZ, gs)
    else: form(fb, VX, f"row_ror:{a}", VX, gs)
    return fb
NIT = 4
for it in range(NIT):
    IT[0] = it; base = it * NSTEP
    tiles = []
    at(base * PER + 1, 1.0); lz = view_load(VZ + 16, IDX + 2)
    for o in lz: o.nb = base * PER
    IT[0] = it + 1
    at(base * PER + 8, 2.0)
    salu(f"s_cmp_lt_u32 s{S_IT}, 3", [f"s{S_IT}"], ["scc"]); salu(f"s_cselect_b32 s{S_INC}, 104, 0", ["scc"], [f"s{S_INC}"])
    salu(f"s_add_u32 s{S_IDX}, s{S_IDX}, s{S_INC}", [f"s{S_IDX}", f"s{S_INC}"], [f"s{S_IDX}", "scc"]); salu(f"s_addc_u32 s{S_IDX+1}, s{S_IDX+1}, 0", [f"s{S_IDX+1}", "scc"], [f"s{S_IDX+1}", "scc"])
    li = [valu(f"global_load_dword v{IDX+k}, v{[OX,OY,OZ][k]}, s[{S_IDX}:{S_IDX+1}] offset:{64 if k else 0}", [f"v{[OX,OY,OZ][k]}", f"s{S_IDX}", f"s{S_IDX+1}"], [f"v{IDX+k}"], "vmem") for k in range(3)]
    for o in ops[-7:]: o.nb = base * PER
    IT[0] = it
    grp = 0
    for si in range(NSTEP):
        gs = base + si
        kind, a = STEPS[si]
        if si == 8:
            at((gs - 5) * PER, 3.5 * PER / 32); wait_for(vr(VZ+16,16), lz, LAT_NEAR); unpack(VZ, VZ + 16)
            IT[0] = it + 1
            at((gs - 1) * PER, 2.0); wait_for(vr(IDX,3), li, LAT_NEAR)
            for k in range(3): valu(f"v_lshl_add_u32 v{IDX+k}, v{IDX+k}, 8, v{GOFF}", [f"v{IDX+k}", f"v{GOFF}"], [f"v{IDX+k}"])
            IT[0] = it
        if si > 0 or it == 0: fb = do_form(si, gs)
        else: fb = F[0]
        if si == 10: IT[0] = it + 1; at(-1e9, 0); lx = view_load(VZ + 16, IDX); IT[0] = it
        if si == 12: IT[0] = it + 1; at(-1e9, 0); ly = view_load(VY + 16, IDX + 1); IT[0] = it
        if si == NSTEP - 1:
            IT[0] = it + 1
            at((gs - 4.2) * PER, 2.6 * PER / 32); wait_for(vr(VY+16,16), ly, LAT_FAR); unpack(VY, VY + 16)
            at((gs - 1) * PER + 3, (PER - 2.5) / 36); wait_for(vr(VZ+16,16), lx, LAT_FAR); unpack(VX, VZ + 16)
            do_form(0, gs + 1)
            IT[0] = it
        if kind == "ror8":
            rb = RR + 4 * (grp % 2); grp += 1
            step_mm(fb, rb, D9M, 0, 0, gs)
            at((gs + 1) * PER + 4, 2.0)
            swap(32, rb, rb+2); add(rb, rb, rb+2); swap(16, rb, rb+1); add(rb, rb, rb+1)
            add(D9M, D9M, D9M + 2); add(D9M, D9M, rb)
            valu(f"v_cndmask_b32 v{D9M}, v{NEGINF}, v{D9M}, s[{S_MA}:{S_MA+1}]", [f"v{NEGINF}", f"v{D9M}"], [f"v{D9M}"])
            tiles.append((D9M, D9M + 1))
        else:
            reg = si if si < 16 else si - 1
            var = reg % 4
            if var == 0: d9 = D9 + 4 * (reg // 4); rb = RR + 4 * (grp % 2); grp += 1
            step_mm(fb, rb + var, d9, var, (MASKC if reg == 8 else 0) if var == 0 else None, gs)
            if var == 3:
                at((gs + 1) * PER + 4, 3.0); tred(rb); add(d9, d9, d9 + 2)
                if reg == 3: add(E0, d9, rb); mov(S0, d9 + 1); tiles.append((E0, S0))
                else: add(d9, d9, rb); tiles.append((d9, d9 + 1))
    at((base + NSTEP) * PER + 28, 2.0)
    softmax(tiles, it == NIT - 1)
out, st = schedule(ops)
bad = verify(out)
assert bad == 0
lines = finalize(out)
cuts = [i for i, o in enumerate(out) if o.kind == "mfma" and o.g % PIT == 0]
s1 = lines[cuts[1]:cuts[2]]; s2 = lines[cuts[2]:cuts[3]]
if s1 != s2:
    for i, (a, b) in enumerate(zip(s1, s2)):
        if a != b: print("diff at", i, len(s1), len(s2), s1[i-3:i+3], s2[i-3:i+3], file=sys.stderr); break
    raise SystemExit("body not periodic")
body = s1; bops = out[cuts[1]:cuts[2]]
pre_ops = [o for o in out[:cuts[1]] if o.kind != "nop" and o.it >= 1]
post_ops = [o for o in bops if o.kind != "nop" and o.it == 0]
assert sum(1 for o in pre_ops if o.kind == 'vmem') == 11 and sum(1 for o in pre_ops if o.kind == 'salu') == 4
print(st, "body len", len(body), "est cycles/iter", est_cycles(bops), "pre", len(pre_ops), "post", len(post_ops), "nops in body", sum(1 for o in bops if o.kind == "nop"), file=sys.stderr)
e("s_cmp_ge_u32 s2, 256"); e("s_cbranch_scc1 L_done")
stamp()
e("s_load_dwordx4 s[4:7], s[0:1], 0"); e("s_load_dwordx4 s[8:11], s[0:1], 32")
e("s_load_dwordx4 s[12:15], s[0:1], 48"); e("s_load_dwordx2 s[16:17], s[0:1], 64")
T = D9
vN, vG, vL, vW0, vW1, vWN0, vWN1, vT0, vT1, vT2, vTR, vNA = T, T+1, T+2, T+3, T+4, T+5, T+6, T+8, T+9, T+10, T+12, T+20
vm = []
def vmem(s, tag): e(s); vm.append(tag)
def vwait(tag):
    last = max(i for i, t in enumerate(vm) if t == tag)
    e(f"s_waitcnt vmcnt({len(vm) - 1 - last})")
if PF:
    e("s_getpc_b64 s[32:33]")
    e(f"v_lshlrev_b32 v{vT2}, 7, v0")
    e(f"v_min_u32 v{vT2}, L_end-L_pfbase-4, v{vT2}")
    L.insert(len(L) - 2, "L_pfbase:")
    vmem(f"global_load_dword v{PFR}, v{vT2}, s[32:33]", "pf")
e(f"v_lshrrev_b32 v{vT0}, 6, v0")
e(f"v_and_b32 v{vN}, 15, v0")
e(f"v_readfirstlane_b32 s{S_WAVE}, v{vT0}")
e(f"v_bfe_u32 v{vG}, v0, 4, 2")
e(f"v_and_b32 v{vL}, 63, v0")
def nib(tab): return sum(v << (4 * i) for i, v in enumerate(tab))
e(f"s_mov_b32 s{S_T}, 0x{nib(YT) & 0xffffffff:08x}"); e(f"s_mov_b32 s{S_T+1}, 0x{nib(YT) >> 32:08x}")
e(f"s_mov_b32 s{S_T+2}, 0x{nib(ZT) & 0xffffffff:08x}"); e(f"s_mov_b32 s{S_T+3}, 0x{nib(ZT) >> 32:08x}")
e(f"s_lshl_b32 s3, s2, 2"); e(f"s_add_u32 s3, s3, s{S_WAVE}")
e(f"s_mul_i32 s19, s3, 416")
e(f"v_lshlrev_b32 v{OX}, 2, v{vN}")
e(f"v_lshrrev_b64 v[{vT0}:{vT0+1}], v{OX}, s[{S_T}:{S_T+1}]")
e(f"v_and_b32 v{OY}, 15, v{vT0}")
e(f"v_lshrrev_b64 v[{vT0}:{vT0+1}], v{OX}, s[{S_T+2}:{S_T+3}]")
e(f"v_and_b32 v{OZ}, 15, v{vT0}")
e(f"v_add_u32 v{OX}, s19, v{OX}")
e(f"v_lshl_add_u32 v{OY}, v{OY}, 2, s19")
e(f"v_lshl_add_u32 v{OZ}, v{OZ}, 2, s19")
e(f"v_lshlrev_b32 v{GOFF}, 4, v{vG}")
e(f"s_lshl_b32 s{S_T}, s{S_WAVE}, 13")
e(f"v_lshrrev_b32 v{vT0}, 1, v{vN}")
e(f"v_xor_b32 v{vT0}, v{vT0}, v{vG}")
e(f"v_lshlrev_b32 v{vT0}, 5, v{vT0}")
e(f"v_and_b32 v{vT1}, 1, v0")
e(f"v_lshl_add_u32 v{vT0}, v{vT1}, 4, v{vT0}")
e(f"v_lshl_add_u32 v{vT0}, v{vG}, 8, v{vT0}")
e(f"v_add_u32 v{vW0}, s{S_T}, v{vT0}")
e(f"v_xor_b32 v{vW1}, 0x80, v{vW0}")
e(f"v_lshl_add_u32 v{vWN0}, v{vN}, 8, v{GOFF}")
e(f"v_add_u32 v{vWN0}, s{S_T}, v{vWN0}")
e(f"v_add_u32 v{vWN1}, 0x1000, v{vWN0}")
e(f"s_mov_b32 m0, s{S_T}")
e("s_waitcnt lgkmcnt(0)")
stamp()
for k in range(3): vmem(f"global_load_dword v{IDX+k}, v{[OX,OY,OZ][k]}, s[{S_IDX}:{S_IDX+1}] offset:{64 if k else 0}", "idx0")
for half in range(2):
    for q in range(4):
        vmem(f"global_load_lds_dwordx4 v{vW1 if q & 2 else vW0}, s[{S_W}:{S_W+1}] offset:{1024*q}", "wdma")
    if half == 0:
        e(f"s_add_u32 s{S_T+1}, s{S_T}, 0x1000"); e(f"v_add_u32 v{vW0}, 0x1000, v{vW0}"); e(f"s_mov_b32 m0, s{S_T+1}"); e(f"v_add_u32 v{vW1}, 0x1000, v{vW1}")
WN = F[0]; HB = ACC; WHA = RR
for ks in range(4): vmem(f"global_load_dwordx4 {rng(HB+4*ks,4)}, v{GOFF}, s[{S_H}:{S_H+1}] offset:{64*ks}", "wn")
for uu in range(2):
    for ks in range(4): vmem(f"global_load_dwordx4 {rng(WN+16*uu+4*ks,4)}, v{vWN1 if uu else vWN0}, s[{S_W}:{S_W+1}] offset:{64*ks}", "wn")
e(f"v_lshlrev_b32 v{vL}, 2, v{vL}")
vmem(f"global_load_dword v{TMP}, v{vL}, s[{S_P}:{S_P+1}]", "small")
e(f"v_lshrrev_b32 v{vT0}, 2, v{vN}"); e(f"v_lshlrev_b32 v{vT0}, 5, v{vT0}")
e(f"v_and_b32 v{vT1}, 3, v{vN}"); e(f"v_lshl_add_u32 v{vT0}, v{vT1}, 1, v{vT0}")
e(f"v_lshlrev_b32 v{vT1}, 3, v{vG}"); e(f"v_add_u32 v{vT0}, v{vT0}, v{vT1}")
for q in range(2): vmem(f"global_load_ushort v{H+q}, v{vT0}, s[{S_H}:{S_H+1}] offset:{128*q}", "small")
for t in range(8): vmem(f"global_load_dwordx2 {rng(BIAS+16+2*t,2)}, v{vT1}, s[{S_B}:{S_B+1}] offset:{32*t}", "small")
vwait("idx0"); stamp()
for k in range(3): e(f"v_lshl_add_u32 v{IDX+k}, v{IDX+k}, 8, v{GOFF}")
for k, raw in ((0, VZ + 16), (1, VY + 16)):
    for q in range(4): vmem(f"global_load_dwordx4 {rng(raw+4*q,4)}, v{IDX+k}, s[{S_TAB}:{S_TAB+1}] offset:{64*q}", f"view{k}")
e(f"v_mov_b32 v{NEGINF}, 0xff800000")
e(f"v_mov_b32 v{VCS}, {f32(CSC)}")
for r in range(4): e(f"v_mov_b32 v{MASKC+r}, 0")
e(f"s_mov_b32 s{S_MA}, 0x{inval & 0xffffffff:08x}"); e(f"s_mov_b32 s{S_MA+1}, 0x{inval >> 32:08x}")
e(f"v_cndmask_b32 v{MASKC}, v{MASKC}, v{NEGINF}, s[{S_MA}:{S_MA+1}]")
e(f"s_mov_b32 s{S_MA}, 0xff"); e(f"s_mov_b32 s{S_MA+1}, 0"); e(f"s_mov_b32 s{S_IT}, 0")
e(f"s_mov_b32 s{S_OM}, 0x00010001"); e(f"s_mov_b32 s{S_OM+1}, 0x00010001")
e(f"s_lshl_b32 s3, s3, 3"); e(f"v_lshl_add_u32 v{OOFF}, v{vG}, 1, s3")
e(f"v_lshrrev_b32 v{vT0}, 2, v{vN}")
e(f"v_and_b32 v{vT1}, 1, v{vG}"); e(f"v_lshl_or_b32 v{vT1}, v{vT1}, 2, v{vT0}")
e(f"v_lshl_add_u32 v{vT0}, v{vG}, 3, v{vT0}"); e(f"v_lshlrev_b32 v{vT0}, 8, v{vT0}")
e(f"v_lshl_add_u32 v{vT0}, v{vT1}, 5, v{vT0}")
e(f"v_and_b32 v{vT1}, 3, v{vN}"); e(f"v_lshl_add_u32 v{vTR}, v{vT1}, 3, v{vT0}")
for t in range(1, 8): e(f"v_xor_b32 v{vTR+t}, {t << 5}, v{vTR}")
vwait("wn"); stamp()
for uu in range(2):
    for ks in range(4):
        c = "0" if ks == 0 else rng(WHA+4*uu, 4)
        e(f"v_mfma_f32_16x16x32_bf16 {rng(WHA+4*uu,4)}, {rng(HB+4*ks,4)}, {rng(WN+16*uu+4*ks,4)}, {c}")
vwait("small")
e(f"v_add_u32 v{vL}, {LN9}, v{vL}")
e(f"ds_write_b32 v{vL}, v{TMP} offset:256")
e(f"ds_write_b32 v{vL}, v{MASKC+1} offset:768")
if MRED:
    e(f"v_lshrrev_b32 v{vT0}, 3, v{vN}"); e(f"v_lshlrev_b32 v{vT0}, 6, v{vT0}"); e(f"v_and_b32 v{vT1}, 7, v{vN}")
    e(f"v_lshl_add_u32 v{vT0}, v{vT1}, 1, v{vT0}"); e(f"v_add_u32 v{vT0}, v{vT0}, v{GOFF}")
    for q in range(2): e(f"ds_write_b16 v{vT0}, v{H+q} offset:{LN9+1024+128*q}")
for q in range(2): e(f"v_lshlrev_b32 v{H+q}, 16, v{H+q}")
e(f"s_lshl_b32 s{S_T+1}, s{S_WAVE}, 6"); e(f"s_add_u32 s{S_T+1}, s{S_T+1}, {LN9}")
e(f"v_lshl_add_u32 v{vT2}, v{vN}, 1, s{S_T+1}")
e("s_nop 1")
for uu in range(2):
    a = WHA + 4 * uu
    e(f"v_cvt_pk_bf16_f32 v{a+1}, v{a}, v{a}")
    e(f"v_lshlrev_b32 v{a+2}, 16, v{a+1}")
    e(f"v_sub_f32 v{a+2}, v{a}, v{a+2}")
    e(f"v_cvt_pk_bf16_f32 v{a+2}, v{a+2}, v{a+2}")
    e(f"ds_write_b16 v{vT2}, v{a+1} offset:{32*uu}")
    e(f"ds_write_b16 v{vT2}, v{a+2} offset:{512+32*uu}")
for q in range(16):
    s = BIAS + 16 + q
    e(f"v_lshlrev_b32 v{BIAS+2*q}, 16, v{s}"); e(f"v_and_b32 v{BIAS+2*q+1}, 0xffff0000, v{s}")
for var in range(4):
    e(f"v_subrev_u32 v{vNA+var}, {4*var}, v{vN}"); e(f"v_min_u32 v{vNA+var}, 3, v{vNA+var}")
    e(f"v_lshl_add_u32 v{vNA+var}, v{vNA+var}, 8, v{GOFF}")
e("s_waitcnt lgkmcnt(0)")
stamp(); e("s_barrier"); stamp()
for t in range(8):
    for ks in range(4):
        for u in range(2):
            e(f"ds_read_b64_tr_b16 {rng(AW+(t*4+ks)*4+2*u,2,'a')}, v{vTR+t} offset:{8192*ks+1024*u}")
for var in range(4):
    for ks in range(4):
        e(f"ds_read_b128 {rng(AN9+16*var+4*ks,4,'a')}, v{vNA+var} offset:{LN9+64*ks}")
if MRED:
    for var in range(4):
        e(f"v_subrev_u32 v{vT0}, {4*var}, v{vN}"); e(f"v_min_u32 v{vT0}, 1, v{vT0}"); e(f"v_xor_b32 v{vT0}, 1, v{vT0}")
        e(f"v_lshl_add_u32 v{vT0}, v{vT0}, 8, v{GOFF}")
        for q in range(MRED):
            e(f"ds_read_b128 {rng(AH+16*q+4*var,4,'a')}, v{vT0} offset:{LN9+768+64*q}")
e("s_waitcnt vmcnt(0)")
stamp()
pre = [o for o in pre_ops if o.kind in VALUK and not o.text.startswith("v_lshl_add_u32")]
pre2 = [Op(o.text, o.kind, o.R, o.W, prio=i) for i, o in enumerate(sorted(pre, key=lambda o: o.seq))]
po, _ = schedule(pre2); assert verify(po) == 0
for s in finalize(po): e(s)
e("s_waitcnt lgkmcnt(0)")
e("s_nop 1")
L.append(".p2align 6"); L.append("L_loop:")
stamp_it = DBG
if DBG: e("s_lshl_b32 s34, s22, 1"); e("s_mov_b32 m0, s34"); e("s_memrealtime s[36:37]"); e("s_waitcnt lgkmcnt(0)"); e(f"s_movreld_b32 s{40+2*NST[0]}, s36"); lo = NST[0]; NST[0] += 4
for s in body: e(s)
e(f"s_add_u32 s{S_IT}, s{S_IT}, 1"); e(f"s_cmp_lt_u32 s{S_IT}, 4"); e("s_cbranch_scc1 L_loop")
stamp()
e("s_nop 7")
ops = []; IT[0] = 0; at(0, 1)
for o in sorted(post_ops, key=lambda o: o.seq):
    if getattr(o, "rot", False): continue
    valu(o.text, o.R, o.W, o.kind, cost=o.cost)
add(NUM, NUM, DEN)
swap(16, TC, TB); add(TC, TC, TB); swap(16, TA, NUM); add(TA, TA, NUM)
for c in (8, 4, 2, 1):
    for r in (TC, TA): valu(f"v_add_f32_dpp v{r}, v{r}, v{r} row_ror:{c} {FULL}", [f"v{r}"], [f"v{r}"], "dpp")
swap(32, TC, TA)
valu(f"v_rcp_f32 v{TA}, v{TA}", [f"v{TA}"], [f"v{TA}"], "trans", cost=2)
valu(f"v_mul_f32 v{TC}, v{TC}, v{TA}", [f"v{TC}", f"v{TA}"], [f"v{TC}"])
valu(f"v_cvt_pk_bf16_f32 v{TC}, v{TC}, v{TC}", [f"v{TC}"], [f"v{TC}"])
to, _ = schedule(ops); assert verify(to) == 0
print("tail est", est_cycles(to), "pre est", est_cycles(po), file=sys.stderr)
for s in finalize(to): e(s)
stamp()
if DBG == 1:
    e("s_load_dwordx2 s[36:37], s[0:1], 80"); e("s_waitcnt lgkmcnt(0)")
    e("s_lshl_b32 s3, s3, 4"); e(f"v_mov_b32 v1, s3")
    for k in range(NST[0]):
        e(f"v_mov_b32 v2, s{40+2*k}"); e(f"global_store_dword v1, v2, s[36:37] offset:{4*k}")
    e(f"v_mov_b32 v2, {NST[0]}"); e(f"global_store_dword v1, v2, s[36:37] offset:124")
e(f"s_mov_b64 exec, s[{S_OM}:{S_OM+1}]")
e(f"global_store_short v{OOFF}, v{TC}, s[{S_OUT}:{S_OUT+1}]")
L.append("L_done:")
e("s_endpgm")
L.append("L_end:")
L += ['.section .rodata,"a"', ".p2align 6", ".amdhsa_kernel %s_kernel" % NAME,
      "  .amdhsa_next_free_vgpr 512", "  .amdhsa_next_free_sgpr %d" % (100 if DBG else 40), "  .amdhsa_accum_offset 256",
      "  .amdhsa_group_segment_fixed_size 0", "  .amdhsa_kernarg_size 88", "  .amdhsa_user_sgpr_count 2",
      "  .amdhsa_user_sgpr_kernarg_segment_ptr 1", "  .amdhsa_system_sgpr_workgroup_id_x 1",
      "  .amdhsa_float_denorm_mode_32 3",
      ".end_amdhsa_kernel"]
print("\n".join(L))
```

```python
import sys, math, struct
from sched import *
NAME = "standalone__factorization_afm__recsys"
opts = dict(a.split("=") for a in sys.argv[1:] if "=" in a)
MRED = int(opts.get("m", 0))
LAT_FAR = int(opts.get("latfar", 560)); LAT_NEAR = int(opts.get("latnear", 300))
DBG = int(opts.get("dbg", 0)); PF = int(opts.get("pf", 1))
YT = [6,0,4,4,2,3,6,9,3,7,0,1,8,5,3,4]
ZT = [5,2,7,7,9,7,1,0,1,5,4,8,2,9,6,8]
K10 = [("", lambda n: n), ("quad_perm:[1,0,3,2]", lambda n: n ^ 1), ("quad_perm:[2,3,0,1]", lambda n: n ^ 2)]
seen = set(); inval = 0
for k, (_, pi) in enumerate(K10):
    for n in range(16):
        a, b = ZT[n], YT[pi(n)]; key = (min(a, b), max(a, b))
        if a == b or key in seen: inval |= 1 << (16 * k + n)
        else: seen.add(key)
assert len(seen) == 45
POS = [YT.index(c) for c in range(10)]
FULL = "row_mask:0xf bank_mask:0xf"
BIAS = 0; VX = 32; VY = 64; VZ = 96; F = [128, 144]; TMP = 160; ACC = 168; RR = 184; D9 = 192; D9M = 212
MASKC = 216; RF = 220
H = 232; NEGINF = 234; MX = 235; NUM = 236; DEN = 237; TA = 238; TB = 239; TC = 240; E0 = 241; S0 = 242
IDX = 243; OX = 246; OY = 247; OZ = 248; GOFF = 249; OOFF = 250; VCS = 251; PFR = 252
AW = 0; AN9 = 128; AH = 192
S_IDX = 4; S_TAB = 6; S_W = 8; S_B = 10; S_H = 12; S_P = 14; S_OUT = 16; S_WAVE = 18; S_MA = 20; S_MAX = 24; S_T = 26; S_OM = 30; S_IT = 22; S_INC = 23; S_IXC = 38
LN9 = 32768
CSC = 0.5 * math.log2(math.e)
def f32(x): return "0x%08x" % struct.unpack("<I", struct.pack("<f", x))[0]
L = []
def e(s): L.append("    " + s)
hdr = open("cdna_kernels/%s.s.ref" % NAME).read().split("\n")
for line in hdr:
    if line.startswith("; @launch"):
        L.append("; @launch grid=(256,1,1) block=(256,1,1) lds=34816"); break
    L.append(line)
L += ['.amdgcn_target "amdgcn-amd-amdhsa--gfx950"', ".text", ".globl %s_kernel" % NAME, ".p2align 8",
      ".type %s_kernel,@function" % NAME, "%s_kernel:" % NAME]
NST = [0]
def stamp():
    if DBG: e(f"s_memrealtime s[{40+2*NST[0]}:{41+2*NST[0]}]"); NST[0] += 1
PER = 36 + MRED; NSTEP = 21; PIT = PER * NSTEP
ops = []
TT = [0.0, 0.0]; IT = [0]
def at(t, inc): TT[0] = t; TT[1] = inc
def push(o): o.it = IT[0]; ops.append(o); return o
def valu(text, R, W, kind="valu", **kw):
    o = Op(text, kind, R, W, prio=round(TT[0] + 1e-4, 3), **kw); TT[0] += TT[1]; return push(o)
def view_load(raw, ireg):
    return [valu(f"global_load_dwordx4 {rng(raw+4*q,4)}, v{ireg}, s[{S_TAB}:{S_TAB+1}] offset:{64*q}", [f"v{ireg}"], vr(raw+4*q,4), "vmem") for q in range(4)]
def wait_for(regs, ls, lat):
    return push(Op("wait", "wait", R=regs, W=regs, covers=ls, lat=lat, prio=round(TT[0] + 1e-4, 3)))
def unpack(V, raw):
    for q in range(16):
        s = raw + q
        valu(f"v_lshlrev_b32 v{V+2*q}, 16, v{s}", [f"v{s}"], [f"v{V+2*q}"])
        valu(f"v_and_b32 v{V+2*q+1}, 0xffff0000, v{s}", [f"v{s}"], [f"v{V+2*q+1}"])
def form(fb, P, ctrl, Q, gs):
    at((gs - 1) * PER + 0.2, (PER - 2.5) / 48)
    for i in range(32):
        d = TMP + i % 8
        if ctrl: valu(f"v_mul_f32_dpp v{d}, v{P+i}, v{Q+i} {ctrl} {FULL}", [f"v{P+i}", f"v{Q+i}"], [f"v{d}"], "dpp")
        else: valu(f"v_mul_f32 v{d}, v{P+i}, v{Q+i}", [f"v{P+i}", f"v{Q+i}"], [f"v{d}"])
        if i % 2: valu(f"v_cvt_pk_bf16_f32 v{fb+i//2}, v{d-1}, v{d}", [f"v{d-1}", f"v{d}"], [f"v{fb+i//2}"])
def mm(D, A, B, ct, cr):
    push(mfma(f"v_mfma_f32_16x16x32_bf16 {rng(D,4)}, {rng(A,4,'a')}, {rng(B,4)}, {ct}", vr(D,4), vr(A,4,'a'), vr(B,4), cr))
def step_mm(fb, r, d9, var, cinit, gs):
    pos = gs * PER
    def ninth():
        for ks in range(4):
            if ks == 0 and cinit is not None: ct, cr = ("0", []) if cinit == 0 else (rng(cinit, 4), vr(cinit, 4))
            else: ct, cr = rng(d9, 4), vr(d9, 4)
            mm(d9, AN9 + 16 * var + 4 * ks, fb + 4 * ks, ct, cr)
    first = True
    for t in range(8):
        acc = ACC + 4 * (t % 4)
        for ks in range(4):
            c = BIAS + 4 * t if ks == 0 else acc
            mm(acc, AW + (t * 4 + ks) * 4, fb + 4 * ks, rng(c, 4), vr(c, 4))
        pos += 4
        q = t // 2
        if q < MRED:
            at(pos + 2.1, 1.0)
            for c in range(2):
                d = RF + 4 * q + 2 * (t % 2) + c
                valu(f"v_cvt_pk_bf16_f32 v{d}, |v{acc+2*c}|, |v{acc+2*c+1}|", [f"v{acc+2*c}", f"v{acc+2*c+1}"], [f"v{d}"])
        else:
            at(pos + 2.1, 1.0)
            for k in range(4):
                i = 4 * t + k
                if first: valu(f"v_mul_f32_dpp v{r}, v{H+i//16}, |v{acc+k}| row_newbcast:{i%16} {FULL}", [f"v{H+i//16}", f"v{acc+k}"], [f"v{r}"], "dpp"); first = False
                else: valu(f"v_fmac_f32_dpp v{r}, v{H+i//16}, |v{acc+k}| row_newbcast:{i%16} {FULL}", [f"v{H+i//16}", f"v{acc+k}", f"v{r}"], [f"v{r}"], "dpp")
        if MRED and t == 1: ninth(); pos += 4
        if MRED and t % 2 == 1 and t >= 3 and (t - 3) // 2 < MRED:
            qq = (t - 3) // 2
            mm(d9, AH + 16 * qq + 4 * var, RF + 4 * qq, rng(d9, 4), vr(d9, 4)); pos += 1
    if not MRED: ninth()
def swap(w, a, b): valu(f"v_permlane{w}_swap_b32 v{a}, v{b}", [f"v{a}", f"v{b}"], [f"v{a}", f"v{b}"], "perm")
def add(d, a, b): valu(f"v_add_f32 v{d}, v{a}, v{b}", [f"v{a}", f"v{b}"], [f"v{d}"])
def mov(d, a): valu(f"v_mov_b32 v{d}, v{a}", [f"v{a}"], [f"v{d}"])
def tred(r):
    swap(32, r, r+2); add(r, r, r+2); swap(32, r+1, r+3); add(r+1, r+1, r+3); swap(16, r, r+1); add(r, r, r+1)
def softmax(ES, last):
    E = [x[0] for x in ES]
    valu(f"v_max3_f32 v{MX}, v{E[0]}, v{E[1]}, v{E[2]}", [f"v{x}" for x in E[:3]], [f"v{MX}"])
    valu(f"v_max3_f32 v{MX}, v{MX}, v{E[3]}, v{E[4]}", [f"v{MX}", f"v{E[3]}", f"v{E[4]}"], [f"v{MX}"])
    valu(f"v_max_f32 v{MX}, v{MX}, v{E[5]}", [f"v{MX}", f"v{E[5]}"], [f"v{MX}"])
    for c in ("row_ror:8 " + FULL, "row_ror:4 " + FULL, "row_ror:2 " + FULL, "row_ror:1 " + FULL, "row_bcast:15 row_mask:0xa bank_mask:0xf", "row_bcast:31 row_mask:0xc bank_mask:0xf"):
        valu(f"v_max_f32_dpp v{MX}, v{MX}, v{MX} {c}", [f"v{MX}"], [f"v{MX}"], "dpp")
    valu(f"v_mul_f32 v{MX}, v{VCS}, v{MX}", [f"v{MX}", f"v{VCS}"], [f"v{MX}"])
    valu(f"v_readlane_b32 s{S_MAX}, v{MX}, 63", [f"v{MX}"], [f"s{S_MAX}"], "readlane")
    for i, (x, s) in enumerate(ES):
        valu(f"v_fma_f32 v{x}, v{x}, v{VCS}, -s{S_MAX}", [f"s{S_MAX}", f"v{x}", f"v{VCS}"], [f"v{x}"])
        valu(f"v_exp_f32 v{x}, v{x}", [f"v{x}"], [f"v{x}"], "trans", cost=2)
        if i == 0: valu(f"v_mul_f32 v{NUM}, v{x}, v{s}", [f"v{x}", f"v{s}"], [f"v{NUM}"])
        else: valu(f"v_fmac_f32 v{NUM}, v{x}, v{s}", [f"v{x}", f"v{s}", f"v{NUM}"], [f"v{NUM}"])
        if i == 1: add(DEN, ES[0][0], x)
        elif i > 1: add(DEN, DEN, x)
    swap(32, NUM, DEN)
    o1 = len(ops); mov(TC, TB); mov(TB, TA); add(TA, NUM, DEN)
    for o in ops[o1:]: o.rot = True
def salu(text, R, W): return valu(text, R, W, "salu")
STEPS = [("star", c) for c in range(8)] + [("k10", k) for k in range(3)] + [("star", 8), ("star", 9)] + [("ror", t) for t in (1, 2, 3)] + [("ror8", 8)] + [("ror", t) for t in (4, 5, 6, 7)]
def do_form(si, gs):
    kind, a = STEPS[si]
    reg = si if si < 16 else si - 1
    fb = VZ if kind == "ror8" else F[reg % 2]
    if kind == "star": form(fb, VY, f"row_newbcast:{POS[a]}", VX, gs)
    elif kind == "k10": form(fb, VY, K10[a][0], VZ, gs)
    else: form(fb, VX, f"row_ror:{a}", VX, gs)
    return fb
NIT = 4
for it in range(NIT):
    IT[0] = it; base = it * NSTEP
    tiles = []
    at(base * PER + 1, 1.0); lz = view_load(VZ + 16, IDX + 2)
    for o in lz: o.nb = base * PER
    IT[0] = it + 1
    at(base * PER + 8, 2.0)
    salu(f"s_add_u32 s{S_INC}, s{S_IT}, 1", [f"s{S_IT}"], [f"s{S_INC}", "scc"]); salu(f"s_and_b32 s{S_INC}, s{S_INC}, 3", [f"s{S_INC}"], [f"s{S_INC}", "scc"])
    salu(f"s_mul_i32 s{S_INC}, s{S_INC}, 104", [f"s{S_INC}"], [f"s{S_INC}"])
    salu(f"s_add_u32 s{S_IXC}, s{S_IDX}, s{S_INC}", [f"s{S_IDX}", f"s{S_INC}"], [f"s{S_IXC}", "scc"]); salu(f"s_addc_u32 s{S_IXC+1}, s{S_IDX+1}, 0", [f"s{S_IDX+1}", "scc"], [f"s{S_IXC+1}", "scc"])
    li = [valu(f"global_load_dword v{IDX+k}, v{[OX,OY,OZ][k]}, s[{S_IXC}:{S_IXC+1}] offset:{64 if k else 0}", [f"v{[OX,OY,OZ][k]}", f"s{S_IXC}", f"s{S_IXC+1}"], [f"v{IDX+k}"], "vmem") for k in range(3)]
    for o in ops[-8:]: o.nb = base * PER
    IT[0] = it
    grp = 0
    for si in range(NSTEP):
        gs = base + si
        kind, a = STEPS[si]
        if si == 8:
            at((gs - 5) * PER, 3.5 * PER / 32); wait_for(vr(VZ+16,16), lz, LAT_NEAR); unpack(VZ, VZ + 16)
            IT[0] = it + 1
            at((gs - 1) * PER, 2.0); wait_for(vr(IDX,3), li, LAT_NEAR)
            for k in range(3): valu(f"v_lshl_add_u32 v{IDX+k}, v{IDX+k}, 8, v{GOFF}", [f"v{IDX+k}", f"v{GOFF}"], [f"v{IDX+k}"])
            IT[0] = it
        if si > 0 or it == 0: fb = do_form(si, gs)
        else: fb = F[0]
        if si == 10: IT[0] = it + 1; at(-1e9, 0); lx = view_load(VZ + 16, IDX); IT[0] = it
        if si == 12: IT[0] = it + 1; at(-1e9, 0); ly = view_load(VY + 16, IDX + 1); IT[0] = it
        if si == NSTEP - 1:
            IT[0] = it + 1
            at((gs - 4.2) * PER, 2.6 * PER / 32); wait_for(vr(VY+16,16), ly, LAT_FAR); unpack(VY, VY + 16)
            at((gs - 1) * PER + 3, (PER - 2.5) / 36); wait_for(vr(VZ+16,16), lx, LAT_FAR); unpack(VX, VZ + 16)
            do_form(0, gs + 1)
            IT[0] = it
        if kind == "ror8":
            rb = RR + 4 * (grp % 2); grp += 1
            step_mm(fb, rb, D9M, 0, 0, gs)
            at((gs + 1) * PER + 4, 2.0)
            swap(32, rb, rb+2); add(rb, rb, rb+2); swap(16, rb, rb+1); add(rb, rb, rb+1)
            add(D9M, D9M, D9M + 2); add(D9M, D9M, rb)
            valu(f"v_cndmask_b32 v{D9M}, v{NEGINF}, v{D9M}, s[{S_MA}:{S_MA+1}]", [f"v{NEGINF}", f"v{D9M}"], [f"v{D9M}"])
            tiles.append((D9M, D9M + 1))
        else:
            reg = si if si < 16 else si - 1
            var = reg % 4
            if var == 0: d9 = D9 + 4 * (reg // 4); rb = RR + 4 * (grp % 2); grp += 1
            step_mm(fb, rb + var, d9, var, (MASKC if reg == 8 else 0) if var == 0 else None, gs)
            if var == 3:
                at((gs + 1) * PER + 4, 3.0); tred(rb); add(d9, d9, d9 + 2)
                if reg == 3: add(E0, d9, rb); mov(S0, d9 + 1); tiles.append((E0, S0))
                else: add(d9, d9, rb); tiles.append((d9, d9 + 1))
    at((base + NSTEP) * PER + 28, 2.0)
    softmax(tiles, it == NIT - 1)
out, st = schedule(ops)
bad = verify(out)
assert bad == 0
lines = finalize(out)
cuts = [i for i, o in enumerate(out) if o.kind == "mfma" and o.g % PIT == 0]
s1 = lines[cuts[1]:cuts[2]]; s2 = lines[cuts[2]:cuts[3]]
if s1 != s2:
    for i, (a, b) in enumerate(zip(s1, s2)):
        if a != b: print("diff at", i, len(s1), len(s2), s1[i-3:i+3], s2[i-3:i+3], file=sys.stderr); break
    raise SystemExit("body not periodic")
body = s1; bops = out[cuts[1]:cuts[2]]
pre_ops = [o for o in out[:cuts[1]] if o.kind != "nop" and o.it >= 1]
post_ops = [o for o in bops if o.kind != "nop" and o.it == 0]
assert sum(1 for o in pre_ops if o.kind == 'vmem') == 11 and sum(1 for o in pre_ops if o.kind == 'salu') == 5
print(st, "body len", len(body), "est cycles/iter", est_cycles(bops), "pre", len(pre_ops), "post", len(post_ops), "nops in body", sum(1 for o in bops if o.kind == "nop"), file=sys.stderr)
e("s_cmp_ge_u32 s2, 256"); e("s_cbranch_scc1 L_done")
stamp()
e("s_load_dwordx4 s[4:7], s[0:1], 0"); e("s_load_dwordx4 s[8:11], s[0:1], 32")
e("s_load_dwordx4 s[12:15], s[0:1], 48"); e("s_load_dwordx2 s[16:17], s[0:1], 64")
T = D9
vN, vG, vL, vW0, vW1, vWN0, vWN1, vT0, vT1, vT2, vTR, vNA = T, T+1, T+2, T+3, T+4, T+5, T+6, T+8, T+9, T+10, T+12, T+20
vm = []
def vmem(s, tag): e(s); vm.append(tag)
def vwait(tag):
    last = max(i for i, t in enumerate(vm) if t == tag)
    e(f"s_waitcnt vmcnt({len(vm) - 1 - last})")
if PF:
    e("s_getpc_b64 s[32:33]")
    e(f"v_lshlrev_b32 v{vT2}, 7, v0")
    e(f"v_min_u32 v{vT2}, L_end-L_pfbase-4, v{vT2}")
    L.insert(len(L) - 2, "L_pfbase:")
    vmem(f"global_load_dword v{PFR}, v{vT2}, s[32:33]", "pf")
e(f"v_lshrrev_b32 v{vT0}, 6, v0")
e(f"v_and_b32 v{vN}, 15, v0")
e(f"v_readfirstlane_b32 s{S_WAVE}, v{vT0}")
e(f"v_bfe_u32 v{vG}, v0, 4, 2")
e(f"v_and_b32 v{vL}, 63, v0")
def nib(tab): return sum(v << (4 * i) for i, v in enumerate(tab))
e(f"s_mov_b32 s{S_T}, 0x{nib(YT) & 0xffffffff:08x}"); e(f"s_mov_b32 s{S_T+1}, 0x{nib(YT) >> 32:08x}")
e(f"s_mov_b32 s{S_T+2}, 0x{nib(ZT) & 0xffffffff:08x}"); e(f"s_mov_b32 s{S_T+3}, 0x{nib(ZT) >> 32:08x}")
e(f"s_lshl_b32 s3, s2, 2"); e(f"s_add_u32 s3, s3, s{S_WAVE}")
e(f"s_mul_i32 s19, s3, 416")
e(f"v_lshlrev_b32 v{OX}, 2, v{vN}")
e(f"v_lshrrev_b64 v[{vT0}:{vT0+1}], v{OX}, s[{S_T}:{S_T+1}]")
e(f"v_and_b32 v{OY}, 15, v{vT0}")
e(f"v_lshrrev_b64 v[{vT0}:{vT0+1}], v{OX}, s[{S_T+2}:{S_T+3}]")
e(f"v_and_b32 v{OZ}, 15, v{vT0}")
e(f"v_add_u32 v{OX}, s19, v{OX}")
e(f"v_lshl_add_u32 v{OY}, v{OY}, 2, s19")
e(f"v_lshl_add_u32 v{OZ}, v{OZ}, 2, s19")
e(f"v_lshlrev_b32 v{GOFF}, 4, v{vG}")
e(f"s_lshl_b32 s{S_T}, s{S_WAVE}, 13")
e(f"v_lshrrev_b32 v{vT0}, 1, v{vN}")
e(f"v_xor_b32 v{vT0}, v{vT0}, v{vG}")
e(f"v_lshlrev_b32 v{vT0}, 5, v{vT0}")
e(f"v_and_b32 v{vT1}, 1, v0")
e(f"v_lshl_add_u32 v{vT0}, v{vT1}, 4, v{vT0}")
e(f"v_lshl_add_u32 v{vT0}, v{vG}, 8, v{vT0}")
e(f"v_add_u32 v{vW0}, s{S_T}, v{vT0}")
e(f"v_xor_b32 v{vW1}, 0x80, v{vW0}")
e(f"v_lshl_add_u32 v{vWN0}, v{vN}, 8, v{GOFF}")
e(f"v_add_u32 v{vWN0}, s{S_T}, v{vWN0}")
e(f"v_add_u32 v{vWN1}, 0x1000, v{vWN0}")
e(f"s_mov_b32 m0, s{S_T}")
e("s_waitcnt lgkmcnt(0)")
stamp()
for k in range(3): vmem(f"global_load_dword v{IDX+k}, v{[OX,OY,OZ][k]}, s[{S_IDX}:{S_IDX+1}] offset:{64 if k else 0}", "idx0")
for half in range(2):
    for q in range(4):
        vmem(f"global_load_lds_dwordx4 v{vW1 if q & 2 else vW0}, s[{S_W}:{S_W+1}] offset:{1024*q}", "wdma")
    if half == 0:
        e(f"s_add_u32 s{S_T+1}, s{S_T}, 0x1000"); e(f"v_add_u32 v{vW0}, 0x1000, v{vW0}"); e(f"s_mov_b32 m0, s{S_T+1}"); e(f"v_add_u32 v{vW1}, 0x1000, v{vW1}")
WN = F[0]; HB = ACC; WHA = RR
for ks in range(4): vmem(f"global_load_dwordx4 {rng(HB+4*ks,4)}, v{GOFF}, s[{S_H}:{S_H+1}] offset:{64*ks}", "wn")
for uu in range(2):
    for ks in range(4): vmem(f"global_load_dwordx4 {rng(WN+16*uu+4*ks,4)}, v{vWN1 if uu else vWN0}, s[{S_W}:{S_W+1}] offset:{64*ks}", "wn")
e(f"v_lshlrev_b32 v{vL}, 2, v{vL}")
vmem(f"global_load_dword v{TMP}, v{vL}, s[{S_P}:{S_P+1}]", "small")
e(f"v_lshrrev_b32 v{vT0}, 2, v{vN}"); e(f"v_lshlrev_b32 v{vT0}, 5, v{vT0}")
e(f"v_and_b32 v{vT1}, 3, v{vN}"); e(f"v_lshl_add_u32 v{vT0}, v{vT1}, 1, v{vT0}")
e(f"v_lshlrev_b32 v{vT1}, 3, v{vG}"); e(f"v_add_u32 v{vT0}, v{vT0}, v{vT1}")
for q in range(2): vmem(f"global_load_ushort v{H+q}, v{vT0}, s[{S_H}:{S_H+1}] offset:{128*q}", "small")
for t in range(8): vmem(f"global_load_dwordx2 {rng(BIAS+16+2*t,2)}, v{vT1}, s[{S_B}:{S_B+1}] offset:{32*t}", "small")
vwait("idx0"); stamp()
for k in range(3): e(f"v_lshl_add_u32 v{IDX+k}, v{IDX+k}, 8, v{GOFF}")
for k, raw in ((0, VZ + 16), (1, VY + 16)):
    for q in range(4): vmem(f"global_load_dwordx4 {rng(raw+4*q,4)}, v{IDX+k}, s[{S_TAB}:{S_TAB+1}] offset:{64*q}", f"view{k}")
e(f"v_mov_b32 v{NEGINF}, 0xff800000")
e(f"v_mov_b32 v{VCS}, {f32(CSC)}")
for r in range(4): e(f"v_mov_b32 v{MASKC+r}, 0")
e(f"s_mov_b32 s{S_MA}, 0x{inval & 0xffffffff:08x}"); e(f"s_mov_b32 s{S_MA+1}, 0x{inval >> 32:08x}")
e(f"v_cndmask_b32 v{MASKC}, v{MASKC}, v{NEGINF}, s[{S_MA}:{S_MA+1}]")
e(f"s_mov_b32 s{S_MA}, 0xff"); e(f"s_mov_b32 s{S_MA+1}, 0"); e(f"s_mov_b32 s{S_IT}, 0")
e(f"s_mov_b32 s{S_OM}, 0x00010001"); e(f"s_mov_b32 s{S_OM+1}, 0x00010001")
e(f"s_lshl_b32 s3, s3, 3"); e(f"v_lshl_add_u32 v{OOFF}, v{vG}, 1, s3")
e(f"v_lshrrev_b32 v{vT0}, 2, v{vN}")
e(f"v_and_b32 v{vT1}, 1, v{vG}"); e(f"v_lshl_or_b32 v{vT1}, v{vT1}, 2, v{vT0}")
e(f"v_lshl_add_u32 v{vT0}, v{vG}, 3, v{vT0}"); e(f"v_lshlrev_b32 v{vT0}, 8, v{vT0}")
e(f"v_lshl_add_u32 v{vT0}, v{vT1}, 5, v{vT0}")
e(f"v_and_b32 v{vT1}, 3, v{vN}"); e(f"v_lshl_add_u32 v{vTR}, v{vT1}, 3, v{vT0}")
for t in range(1, 8): e(f"v_xor_b32 v{vTR+t}, {t << 5}, v{vTR}")
vwait("wn"); stamp()
for uu in range(2):
    for ks in range(4):
        c = "0" if ks == 0 else rng(WHA+4*uu, 4)
        e(f"v_mfma_f32_16x16x32_bf16 {rng(WHA+4*uu,4)}, {rng(HB+4*ks,4)}, {rng(WN+16*uu+4*ks,4)}, {c}")
vwait("small")
e(f"v_add_u32 v{vL}, {LN9}, v{vL}")
e(f"ds_write_b32 v{vL}, v{TMP} offset:256")
e(f"ds_write_b32 v{vL}, v{MASKC+1} offset:768")
if MRED:
    e(f"v_lshrrev_b32 v{vT0}, 3, v{vN}"); e(f"v_lshlrev_b32 v{vT0}, 6, v{vT0}"); e(f"v_and_b32 v{vT1}, 7, v{vN}")
    e(f"v_lshl_add_u32 v{vT0}, v{vT1}, 1, v{vT0}"); e(f"v_add_u32 v{vT0}, v{vT0}, v{GOFF}")
    for q in range(2): e(f"ds_write_b16 v{vT0}, v{H+q} offset:{LN9+1024+128*q}")
for q in range(2): e(f"v_lshlrev_b32 v{H+q}, 16, v{H+q}")
e(f"s_lshl_b32 s{S_T+1}, s{S_WAVE}, 6"); e(f"s_add_u32 s{S_T+1}, s{S_T+1}, {LN9}")
e(f"v_lshl_add_u32 v{vT2}, v{vN}, 1, s{S_T+1}")
e("s_nop 1")
for uu in range(2):
    a = WHA + 4 * uu
    e(f"v_cvt_pk_bf16_f32 v{a+1}, v{a}, v{a}")
    e(f"v_lshlrev_b32 v{a+2}, 16, v{a+1}")
    e(f"v_sub_f32 v{a+2}, v{a}, v{a+2}")
    e(f"v_cvt_pk_bf16_f32 v{a+2}, v{a+2}, v{a+2}")
    e(f"ds_write_b16 v{vT2}, v{a+1} offset:{32*uu}")
    e(f"ds_write_b16 v{vT2}, v{a+2} offset:{512+32*uu}")
for q in range(16):
    s = BIAS + 16 + q
    e(f"v_lshlrev_b32 v{BIAS+2*q}, 16, v{s}"); e(f"v_and_b32 v{BIAS+2*q+1}, 0xffff0000, v{s}")
for var in range(4):
    e(f"v_subrev_u32 v{vNA+var}, {4*var}, v{vN}"); e(f"v_min_u32 v{vNA+var}, 3, v{vNA+var}")
    e(f"v_lshl_add_u32 v{vNA+var}, v{vNA+var}, 8, v{GOFF}")
e("s_waitcnt lgkmcnt(0)")
stamp(); e("s_barrier"); stamp()
for t in range(8):
    for ks in range(4):
        for u in range(2):
            e(f"ds_read_b64_tr_b16 {rng(AW+(t*4+ks)*4+2*u,2,'a')}, v{vTR+t} offset:{8192*ks+1024*u}")
for var in range(4):
    for ks in range(4):
        e(f"ds_read_b128 {rng(AN9+16*var+4*ks,4,'a')}, v{vNA+var} offset:{LN9+64*ks}")
if MRED:
    for var in range(4):
        e(f"v_subrev_u32 v{vT0}, {4*var}, v{vN}"); e(f"v_min_u32 v{vT0}, 1, v{vT0}"); e(f"v_xor_b32 v{vT0}, 1, v{vT0}")
        e(f"v_lshl_add_u32 v{vT0}, v{vT0}, 8, v{GOFF}")
        for q in range(MRED):
            e(f"ds_read_b128 {rng(AH+16*q+4*var,4,'a')}, v{vT0} offset:{LN9+768+64*q}")
e("s_waitcnt vmcnt(0)")
stamp()
pre = [o for o in pre_ops if o.kind in VALUK and not o.text.startswith("v_lshl_add_u32")]
pre2 = [Op(o.text, o.kind, o.R, o.W, prio=i) for i, o in enumerate(sorted(pre, key=lambda o: o.seq))]
po, _ = schedule(pre2); assert verify(po) == 0
for s in finalize(po): e(s)
e("s_waitcnt lgkmcnt(0)")
e("s_nop 1")
L.append(".p2align 6"); L.append("L_loop:")
stamp_it = DBG
if DBG: e("s_lshl_b32 s34, s22, 1"); e("s_mov_b32 m0, s34"); e("s_memrealtime s[36:37]"); e("s_waitcnt lgkmcnt(0)"); e(f"s_movreld_b32 s{40+2*NST[0]}, s36"); lo = NST[0]; NST[0] += 4
for s in body: e(s)
e(f"s_add_u32 s{S_IT}, s{S_IT}, 1"); e(f"s_cmp_lt_u32 s{S_IT}, {int(opts.get('iters', 4))}"); e("s_cbranch_scc1 L_loop")
stamp()
e("s_nop 7")
ops = []; IT[0] = 0; at(0, 1)
for o in sorted(post_ops, key=lambda o: o.seq):
    if getattr(o, "rot", False): continue
    valu(o.text, o.R, o.W, o.kind, cost=o.cost)
add(NUM, NUM, DEN)
swap(16, TC, TB); add(TC, TC, TB); swap(16, TA, NUM); add(TA, TA, NUM)
for c in (8, 4, 2, 1):
    for r in (TC, TA): valu(f"v_add_f32_dpp v{r}, v{r}, v{r} row_ror:{c} {FULL}", [f"v{r}"], [f"v{r}"], "dpp")
swap(32, TC, TA)
valu(f"v_rcp_f32 v{TA}, v{TA}", [f"v{TA}"], [f"v{TA}"], "trans", cost=2)
valu(f"v_mul_f32 v{TC}, v{TC}, v{TA}", [f"v{TC}", f"v{TA}"], [f"v{TC}"])
valu(f"v_cvt_pk_bf16_f32 v{TC}, v{TC}, v{TC}", [f"v{TC}"], [f"v{TC}"])
to, _ = schedule(ops); assert verify(to) == 0
print("tail est", est_cycles(to), "pre est", est_cycles(po), file=sys.stderr)
for s in finalize(to): e(s)
stamp()
if DBG == 1:
    e("s_load_dwordx2 s[36:37], s[0:1], 80"); e("s_waitcnt lgkmcnt(0)")
    e("s_lshl_b32 s3, s3, 4"); e(f"v_mov_b32 v1, s3")
    for k in range(NST[0]):
        e(f"v_mov_b32 v2, s{40+2*k}"); e(f"global_store_dword v1, v2, s[36:37] offset:{4*k}")
    e(f"v_mov_b32 v2, {NST[0]}"); e(f"global_store_dword v1, v2, s[36:37] offset:124")
e(f"s_mov_b64 exec, s[{S_OM}:{S_OM+1}]")
e(f"global_store_short v{OOFF}, v{TC}, s[{S_OUT}:{S_OUT+1}]")
L.append("L_done:")
e("s_endpgm")
L.append("L_end:")
L += ['.section .rodata,"a"', ".p2align 6", ".amdhsa_kernel %s_kernel" % NAME,
      "  .amdhsa_next_free_vgpr 512", "  .amdhsa_next_free_sgpr %d" % (100 if DBG else 40), "  .amdhsa_accum_offset 256",
      "  .amdhsa_group_segment_fixed_size 0", "  .amdhsa_kernarg_size 88", "  .amdhsa_user_sgpr_count 2",
      "  .amdhsa_user_sgpr_kernarg_segment_ptr 1", "  .amdhsa_system_sgpr_workgroup_id_x 1",
      "  .amdhsa_float_denorm_mode_32 3",
      ".end_amdhsa_kernel"]
print("\n".join(L))
```

```python
import sys, math, struct
from sched import *
NAME = "standalone__factorization_afm__recsys"
opts = dict(a.split("=") for a in sys.argv[1:] if "=" in a)
MRED = int(opts.get("m", 0))
LAT_FAR = int(opts.get("latfar", 560)); LAT_NEAR = int(opts.get("latnear", 300))
DBG = int(opts.get("dbg", 0)); PF = int(opts.get("pf", 1))
YT = [6,0,4,4,2,3,6,9,3,7,0,1,8,5,3,4]
ZT = [5,2,7,7,9,7,1,0,1,5,4,8,2,9,6,8]
K10 = [("", lambda n: n), ("quad_perm:[1,0,3,2]", lambda n: n ^ 1), ("quad_perm:[2,3,0,1]", lambda n: n ^ 2)]
seen = set(); inval = 0
for k, (_, pi) in enumerate(K10):
    for n in range(16):
        a, b = ZT[n], YT[pi(n)]; key = (min(a, b), max(a, b))
        if a == b or key in seen: inval |= 1 << (16 * k + n)
        else: seen.add(key)
assert len(seen) == 45
POS = [YT.index(c) for c in range(10)]
FULL = "row_mask:0xf bank_mask:0xf"
BIAS = 0; VX = 32; VY = 64; VZ = 96; F = [128, 144]; TMP = 160; ACC = 168; RR = 184; D9 = 192; D9M = 212
MASKC = 216; RF = 220
H = 232; NEGINF = 234; MX = 235; NUM = 236; DEN = 237; TA = 238; TB = 239; TC = 240; E0 = 241; S0 = 242
IDX = 243; OX = 246; OY = 247; OZ = 248; GOFF = 249; OOFF = 250; VCS = 251; PFR = 252
AW = 0; AN9 = 128; AH = 192
S_IDX = 4; S_TAB = 6; S_W = 8; S_B = 10; S_H = 12; S_P = 14; S_OUT = 16; S_WAVE = 18; S_MA = 20; S_MAX = 24; S_T = 26; S_OM = 30; S_IT = 22; S_INC = 23; S_IXC = 38
LN9 = 32768
CSC = 0.5 * math.log2(math.e)
def f32(x): return "0x%08x" % struct.unpack("<I", struct.pack("<f", x))[0]
L = []
def e(s): L.append("    " + s)
hdr = open("cdna_kernels/%s.s.ref" % NAME).read().split("\n")
for line in hdr:
    if line.startswith("; @launch"):
        L.append("; @launch grid=(256,1,1) block=(256,1,1) lds=34816"); break
    L.append(line)
L += ['.amdgcn_target "amdgcn-amd-amdhsa--gfx950"', ".text", ".globl %s_kernel" % NAME, ".p2align 8",
      ".type %s_kernel,@function" % NAME, "%s_kernel:" % NAME]
NST = [0]
def stamp():
    if DBG: e(f"s_memrealtime s[{40+2*NST[0]}:{41+2*NST[0]}]"); NST[0] += 1
PER = 36 + MRED; NSTEP = 21; PIT = PER * NSTEP
ops = []
TT = [0.0, 0.0]; IT = [0]
def at(t, inc): TT[0] = t; TT[1] = inc
def push(o): o.it = IT[0]; ops.append(o); return o
def valu(text, R, W, kind="valu", **kw):
    o = Op(text, kind, R, W, prio=round(TT[0] + 1e-4, 3), **kw); TT[0] += TT[1]; return push(o)
def view_load(raw, ireg):
    return [valu(f"global_load_dwordx4 {rng(raw+4*q,4)}, v{ireg}, s[{S_TAB}:{S_TAB+1}] offset:{64*q}", [f"v{ireg}"], vr(raw+4*q,4), "vmem") for q in range(4)]
def wait_for(regs, ls, lat):
    return push(Op("wait", "wait", R=regs, W=regs, covers=ls, lat=lat, prio=round(TT[0] + 1e-4, 3)))
def unpack(V, raw):
    for q in range(16):
        s = raw + q
        valu(f"v_lshlrev_b32 v{V+2*q}, 16, v{s}", [f"v{s}"], [f"v{V+2*q}"])
        valu(f"v_and_b32 v{V+2*q+1}, 0xffff0000, v{s}", [f"v{s}"], [f"v{V+2*q+1}"])
def form(fb, P, ctrl, Q, gs):
    at((gs - 1) * PER + 0.2, (PER - 2.5) / 48)
    for i in range(32):
        d = TMP + i % 8
        if ctrl: valu(f"v_mul_f32_dpp v{d}, v{P+i}, v{Q+i} {ctrl} {FULL}", [f"v{P+i}", f"v{Q+i}"], [f"v{d}"], "dpp")
        else: valu(f"v_mul_f32 v{d}, v{P+i}, v{Q+i}", [f"v{P+i}", f"v{Q+i}"], [f"v{d}"])
        if i % 2: valu(f"v_cvt_pk_bf16_f32 v{fb+i//2}, v{d-1}, v{d}", [f"v{d-1}", f"v{d}"], [f"v{fb+i//2}"])
def mm(D, A, B, ct, cr):
    push(mfma(f"v_mfma_f32_16x16x32_bf16 {rng(D,4)}, {rng(A,4,'a')}, {rng(B,4)}, {ct}", vr(D,4), vr(A,4,'a'), vr(B,4), cr))
def step_mm(fb, r, d9, var, cinit, gs):
    pos = gs * PER
    def ninth():
        for ks in range(4):
            if ks == 0 and cinit is not None: ct, cr = ("0", []) if cinit == 0 else (rng(cinit, 4), vr(cinit, 4))
            else: ct, cr = rng(d9, 4), vr(d9, 4)
            mm(d9, AN9 + 16 * var + 4 * ks, fb + 4 * ks, ct, cr)
    first = True
    for t in range(8):
        acc = ACC + 4 * (t % 4)
        for ks in range(4):
            c = BIAS + 4 * t if ks == 0 else acc
            mm(acc, AW + (t * 4 + ks) * 4, fb + 4 * ks, rng(c, 4), vr(c, 4))
        pos += 4
        q = t // 2
        if q < MRED:
            at(pos + 2.1, 1.0)
            for c in range(2):
                d = RF + 4 * q + 2 * (t % 2) + c
                valu(f"v_cvt_pk_bf16_f32 v{d}, |v{acc+2*c}|, |v{acc+2*c+1}|", [f"v{acc+2*c}", f"v{acc+2*c+1}"], [f"v{d}"])
        else:
            at(pos + 2.1, 1.0)
            for k in range(4):
                i = 4 * t + k
                if first: valu(f"v_mul_f32_dpp v{r}, v{H+i//16}, |v{acc+k}| row_newbcast:{i%16} {FULL}", [f"v{H+i//16}", f"v{acc+k}"], [f"v{r}"], "dpp"); first = False
                else: valu(f"v_fmac_f32_dpp v{r}, v{H+i//16}, |v{acc+k}| row_newbcast:{i%16} {FULL}", [f"v{H+i//16}", f"v{acc+k}", f"v{r}"], [f"v{r}"], "dpp")
        if MRED and t == 1: ninth(); pos += 4
        if MRED and t % 2 == 1 and t >= 3 and (t - 3) // 2 < MRED:
            qq = (t - 3) // 2
            mm(d9, AH + 16 * qq + 4 * var, RF + 4 * qq, rng(d9, 4), vr(d9, 4)); pos += 1
    if not MRED: ninth()
def swap(w, a, b): valu(f"v_permlane{w}_swap_b32 v{a}, v{b}", [f"v{a}", f"v{b}"], [f"v{a}", f"v{b}"], "perm")
def add(d, a, b): valu(f"v_add_f32 v{d}, v{a}, v{b}", [f"v{a}", f"v{b}"], [f"v{d}"])
def mov(d, a): valu(f"v_mov_b32 v{d}, v{a}", [f"v{a}"], [f"v{d}"])
def tred(r):
    swap(32, r, r+2); add(r, r, r+2); swap(32, r+1, r+3); add(r+1, r+1, r+3); swap(16, r, r+1); add(r, r, r+1)
def softmax(ES, last):
    E = [x[0] for x in ES]
    valu(f"v_max3_f32 v{MX}, v{E[0]}, v{E[1]}, v{E[2]}", [f"v{x}" for x in E[:3]], [f"v{MX}"])
    valu(f"v_max3_f32 v{MX}, v{MX}, v{E[3]}, v{E[4]}", [f"v{MX}", f"v{E[3]}", f"v{E[4]}"], [f"v{MX}"])
    valu(f"v_max_f32 v{MX}, v{MX}, v{E[5]}", [f"v{MX}", f"v{E[5]}"], [f"v{MX}"])
    for c in ("row_ror:8 " + FULL, "row_ror:4 " + FULL, "row_ror:2 " + FULL, "row_ror:1 " + FULL, "row_bcast:15 row_mask:0xa bank_mask:0xf", "row_bcast:31 row_mask:0xc bank_mask:0xf"):
        valu(f"v_max_f32_dpp v{MX}, v{MX}, v{MX} {c}", [f"v{MX}"], [f"v{MX}"], "dpp")
    valu(f"v_mul_f32 v{MX}, v{VCS}, v{MX}", [f"v{MX}", f"v{VCS}"], [f"v{MX}"])
    valu(f"v_readlane_b32 s{S_MAX}, v{MX}, 63", [f"v{MX}"], [f"s{S_MAX}"], "readlane")
    for i, (x, s) in enumerate(ES):
        valu(f"v_fma_f32 v{x}, v{x}, v{VCS}, -s{S_MAX}", [f"s{S_MAX}", f"v{x}", f"v{VCS}"], [f"v{x}"])
        valu(f"v_exp_f32 v{x}, v{x}", [f"v{x}"], [f"v{x}"], "trans", cost=2)
        if i == 0: valu(f"v_mul_f32 v{NUM}, v{x}, v{s}", [f"v{x}", f"v{s}"], [f"v{NUM}"])
        else: valu(f"v_fmac_f32 v{NUM}, v{x}, v{s}", [f"v{x}", f"v{s}", f"v{NUM}"], [f"v{NUM}"])
        if i == 1: add(DEN, ES[0][0], x)
        elif i > 1: add(DEN, DEN, x)
    swap(32, NUM, DEN)
    o1 = len(ops); mov(TC, TB); mov(TB, TA); add(TA, NUM, DEN)
    for o in ops[o1:]: o.rot = True
def salu(text, R, W): return valu(text, R, W, "salu")
STEPS = [("star", c) for c in range(8)] + [("k10", k) for k in range(3)] + [("star", 8), ("star", 9)] + [("ror", t) for t in (1, 2, 3)] + [("ror8", 8)] + [("ror", t) for t in (4, 5, 6, 7)]
def do_form(si, gs):
    kind, a = STEPS[si]
    reg = si if si < 16 else si - 1
    fb = VZ if kind == "ror8" else F[reg % 2]
    if kind == "star": form(fb, VY, f"row_newbcast:{POS[a]}", VX, gs)
    elif kind == "k10": form(fb, VY, K10[a][0], VZ, gs)
    else: form(fb, VX, f"row_ror:{a}", VX, gs)
    return fb
NIT = 4
for it in range(NIT):
    IT[0] = it; base = it * NSTEP
    tiles = []
    at(base * PER + 1, 1.0); lz = view_load(VZ + 16, IDX + 2)
    for o in lz: o.nb = base * PER
    IT[0] = it + 1
    at(base * PER + 8, 2.0)
    salu(f"s_add_u32 s{S_INC}, s{S_IT}, 1", [f"s{S_IT}"], [f"s{S_INC}", "scc"]); salu(f"s_and_b32 s{S_INC}, s{S_INC}, 3", [f"s{S_INC}"], [f"s{S_INC}", "scc"])
    salu(f"s_mul_i32 s{S_INC}, s{S_INC}, 104", [f"s{S_INC}"], [f"s{S_INC}"])
    salu(f"s_add_u32 s{S_IXC}, s{S_IDX}, s{S_INC}", [f"s{S_IDX}", f"s{S_INC}"], [f"s{S_IXC}", "scc"]); salu(f"s_addc_u32 s{S_IXC+1}, s{S_IDX+1}, 0", [f"s{S_IDX+1}", "scc"], [f"s{S_IXC+1}", "scc"])
    li = [valu(f"global_load_dword v{IDX+k}, v{[OX,OY,OZ][k]}, s[{S_IXC}:{S_IXC+1}] offset:{64 if k else 0}", [f"v{[OX,OY,OZ][k]}", f"s{S_IXC}", f"s{S_IXC+1}"], [f"v{IDX+k}"], "vmem") for k in range(3)]
    for o in ops[-8:]: o.nb = base * PER
    IT[0] = it
    grp = 0
    for si in range(NSTEP):
        gs = base + si
        kind, a = STEPS[si]
        if si == 8:
            at((gs - 5) * PER, 3.5 * PER / 32); wait_for(vr(VZ+16,16), lz, LAT_NEAR); unpack(VZ, VZ + 16)
            IT[0] = it + 1
            at((gs - 1) * PER, 2.0); wait_for(vr(IDX,3), li, LAT_NEAR)
            for k in range(3): valu(f"v_lshl_add_u32 v{IDX+k}, v{IDX+k}, 8, v{GOFF}", [f"v{IDX+k}", f"v{GOFF}"], [f"v{IDX+k}"])
            IT[0] = it
        if si > 0 or it == 0: fb = do_form(si, gs)
        else: fb = F[0]
        if si == 10: IT[0] = it + 1; at(-1e9, 0); lx = view_load(VZ + 16, IDX); IT[0] = it
        if si == 12: IT[0] = it + 1; at(-1e9, 0); ly = view_load(VY + 16, IDX + 1); IT[0] = it
        if si == NSTEP - 1:
            IT[0] = it + 1
            at((gs - 4.2) * PER, 2.6 * PER / 32); wait_for(vr(VY+16,16), ly, LAT_FAR); unpack(VY, VY + 16)
            at((gs - 1) * PER + 3, (PER - 2.5) / 36); wait_for(vr(VZ+16,16), lx, LAT_FAR); unpack(VX, VZ + 16)
            do_form(0, gs + 1)
            IT[0] = it
        if kind == "ror8":
            rb = RR + 4 * (grp % 2); grp += 1
            step_mm(fb, rb, D9M, 0, 0, gs)
            at((gs + 1) * PER + 4, 2.0)
            swap(32, rb, rb+2); add(rb, rb, rb+2); swap(16, rb, rb+1); add(rb, rb, rb+1)
            add(D9M, D9M, D9M + 2); add(D9M, D9M, rb)
            valu(f"v_cndmask_b32 v{D9M}, v{NEGINF}, v{D9M}, s[{S_MA}:{S_MA+1}]", [f"v{NEGINF}", f"v{D9M}"], [f"v{D9M}"])
            tiles.append((D9M, D9M + 1))
        else:
            reg = si if si < 16 else si - 1
            var = reg % 4
            if var == 0: d9 = D9 + 4 * (reg // 4); rb = RR + 4 * (grp % 2); grp += 1
            step_mm(fb, rb + var, d9, var, (MASKC if reg == 8 else 0) if var == 0 else None, gs)
            if var == 3:
                at((gs + 1) * PER + 4, 3.0); tred(rb); add(d9, d9, d9 + 2)
                if reg == 3: add(E0, d9, rb); mov(S0, d9 + 1); tiles.append((E0, S0))
                else: add(d9, d9, rb); tiles.append((d9, d9 + 1))
    at((base + NSTEP) * PER + 28, 2.0)
    softmax(tiles, it == NIT - 1)
out, st = schedule(ops)
bad = verify(out)
assert bad == 0
lines = finalize(out)
cuts = [i for i, o in enumerate(out) if o.kind == "mfma" and o.g % PIT == 0]
s1 = lines[cuts[1]:cuts[2]]; s2 = lines[cuts[2]:cuts[3]]
if s1 != s2:
    for i, (a, b) in enumerate(zip(s1, s2)):
        if a != b: print("diff at", i, len(s1), len(s2), s1[i-3:i+3], s2[i-3:i+3], file=sys.stderr); break
    raise SystemExit("body not periodic")
body = s1; bops = out[cuts[1]:cuts[2]]
pre_ops = [o for o in out[:cuts[1]] if o.kind != "nop" and o.it >= 1]
post_ops = [o for o in bops if o.kind != "nop" and o.it == 0]
assert sum(1 for o in pre_ops if o.kind == 'vmem') == 11 and sum(1 for o in pre_ops if o.kind == 'salu') == 5
print(st, "body len", len(body), "est cycles/iter", est_cycles(bops), "pre", len(pre_ops), "post", len(post_ops), "nops in body", sum(1 for o in bops if o.kind == "nop"), file=sys.stderr)
e("s_cmp_ge_u32 s2, 256"); e("s_cbranch_scc1 L_done")
stamp()
e("s_load_dwordx4 s[4:7], s[0:1], 0"); e("s_load_dwordx4 s[8:11], s[0:1], 32")
e("s_load_dwordx4 s[12:15], s[0:1], 48"); e("s_load_dwordx2 s[16:17], s[0:1], 64")
T = D9
vN, vG, vL, vW0, vW1, vWN0, vWN1, vT0, vT1, vT2, vTR, vNA = T, T+1, T+2, T+3, T+4, T+5, T+6, T+8, T+9, T+10, T+12, T+20
vm = []
def vmem(s, tag): e(s); vm.append(tag)
def vwait(tag):
    last = max(i for i, t in enumerate(vm) if t == tag)
    e(f"s_waitcnt vmcnt({len(vm) - 1 - last})")
if PF:
    e("s_getpc_b64 s[32:33]")
    e(f"v_lshlrev_b32 v{vT2}, 7, v0")
    e(f"v_min_u32 v{vT2}, L_end-L_pfbase-4, v{vT2}")
    L.insert(len(L) - 2, "L_pfbase:")
    vmem(f"global_load_dword v{PFR}, v{vT2}, s[32:33]", "pf")
e(f"v_lshrrev_b32 v{vT0}, 6, v0")
e(f"v_and_b32 v{vN}, 15, v0")
e(f"v_readfirstlane_b32 s{S_WAVE}, v{vT0}")
e(f"v_bfe_u32 v{vG}, v0, 4, 2")
e(f"v_and_b32 v{vL}, 63, v0")
def nib(tab): return sum(v << (4 * i) for i, v in enumerate(tab))
e(f"s_mov_b32 s{S_T}, 0x{nib(YT) & 0xffffffff:08x}"); e(f"s_mov_b32 s{S_T+1}, 0x{nib(YT) >> 32:08x}")
e(f"s_mov_b32 s{S_T+2}, 0x{nib(ZT) & 0xffffffff:08x}"); e(f"s_mov_b32 s{S_T+3}, 0x{nib(ZT) >> 32:08x}")
e(f"s_lshl_b32 s3, s2, 2"); e(f"s_add_u32 s3, s3, s{S_WAVE}")
e(f"s_mul_i32 s19, s3, 416")
e(f"v_lshlrev_b32 v{OX}, 2, v{vN}")
e(f"v_lshrrev_b64 v[{vT0}:{vT0+1}], v{OX}, s[{S_T}:{S_T+1}]")
e(f"v_and_b32 v{OY}, 15, v{vT0}")
e(f"v_lshrrev_b64 v[{vT0}:{vT0+1}], v{OX}, s[{S_T+2}:{S_T+3}]")
e(f"v_and_b32 v{OZ}, 15, v{vT0}")
e(f"v_add_u32 v{OX}, s19, v{OX}")
e(f"v_lshl_add_u32 v{OY}, v{OY}, 2, s19")
e(f"v_lshl_add_u32 v{OZ}, v{OZ}, 2, s19")
e(f"v_lshlrev_b32 v{GOFF}, 4, v{vG}")
e(f"s_lshl_b32 s{S_T}, s{S_WAVE}, 13")
e(f"v_lshrrev_b32 v{vT0}, 1, v{vN}")
e(f"v_xor_b32 v{vT0}, v{vT0}, v{vG}")
e(f"v_lshlrev_b32 v{vT0}, 5, v{vT0}")
e(f"v_and_b32 v{vT1}, 1, v0")
e(f"v_lshl_add_u32 v{vT0}, v{vT1}, 4, v{vT0}")
e(f"v_lshl_add_u32 v{vT0}, v{vG}, 8, v{vT0}")
e(f"v_add_u32 v{vW0}, s{S_T}, v{vT0}")
e(f"v_xor_b32 v{vW1}, 0x80, v{vW0}")
e(f"v_lshl_add_u32 v{vWN0}, v{vN}, 8, v{GOFF}")
e(f"v_add_u32 v{vWN0}, s{S_T}, v{vWN0}")
e(f"v_add_u32 v{vWN1}, 0x1000, v{vWN0}")
e(f"s_mov_b32 m0, s{S_T}")
e("s_waitcnt lgkmcnt(0)")
stamp()
for k in range(3): vmem(f"global_load_dword v{IDX+k}, v{[OX,OY,OZ][k]}, s[{S_IDX}:{S_IDX+1}] offset:{64 if k else 0}", "idx0")
for half in range(2):
    for q in range(4):
        vmem(f"global_load_lds_dwordx4 v{vW1 if q & 2 else vW0}, s[{S_W}:{S_W+1}] offset:{1024*q}", "wdma")
    if half == 0:
        e(f"s_add_u32 s{S_T+1}, s{S_T}, 0x1000"); e(f"v_add_u32 v{vW0}, 0x1000, v{vW0}"); e(f"s_mov_b32 m0, s{S_T+1}"); e(f"v_add_u32 v{vW1}, 0x1000, v{vW1}")
WN = F[0]; HB = ACC; WHA = RR
for ks in range(4): vmem(f"global_load_dwordx4 {rng(HB+4*ks,4)}, v{GOFF}, s[{S_H}:{S_H+1}] offset:{64*ks}", "wn")
for uu in range(2):
    for ks in range(4): vmem(f"global_load_dwordx4 {rng(WN+16*uu+4*ks,4)}, v{vWN1 if uu else vWN0}, s[{S_W}:{S_W+1}] offset:{64*ks}", "wn")
e(f"v_lshlrev_b32 v{vL}, 2, v{vL}")
vmem(f"global_load_dword v{TMP}, v{vL}, s[{S_P}:{S_P+1}]", "small")
e(f"v_lshrrev_b32 v{vT0}, 2, v{vN}"); e(f"v_lshlrev_b32 v{vT0}, 5, v{vT0}")
e(f"v_and_b32 v{vT1}, 3, v{vN}"); e(f"v_lshl_add_u32 v{vT0}, v{vT1}, 1, v{vT0}")
e(f"v_lshlrev_b32 v{vT1}, 3, v{vG}"); e(f"v_add_u32 v{vT0}, v{vT0}, v{vT1}")
for q in range(2): vmem(f"global_load_ushort v{H+q}, v{vT0}, s[{S_H}:{S_H+1}] offset:{128*q}", "small")
for t in range(8): vmem(f"global_load_dwordx2 {rng(BIAS+16+2*t,2)}, v{vT1}, s[{S_B}:{S_B+1}] offset:{32*t}", "small")
TOUCH = int(opts.get("touch", 0))
if TOUCH:
    e(f"v_lshrrev_b32 v{vT0}, 3, v{vL}"); e(f"v_min_u32 v{vT0}, 25, v{vT0}"); e(f"v_lshl_add_u32 v{vT0}, v{vT0}, 2, s19")
    for el in range(1, 4): vmem(f"global_load_dword v{252+el}, v{vT0}, s[{S_IDX}:{S_IDX+1}] offset:{104*el}", "tidx")
vwait("idx0"); stamp()
for k in range(3): e(f"v_lshl_add_u32 v{IDX+k}, v{IDX+k}, 8, v{GOFF}")
for k, raw in ((0, VZ + 16), (1, VY + 16)):
    for q in range(4): vmem(f"global_load_dwordx4 {rng(raw+4*q,4)}, v{IDX+k}, s[{S_TAB}:{S_TAB+1}] offset:{64*q}", f"view{k}")
e(f"v_mov_b32 v{NEGINF}, 0xff800000")
e(f"v_mov_b32 v{VCS}, {f32(CSC)}")
for r in range(4): e(f"v_mov_b32 v{MASKC+r}, 0")
e(f"s_mov_b32 s{S_MA}, 0x{inval & 0xffffffff:08x}"); e(f"s_mov_b32 s{S_MA+1}, 0x{inval >> 32:08x}")
e(f"v_cndmask_b32 v{MASKC}, v{MASKC}, v{NEGINF}, s[{S_MA}:{S_MA+1}]")
e(f"s_mov_b32 s{S_MA}, 0xff"); e(f"s_mov_b32 s{S_MA+1}, 0"); e(f"s_mov_b32 s{S_IT}, 0")
e(f"s_mov_b32 s{S_OM}, 0x00010001"); e(f"s_mov_b32 s{S_OM+1}, 0x00010001")
e(f"s_lshl_b32 s3, s3, 3"); e(f"v_lshl_add_u32 v{OOFF}, v{vG}, 1, s3")
e(f"v_lshrrev_b32 v{vT0}, 2, v{vN}")
e(f"v_and_b32 v{vT1}, 1, v{vG}"); e(f"v_lshl_or_b32 v{vT1}, v{vT1}, 2, v{vT0}")
e(f"v_lshl_add_u32 v{vT0}, v{vG}, 3, v{vT0}"); e(f"v_lshlrev_b32 v{vT0}, 8, v{vT0}")
e(f"v_lshl_add_u32 v{vT0}, v{vT1}, 5, v{vT0}")
e(f"v_and_b32 v{vT1}, 3, v{vN}"); e(f"v_lshl_add_u32 v{vTR}, v{vT1}, 3, v{vT0}")
for t in range(1, 8): e(f"v_xor_b32 v{vTR+t}, {t << 5}, v{vTR}")
vwait("wn"); stamp()
for uu in range(2):
    for ks in range(4):
        c = "0" if ks == 0 else rng(WHA+4*uu, 4)
        e(f"v_mfma_f32_16x16x32_bf16 {rng(WHA+4*uu,4)}, {rng(HB+4*ks,4)}, {rng(WN+16*uu+4*ks,4)}, {c}")
vwait("small")
if TOUCH:
    vwait("tidx")
    e(f"v_and_b32 v{vT0}, 4, v{vL}"); e(f"v_lshlrev_b32 v{vT0}, 5, v{vT0}")
    for el in range(1, 4):
        e(f"v_lshl_add_u32 v{252+el}, v{252+el}, 8, v{vT0}")
        vmem(f"global_load_dword v{252+el}, v{252+el}, s[{S_TAB}:{S_TAB+1}]", "touch")
e(f"v_add_u32 v{vL}, {LN9}, v{vL}")
e(f"ds_write_b32 v{vL}, v{TMP} offset:256")
e(f"ds_write_b32 v{vL}, v{MASKC+1} offset:768")
if MRED:
    e(f"v_lshrrev_b32 v{vT0}, 3, v{vN}"); e(f"v_lshlrev_b32 v{vT0}, 6, v{vT0}"); e(f"v_and_b32 v{vT1}, 7, v{vN}")
    e(f"v_lshl_add_u32 v{vT0}, v{vT1}, 1, v{vT0}"); e(f"v_add_u32 v{vT0}, v{vT0}, v{GOFF}")
    for q in range(2): e(f"ds_write_b16 v{vT0}, v{H+q} offset:{LN9+1024+128*q}")
for q in range(2): e(f"v_lshlrev_b32 v{H+q}, 16, v{H+q}")
e(f"s_lshl_b32 s{S_T+1}, s{S_WAVE}, 6"); e(f"s_add_u32 s{S_T+1}, s{S_T+1}, {LN9}")
e(f"v_lshl_add_u32 v{vT2}, v{vN}, 1, s{S_T+1}")
e("s_nop 1")
for uu in range(2):
    a = WHA + 4 * uu
    e(f"v_cvt_pk_bf16_f32 v{a+1}, v{a}, v{a}")
    e(f"v_lshlrev_b32 v{a+2}, 16, v{a+1}")
    e(f"v_sub_f32 v{a+2}, v{a}, v{a+2}")
    e(f"v_cvt_pk_bf16_f32 v{a+2}, v{a+2}, v{a+2}")
    e(f"ds_write_b16 v{vT2}, v{a+1} offset:{32*uu}")
    e(f"ds_write_b16 v{vT2}, v{a+2} offset:{512+32*uu}")
for q in range(16):
    s = BIAS + 16 + q
    e(f"v_lshlrev_b32 v{BIAS+2*q}, 16, v{s}"); e(f"v_and_b32 v{BIAS+2*q+1}, 0xffff0000, v{s}")
for var in range(4):
    e(f"v_subrev_u32 v{vNA+var}, {4*var}, v{vN}"); e(f"v_min_u32 v{vNA+var}, 3, v{vNA+var}")
    e(f"v_lshl_add_u32 v{vNA+var}, v{vNA+var}, 8, v{GOFF}")
e("s_waitcnt lgkmcnt(0)")
stamp(); e("s_barrier"); stamp()
for t in range(8):
    for ks in range(4):
        for u in range(2):
            e(f"ds_read_b64_tr_b16 {rng(AW+(t*4+ks)*4+2*u,2,'a')}, v{vTR+t} offset:{8192*ks+1024*u}")
for var in range(4):
    for ks in range(4):
        e(f"ds_read_b128 {rng(AN9+16*var+4*ks,4,'a')}, v{vNA+var} offset:{LN9+64*ks}")
if MRED:
    for var in range(4):
        e(f"v_subrev_u32 v{vT0}, {4*var}, v{vN}"); e(f"v_min_u32 v{vT0}, 1, v{vT0}"); e(f"v_xor_b32 v{vT0}, 1, v{vT0}")
        e(f"v_lshl_add_u32 v{vT0}, v{vT0}, 8, v{GOFF}")
        for q in range(MRED):
            e(f"ds_read_b128 {rng(AH+16*q+4*var,4,'a')}, v{vT0} offset:{LN9+768+64*q}")
vwait("view1")
stamp()
pre = [o for o in pre_ops if o.kind in VALUK and not o.text.startswith("v_lshl_add_u32")]
pre2 = [Op(o.text, o.kind, o.R, o.W, prio=i) for i, o in enumerate(sorted(pre, key=lambda o: o.seq))]
po, _ = schedule(pre2); assert verify(po) == 0
for s in finalize(po): e(s)
e("s_waitcnt lgkmcnt(0)")
e("s_nop 1")
L.append(".p2align 6"); L.append("L_loop:")
stamp_it = DBG
if DBG: e("s_lshl_b32 s34, s22, 1"); e("s_mov_b32 m0, s34"); e("s_memrealtime s[36:37]"); e("s_waitcnt lgkmcnt(0)"); e(f"s_movreld_b32 s{40+2*NST[0]}, s36"); lo = NST[0]; NST[0] += 4
for s in body: e(s)
e(f"s_add_u32 s{S_IT}, s{S_IT}, 1"); e(f"s_cmp_lt_u32 s{S_IT}, {int(opts.get('iters', 4))}"); e("s_cbranch_scc1 L_loop")
stamp()
e("s_nop 7")
ops = []; IT[0] = 0; at(0, 1)
for o in sorted(post_ops, key=lambda o: o.seq):
    if getattr(o, "rot", False): continue
    valu(o.text, o.R, o.W, o.kind, cost=o.cost)
add(NUM, NUM, DEN)
swap(16, TC, TB); add(TC, TC, TB); swap(16, TA, NUM); add(TA, TA, NUM)
for c in (8, 4, 2, 1):
    for r in (TC, TA): valu(f"v_add_f32_dpp v{r}, v{r}, v{r} row_ror:{c} {FULL}", [f"v{r}"], [f"v{r}"], "dpp")
swap(32, TC, TA)
valu(f"v_rcp_f32 v{TA}, v{TA}", [f"v{TA}"], [f"v{TA}"], "trans", cost=2)
valu(f"v_mul_f32 v{TC}, v{TC}, v{TA}", [f"v{TC}", f"v{TA}"], [f"v{TC}"])
valu(f"v_cvt_pk_bf16_f32 v{TC}, v{TC}, v{TC}", [f"v{TC}"], [f"v{TC}"])
to, _ = schedule(ops); assert verify(to) == 0
print("tail est", est_cycles(to), "pre est", est_cycles(po), file=sys.stderr)
for s in finalize(to): e(s)
stamp()
if DBG == 1:
    e("s_load_dwordx2 s[36:37], s[0:1], 80"); e("s_waitcnt lgkmcnt(0)")
    e("s_lshl_b32 s3, s3, 4"); e(f"v_mov_b32 v1, s3")
    for k in range(NST[0]):
        e(f"v_mov_b32 v2, s{40+2*k}"); e(f"global_store_dword v1, v2, s[36:37] offset:{4*k}")
    e(f"v_mov_b32 v2, {NST[0]}"); e(f"global_store_dword v1, v2, s[36:37] offset:124")
e(f"s_mov_b64 exec, s[{S_OM}:{S_OM+1}]")
e(f"global_store_short v{OOFF}, v{TC}, s[{S_OUT}:{S_OUT+1}]")
L.append("L_done:")
e("s_endpgm")
L.append("L_end:")
L += ['.section .rodata,"a"', ".p2align 6", ".amdhsa_kernel %s_kernel" % NAME,
      "  .amdhsa_next_free_vgpr 512", "  .amdhsa_next_free_sgpr %d" % (100 if DBG else 40), "  .amdhsa_accum_offset 256",
      "  .amdhsa_group_segment_fixed_size 0", "  .amdhsa_kernarg_size 88", "  .amdhsa_user_sgpr_count 2",
      "  .amdhsa_user_sgpr_kernarg_segment_ptr 1", "  .amdhsa_system_sgpr_workgroup_id_x 1",
      "  .amdhsa_float_denorm_mode_32 3",
      ".end_amdhsa_kernel"]
print("\n".join(L))
```

```python
import sys, math, struct
from sched import *
NAME = "standalone__factorization_afm__recsys"
opts = dict(a.split("=") for a in sys.argv[1:] if "=" in a)
MRED = int(opts.get("m", 0))
LAT_FAR = int(opts.get("latfar", 560)); LAT_NEAR = int(opts.get("latnear", 300))
DBG = int(opts.get("dbg", 0)); PF = int(opts.get("pf", 1))
YT = [6,0,4,4,2,3,6,9,3,7,0,1,8,5,3,4]
ZT = [5,2,7,7,9,7,1,0,1,5,4,8,2,9,6,8]
K10 = [("", lambda n: n), ("quad_perm:[1,0,3,2]", lambda n: n ^ 1), ("quad_perm:[2,3,0,1]", lambda n: n ^ 2)]
seen = set(); inval = 0
for k, (_, pi) in enumerate(K10):
    for n in range(16):
        a, b = ZT[n], YT[pi(n)]; key = (min(a, b), max(a, b))
        if a == b or key in seen: inval |= 1 << (16 * k + n)
        else: seen.add(key)
assert len(seen) == 45
POS = [YT.index(c) for c in range(10)]
FULL = "row_mask:0xf bank_mask:0xf"
BIAS = 0; VX = 32; VY = 64; VZ = 96; F = [128, 144]; TMP = 160; ACC = 168; RR = 184; D9 = 192; D9M = 212
MASKC = 216; RF = 220
H = 232; NEGINF = 234; MX = 235; NUM = 236; DEN = 237; TA = 238; TB = 239; TC = 240; E0 = 241; S0 = 242
IDX = 243; OX = 246; OY = 247; OZ = 248; GOFF = 249; OOFF = 250; VCS = 251; PFR = 252
AW = 0; AN9 = 128; AH = 192
S_IDX = 4; S_TAB = 6; S_W = 8; S_B = 10; S_H = 12; S_P = 14; S_OUT = 16; S_WAVE = 18; S_MA = 20; S_MAX = 24; S_T = 26; S_OM = 30; S_IT = 22; S_INC = 23; S_IXC = 38
LN9 = 32768
CSC = 0.5 * math.log2(math.e)
def f32(x): return "0x%08x" % struct.unpack("<I", struct.pack("<f", x))[0]
L = []
def e(s): L.append("    " + s)
hdr = open("cdna_kernels/%s.s.ref" % NAME).read().split("\n")
for line in hdr:
    if line.startswith("; @launch"):
        L.append("; @launch grid=(256,1,1) block=(256,1,1) lds=34816"); break
    L.append(line)
L += ['.amdgcn_target "amdgcn-amd-amdhsa--gfx950"', ".text", ".globl %s_kernel" % NAME, ".p2align 8",
      ".type %s_kernel,@function" % NAME, "%s_kernel:" % NAME]
NST = [0]
def stamp():
    if DBG: e(f"s_memrealtime s[{40+2*NST[0]}:{41+2*NST[0]}]"); NST[0] += 1
PER = 36 + MRED; NSTEP = 21; PIT = PER * NSTEP
ops = []
TT = [0.0, 0.0]; IT = [0]
def at(t, inc): TT[0] = t; TT[1] = inc
def push(o): o.it = IT[0]; ops.append(o); return o
def valu(text, R, W, kind="valu", **kw):
    o = Op(text, kind, R, W, prio=round(TT[0] + 1e-4, 3), **kw); TT[0] += TT[1]; return push(o)
def view_load(raw, ireg):
    return [valu(f"global_load_dwordx4 {rng(raw+4*q,4)}, v{ireg}, s[{S_TAB}:{S_TAB+1}] offset:{64*q}", [f"v{ireg}"], vr(raw+4*q,4), "vmem") for q in range(4)]
def wait_for(regs, ls, lat):
    return push(Op("wait", "wait", R=regs, W=regs, covers=ls, lat=lat, prio=round(TT[0] + 1e-4, 3)))
def unpack(V, raw):
    for q in range(16):
        s = raw + q
        valu(f"v_lshlrev_b32 v{V+2*q}, 16, v{s}", [f"v{s}"], [f"v{V+2*q}"])
        valu(f"v_and_b32 v{V+2*q+1}, 0xffff0000, v{s}", [f"v{s}"], [f"v{V+2*q+1}"])
def form(fb, P, ctrl, Q, gs):
    at((gs - 1) * PER + 0.2, (PER - 2.5) / 48)
    for i in range(32):
        d = TMP + i % 8
        if ctrl: valu(f"v_mul_f32_dpp v{d}, v{P+i}, v{Q+i} {ctrl} {FULL}", [f"v{P+i}", f"v{Q+i}"], [f"v{d}"], "dpp")
        else: valu(f"v_mul_f32 v{d}, v{P+i}, v{Q+i}", [f"v{P+i}", f"v{Q+i}"], [f"v{d}"])
        if i % 2: valu(f"v_cvt_pk_bf16_f32 v{fb+i//2}, v{d-1}, v{d}", [f"v{d-1}", f"v{d}"], [f"v{fb+i//2}"])
def mm(D, A, B, ct, cr):
    push(mfma(f"v_mfma_f32_16x16x32_bf16 {rng(D,4)}, {rng(A,4,'a')}, {rng(B,4)}, {ct}", vr(D,4), vr(A,4,'a'), vr(B,4), cr))
def step_mm(fb, r, d9, var, cinit, gs):
    pos = gs * PER
    def ninth():
        for ks in range(4):
            if ks == 0 and cinit is not None: ct, cr = ("0", []) if cinit == 0 else (rng(cinit, 4), vr(cinit, 4))
            else: ct, cr = rng(d9, 4), vr(d9, 4)
            mm(d9, AN9 + 16 * var + 4 * ks, fb + 4 * ks, ct, cr)
    first = True
    for t in range(8):
        acc = ACC + 4 * (t % 4)
        for ks in range(4):
            c = BIAS + 4 * t if ks == 0 else acc
            mm(acc, AW + (t * 4 + ks) * 4, fb + 4 * ks, rng(c, 4), vr(c, 4))
        pos += 4
        q = t // 2
        if q < MRED:
            at(pos + 2.1, 1.0)
            for c in range(2):
                d = RF + 4 * q + 2 * (t % 2) + c
                valu(f"v_cvt_pk_bf16_f32 v{d}, |v{acc+2*c}|, |v{acc+2*c+1}|", [f"v{acc+2*c}", f"v{acc+2*c+1}"], [f"v{d}"])
        else:
            at(pos + 2.1, 1.0)
            for k in range(4):
                i = 4 * t + k
                if first: valu(f"v_mul_f32_dpp v{r}, v{H+i//16}, |v{acc+k}| row_newbcast:{i%16} {FULL}", [f"v{H+i//16}", f"v{acc+k}"], [f"v{r}"], "dpp"); first = False
                else: valu(f"v_fmac_f32_dpp v{r}, v{H+i//16}, |v{acc+k}| row_newbcast:{i%16} {FULL}", [f"v{H+i//16}", f"v{acc+k}", f"v{r}"], [f"v{r}"], "dpp")
        if MRED and t == 1: ninth(); pos += 4
        if MRED and t % 2 == 1 and t >= 3 and (t - 3) // 2 < MRED:
            qq = (t - 3) // 2
            mm(d9, AH + 16 * qq + 4 * var, RF + 4 * qq, rng(d9, 4), vr(d9, 4)); pos += 1
    if not MRED: ninth()
def swap(w, a, b): valu(f"v_permlane{w}_swap_b32 v{a}, v{b}", [f"v{a}", f"v{b}"], [f"v{a}", f"v{b}"], "perm")
def add(d, a, b): valu(f"v_add_f32 v{d}, v{a}, v{b}", [f"v{a}", f"v{b}"], [f"v{d}"])
def mov(d, a): valu(f"v_mov_b32 v{d}, v{a}", [f"v{a}"], [f"v{d}"])
def tred(r):
    swap(32, r, r+2); add(r, r, r+2); swap(32, r+1, r+3); add(r+1, r+1, r+3); swap(16, r, r+1); add(r, r, r+1)
def softmax(ES, last):
    E = [x[0] for x in ES]
    valu(f"v_max3_f32 v{MX}, v{E[0]}, v{E[1]}, v{E[2]}", [f"v{x}" for x in E[:3]], [f"v{MX}"])
    valu(f"v_max3_f32 v{MX}, v{MX}, v{E[3]}, v{E[4]}", [f"v{MX}", f"v{E[3]}", f"v{E[4]}"], [f"v{MX}"])
    valu(f"v_max_f32 v{MX}, v{MX}, v{E[5]}", [f"v{MX}", f"v{E[5]}"], [f"v{MX}"])
    for c in ("row_ror:8 " + FULL, "row_ror:4 " + FULL, "row_ror:2 " + FULL, "row_ror:1 " + FULL, "row_bcast:15 row_mask:0xa bank_mask:0xf", "row_bcast:31 row_mask:0xc bank_mask:0xf"):
        valu(f"v_max_f32_dpp v{MX}, v{MX}, v{MX} {c}", [f"v{MX}"], [f"v{MX}"], "dpp")
    valu(f"v_mul_f32 v{MX}, v{VCS}, v{MX}", [f"v{MX}", f"v{VCS}"], [f"v{MX}"])
    valu(f"v_readlane_b32 s{S_MAX}, v{MX}, 63", [f"v{MX}"], [f"s{S_MAX}"], "readlane")
    for i, (x, s) in enumerate(ES):
        valu(f"v_fma_f32 v{x}, v{x}, v{VCS}, -s{S_MAX}", [f"s{S_MAX}", f"v{x}", f"v{VCS}"], [f"v{x}"])
        valu(f"v_exp_f32 v{x}, v{x}", [f"v{x}"], [f"v{x}"], "trans", cost=2)
        if i == 0: valu(f"v_mul_f32 v{NUM}, v{x}, v{s}", [f"v{x}", f"v{s}"], [f"v{NUM}"])
        else: valu(f"v_fmac_f32 v{NUM}, v{x}, v{s}", [f"v{x}", f"v{s}", f"v{NUM}"], [f"v{NUM}"])
        if i == 1: add(DEN, ES[0][0], x)
        elif i > 1: add(DEN, DEN, x)
    swap(32, NUM, DEN)
    o1 = len(ops); mov(TC, TB); mov(TB, TA); add(TA, NUM, DEN)
    for o in ops[o1:]: o.rot = True
def salu(text, R, W): return valu(text, R, W, "salu")
STEPS = [("star", c) for c in range(8)] + [("k10", k) for k in range(3)] + [("star", 8), ("star", 9)] + [("ror", t) for t in (1, 2, 3)] + [("ror8", 8)] + [("ror", t) for t in (4, 5, 6, 7)]
def do_form(si, gs):
    kind, a = STEPS[si]
    reg = si if si < 16 else si - 1
    fb = VZ if kind == "ror8" else F[reg % 2]
    if kind == "star": form(fb, VY, f"row_newbcast:{POS[a]}", VX, gs)
    elif kind == "k10": form(fb, VY, K10[a][0], VZ, gs)
    else: form(fb, VX, f"row_ror:{a}", VX, gs)
    return fb
NIT = 4
for it in range(NIT):
    IT[0] = it; base = it * NSTEP
    tiles = []
    at(base * PER + 1, 1.0); lz = view_load(VZ + 16, IDX + 2)
    for o in lz: o.nb = base * PER
    IT[0] = it + 1
    at(base * PER + 8, 2.0)
    salu(f"s_add_u32 s{S_INC}, s{S_IT}, 1", [f"s{S_IT}"], [f"s{S_INC}", "scc"]); salu(f"s_and_b32 s{S_INC}, s{S_INC}, 3", [f"s{S_INC}"], [f"s{S_INC}", "scc"])
    salu(f"s_mul_i32 s{S_INC}, s{S_INC}, 104", [f"s{S_INC}"], [f"s{S_INC}"])
    salu(f"s_add_u32 s{S_IXC}, s{S_IDX}, s{S_INC}", [f"s{S_IDX}", f"s{S_INC}"], [f"s{S_IXC}", "scc"]); salu(f"s_addc_u32 s{S_IXC+1}, s{S_IDX+1}, 0", [f"s{S_IDX+1}", "scc"], [f"s{S_IXC+1}", "scc"])
    li = [valu(f"global_load_dword v{IDX+k}, v{[OX,OY,OZ][k]}, s[{S_IXC}:{S_IXC+1}] offset:{64 if k else 0}", [f"v{[OX,OY,OZ][k]}", f"s{S_IXC}", f"s{S_IXC+1}"], [f"v{IDX+k}"], "vmem") for k in range(3)]
    for o in ops[-8:]: o.nb = base * PER
    IT[0] = it
    grp = 0
    for si in range(NSTEP):
        gs = base + si
        kind, a = STEPS[si]
        if si == 8:
            at((gs - 5) * PER, 3.5 * PER / 32); wait_for(vr(VZ+16,16), lz, LAT_NEAR); unpack(VZ, VZ + 16)
            IT[0] = it + 1
            at((gs - 1) * PER, 2.0); wait_for(vr(IDX,3), li, LAT_NEAR)
            for k in range(3): valu(f"v_lshl_add_u32 v{IDX+k}, v{IDX+k}, 8, v{GOFF}", [f"v{IDX+k}", f"v{GOFF}"], [f"v{IDX+k}"])
            IT[0] = it
        if si > 0 or it == 0: fb = do_form(si, gs)
        else: fb = F[0]
        if si == 10: IT[0] = it + 1; at(-1e9, 0); lx = view_load(VZ + 16, IDX); IT[0] = it
        if si == 12: IT[0] = it + 1; at(-1e9, 0); ly = view_load(VY + 16, IDX + 1); IT[0] = it
        if si == NSTEP - 1:
            IT[0] = it + 1
            at((gs - 4.2) * PER, 2.6 * PER / 32); wait_for(vr(VY+16,16), ly, LAT_FAR); unpack(VY, VY + 16)
            at((gs - 1) * PER + 3, (PER - 2.5) / 36); wait_for(vr(VZ+16,16), lx, LAT_FAR); unpack(VX, VZ + 16)
            do_form(0, gs + 1)
            IT[0] = it
        if kind == "ror8":
            rb = RR + 4 * (grp % 2); grp += 1
            step_mm(fb, rb, D9M, 0, 0, gs)
            at((gs + 1) * PER + 4, 2.0)
            swap(32, rb, rb+2); add(rb, rb, rb+2); swap(16, rb, rb+1); add(rb, rb, rb+1)
            add(D9M, D9M, D9M + 2); add(D9M, D9M, rb)
            valu(f"v_cndmask_b32 v{D9M}, v{NEGINF}, v{D9M}, s[{S_MA}:{S_MA+1}]", [f"v{NEGINF}", f"v{D9M}"], [f"v{D9M}"])
            tiles.append((D9M, D9M + 1))
        else:
            reg = si if si < 16 else si - 1
            var = reg % 4
            if var == 0: d9 = D9 + 4 * (reg // 4); rb = RR + 4 * (grp % 2); grp += 1
            step_mm(fb, rb + var, d9, var, (MASKC if reg == 8 else 0) if var == 0 else None, gs)
            if var == 3:
                at((gs + 1) * PER + 4, 3.0); tred(rb); add(d9, d9, d9 + 2)
                if reg == 3: add(E0, d9, rb); mov(S0, d9 + 1); tiles.append((E0, S0))
                else: add(d9, d9, rb); tiles.append((d9, d9 + 1))
    at((base + NSTEP) * PER + 28, 2.0)
    softmax(tiles, it == NIT - 1)
out, st = schedule(ops)
bad = verify(out)
assert bad == 0
lines = finalize(out)
cuts = [i for i, o in enumerate(out) if o.kind == "mfma" and o.g % PIT == 0]
s1 = lines[cuts[1]:cuts[2]]; s2 = lines[cuts[2]:cuts[3]]
if s1 != s2:
    for i, (a, b) in enumerate(zip(s1, s2)):
        if a != b: print("diff at", i, len(s1), len(s2), s1[i-3:i+3], s2[i-3:i+3], file=sys.stderr); break
    raise SystemExit("body not periodic")
body = s1; bops = out[cuts[1]:cuts[2]]
pre_ops = [o for o in out[:cuts[1]] if o.kind != "nop" and o.it >= 1]
post_ops = [o for o in bops if o.kind != "nop" and o.it == 0]
assert sum(1 for o in pre_ops if o.kind == 'vmem') == 11 and sum(1 for o in pre_ops if o.kind == 'salu') == 5
print(st, "body len", len(body), "est cycles/iter", est_cycles(bops), "pre", len(pre_ops), "post", len(post_ops), "nops in body", sum(1 for o in bops if o.kind == "nop"), file=sys.stderr)
e("s_cmp_ge_u32 s2, 256"); e("s_cbranch_scc1 L_done")
stamp()
e("s_load_dwordx4 s[4:7], s[0:1], 0"); e("s_load_dwordx4 s[8:11], s[0:1], 32")
e("s_load_dwordx4 s[12:15], s[0:1], 48"); e("s_load_dwordx2 s[16:17], s[0:1], 64")
T = D9
vN, vG, vL, vW0, vW1, vWN0, vWN1, vT0, vT1, vT2, vTR, vNA = T, T+1, T+2, T+3, T+4, T+5, T+6, T+8, T+9, T+10, T+12, T+20
vm = []
def vmem(s, tag): e(s); vm.append(tag)
def vwait(tag):
    last = max(i for i, t in enumerate(vm) if t == tag)
    e(f"s_waitcnt vmcnt({len(vm) - 1 - last})")
if PF:
    e("s_getpc_b64 s[32:33]")
    e(f"v_lshlrev_b32 v{vT2}, 7, v0")
    e(f"v_min_u32 v{vT2}, L_end-L_pfbase-4, v{vT2}")
    L.insert(len(L) - 2, "L_pfbase:")
    vmem(f"global_load_dword v{PFR}, v{vT2}, s[32:33]", "pf")
e(f"v_lshrrev_b32 v{vT0}, 6, v0")
e(f"v_and_b32 v{vN}, 15, v0")
e(f"v_readfirstlane_b32 s{S_WAVE}, v{vT0}")
e(f"v_bfe_u32 v{vG}, v0, 4, 2")
e(f"v_and_b32 v{vL}, 63, v0")
def nib(tab): return sum(v << (4 * i) for i, v in enumerate(tab))
e(f"s_mov_b32 s{S_T}, 0x{nib(YT) & 0xffffffff:08x}"); e(f"s_mov_b32 s{S_T+1}, 0x{nib(YT) >> 32:08x}")
e(f"s_mov_b32 s{S_T+2}, 0x{nib(ZT) & 0xffffffff:08x}"); e(f"s_mov_b32 s{S_T+3}, 0x{nib(ZT) >> 32:08x}")
e(f"s_lshl_b32 s3, s2, 2"); e(f"s_add_u32 s3, s3, s{S_WAVE}")
e(f"s_mul_i32 s19, s3, 416")
e(f"v_lshlrev_b32 v{OX}, 2, v{vN}")
e(f"v_lshrrev_b64 v[{vT0}:{vT0+1}], v{OX}, s[{S_T}:{S_T+1}]")
e(f"v_and_b32 v{OY}, 15, v{vT0}")
e(f"v_lshrrev_b64 v[{vT0}:{vT0+1}], v{OX}, s[{S_T+2}:{S_T+3}]")
e(f"v_and_b32 v{OZ}, 15, v{vT0}")
e(f"v_add_u32 v{OX}, s19, v{OX}")
e(f"v_lshl_add_u32 v{OY}, v{OY}, 2, s19")
e(f"v_lshl_add_u32 v{OZ}, v{OZ}, 2, s19")
e(f"v_lshlrev_b32 v{GOFF}, 4, v{vG}")
e(f"s_lshl_b32 s{S_T}, s{S_WAVE}, 13")
e(f"v_lshrrev_b32 v{vT0}, 1, v{vN}")
e(f"v_xor_b32 v{vT0}, v{vT0}, v{vG}")
e(f"v_lshlrev_b32 v{vT0}, 5, v{vT0}")
e(f"v_and_b32 v{vT1}, 1, v0")
e(f"v_lshl_add_u32 v{vT0}, v{vT1}, 4, v{vT0}")
e(f"v_lshl_add_u32 v{vT0}, v{vG}, 8, v{vT0}")
e(f"v_add_u32 v{vW0}, s{S_T}, v{vT0}")
e(f"v_xor_b32 v{vW1}, 0x80, v{vW0}")
e(f"v_lshl_add_u32 v{vWN0}, v{vN}, 8, v{GOFF}")
e(f"v_add_u32 v{vWN0}, s{S_T}, v{vWN0}")
e(f"v_add_u32 v{vWN1}, 0x1000, v{vWN0}")
e(f"s_mov_b32 m0, s{S_T}")
e("s_waitcnt lgkmcnt(0)")
stamp()
for k in range(3): vmem(f"global_load_dword v{IDX+k}, v{[OX,OY,OZ][k]}, s[{S_IDX}:{S_IDX+1}] offset:{64 if k else 0}", "idx0")
for half in range(2):
    for q in range(4):
        vmem(f"global_load_lds_dwordx4 v{vW1 if q & 2 else vW0}, s[{S_W}:{S_W+1}] offset:{1024*q}", "wdma")
    if half == 0:
        e(f"s_add_u32 s{S_T+1}, s{S_T}, 0x1000"); e(f"v_add_u32 v{vW0}, 0x1000, v{vW0}"); e(f"s_mov_b32 m0, s{S_T+1}"); e(f"v_add_u32 v{vW1}, 0x1000, v{vW1}")
WN = F[0]; HB = ACC; WHA = RR
for ks in range(4): vmem(f"global_load_dwordx4 {rng(HB+4*ks,4)}, v{GOFF}, s[{S_H}:{S_H+1}] offset:{64*ks}", "wn")
for uu in range(2):
    for ks in range(4): vmem(f"global_load_dwordx4 {rng(WN+16*uu+4*ks,4)}, v{vWN1 if uu else vWN0}, s[{S_W}:{S_W+1}] offset:{64*ks}", "wn")
e(f"v_lshlrev_b32 v{vL}, 2, v{vL}")
vmem(f"global_load_dword v{TMP}, v{vL}, s[{S_P}:{S_P+1}]", "small")
e(f"v_lshrrev_b32 v{vT0}, 2, v{vN}"); e(f"v_lshlrev_b32 v{vT0}, 5, v{vT0}")
e(f"v_and_b32 v{vT1}, 3, v{vN}"); e(f"v_lshl_add_u32 v{vT0}, v{vT1}, 1, v{vT0}")
e(f"v_lshlrev_b32 v{vT1}, 3, v{vG}"); e(f"v_add_u32 v{vT0}, v{vT0}, v{vT1}")
for q in range(2): vmem(f"global_load_ushort v{H+q}, v{vT0}, s[{S_H}:{S_H+1}] offset:{128*q}", "small")
for t in range(8): vmem(f"global_load_dwordx2 {rng(BIAS+16+2*t,2)}, v{vT1}, s[{S_B}:{S_B+1}] offset:{32*t}", "small")
TOUCH = int(opts.get("touch", 0))
if TOUCH:
    e(f"v_lshrrev_b32 v{vT0}, 3, v{vL}"); e(f"v_min_u32 v{vT0}, 25, v{vT0}"); e(f"v_lshl_add_u32 v{vT0}, v{vT0}, 2, s19")
    for el in range(1, 4): vmem(f"global_load_dword v{252+el}, v{vT0}, s[{S_IDX}:{S_IDX+1}] offset:{104*el}", "tidx")
vwait("idx0"); stamp()
for k in range(3): e(f"v_lshl_add_u32 v{IDX+k}, v{IDX+k}, 8, v{GOFF}")
for k, raw in ((0, VZ + 16), (1, VY + 16)):
    for q in range(4): vmem(f"global_load_dwordx4 {rng(raw+4*q,4)}, v{IDX+k}, s[{S_TAB}:{S_TAB+1}] offset:{64*q}", f"view{k}")
e(f"v_mov_b32 v{NEGINF}, 0xff800000")
e(f"v_mov_b32 v{VCS}, {f32(CSC)}")
for r in range(4): e(f"v_mov_b32 v{MASKC+r}, 0")
e(f"s_mov_b32 s{S_MA}, 0x{inval & 0xffffffff:08x}"); e(f"s_mov_b32 s{S_MA+1}, 0x{inval >> 32:08x}")
e(f"v_cndmask_b32 v{MASKC}, v{MASKC}, v{NEGINF}, s[{S_MA}:{S_MA+1}]")
e(f"s_mov_b32 s{S_MA}, 0xff"); e(f"s_mov_b32 s{S_MA+1}, 0"); e(f"s_mov_b32 s{S_IT}, 0")
e(f"s_mov_b32 s{S_OM}, 0x00010001"); e(f"s_mov_b32 s{S_OM+1}, 0x00010001")
e(f"s_lshl_b32 s3, s3, 3"); e(f"v_lshl_add_u32 v{OOFF}, v{vG}, 1, s3")
e(f"v_lshrrev_b32 v{vT0}, 2, v{vN}")
e(f"v_and_b32 v{vT1}, 1, v{vG}"); e(f"v_lshl_or_b32 v{vT1}, v{vT1}, 2, v{vT0}")
e(f"v_lshl_add_u32 v{vT0}, v{vG}, 3, v{vT0}"); e(f"v_lshlrev_b32 v{vT0}, 8, v{vT0}")
e(f"v_lshl_add_u32 v{vT0}, v{vT1}, 5, v{vT0}")
e(f"v_and_b32 v{vT1}, 3, v{vN}"); e(f"v_lshl_add_u32 v{vTR}, v{vT1}, 3, v{vT0}")
for t in range(1, 8): e(f"v_xor_b32 v{vTR+t}, {t << 5}, v{vTR}")
vwait("wn"); stamp()
for uu in range(2):
    for ks in range(4):
        c = "0" if ks == 0 else rng(WHA+4*uu, 4)
        e(f"v_mfma_f32_16x16x32_bf16 {rng(WHA+4*uu,4)}, {rng(HB+4*ks,4)}, {rng(WN+16*uu+4*ks,4)}, {c}")
vwait("small")
if TOUCH:
    vwait("tidx")
    e(f"v_and_b32 v{vT0}, 4, v{vL}"); e(f"v_lshlrev_b32 v{vT0}, 5, v{vT0}")
    for el in range(1, 4):
        e(f"v_lshl_add_u32 v{252+el}, v{252+el}, 8, v{vT0}")
        vmem(f"global_load_dword v{252+el}, v{252+el}, s[{S_TAB}:{S_TAB+1}]", "touch")
e(f"v_add_u32 v{vL}, {LN9}, v{vL}")
e(f"ds_write_b32 v{vL}, v{TMP} offset:256")
e(f"ds_write_b32 v{vL}, v{MASKC+1} offset:768")
if MRED:
    e(f"v_lshrrev_b32 v{vT0}, 3, v{vN}"); e(f"v_lshlrev_b32 v{vT0}, 6, v{vT0}"); e(f"v_and_b32 v{vT1}, 7, v{vN}")
    e(f"v_lshl_add_u32 v{vT0}, v{vT1}, 1, v{vT0}"); e(f"v_add_u32 v{vT0}, v{vT0}, v{GOFF}")
    for q in range(2): e(f"ds_write_b16 v{vT0}, v{H+q} offset:{LN9+1024+128*q}")
for q in range(2): e(f"v_lshlrev_b32 v{H+q}, 16, v{H+q}")
e(f"s_lshl_b32 s{S_T+1}, s{S_WAVE}, 6"); e(f"s_add_u32 s{S_T+1}, s{S_T+1}, {LN9}")
e(f"v_lshl_add_u32 v{vT2}, v{vN}, 1, s{S_T+1}")
e("s_nop 1")
for uu in range(2):
    a = WHA + 4 * uu
    e(f"v_cvt_pk_bf16_f32 v{a+1}, v{a}, v{a}")
    e(f"v_lshlrev_b32 v{a+2}, 16, v{a+1}")
    e(f"v_sub_f32 v{a+2}, v{a}, v{a+2}")
    e(f"v_cvt_pk_bf16_f32 v{a+2}, v{a+2}, v{a+2}")
    e(f"ds_write_b16 v{vT2}, v{a+1} offset:{32*uu}")
    e(f"ds_write_b16 v{vT2}, v{a+2} offset:{512+32*uu}")
for q in range(16):
    s = BIAS + 16 + q
    e(f"v_lshlrev_b32 v{BIAS+2*q}, 16, v{s}"); e(f"v_and_b32 v{BIAS+2*q+1}, 0xffff0000, v{s}")
for var in range(4):
    e(f"v_subrev_u32 v{vNA+var}, {4*var}, v{vN}"); e(f"v_min_u32 v{vNA+var}, 3, v{vNA+var}")
    e(f"v_lshl_add_u32 v{vNA+var}, v{vNA+var}, 8, v{GOFF}")
e("s_waitcnt lgkmcnt(0)")
stamp(); e("s_barrier"); stamp()
for t in range(8):
    for ks in range(4):
        for u in range(2):
            e(f"ds_read_b64_tr_b16 {rng(AW+(t*4+ks)*4+2*u,2,'a')}, v{vTR+t} offset:{8192*ks+1024*u}")
for var in range(4):
    for ks in range(4):
        e(f"ds_read_b128 {rng(AN9+16*var+4*ks,4,'a')}, v{vNA+var} offset:{LN9+64*ks}")
if MRED:
    for var in range(4):
        e(f"v_subrev_u32 v{vT0}, {4*var}, v{vN}"); e(f"v_min_u32 v{vT0}, 1, v{vT0}"); e(f"v_xor_b32 v{vT0}, 1, v{vT0}")
        e(f"v_lshl_add_u32 v{vT0}, v{vT0}, 8, v{GOFF}")
        for q in range(MRED):
            e(f"ds_read_b128 {rng(AH+16*q+4*var,4,'a')}, v{vT0} offset:{LN9+768+64*q}")
vwait("view1")
stamp()
pre = [o for o in pre_ops if o.kind in VALUK and not o.text.startswith("v_lshl_add_u32")]
pre2 = [Op(o.text, o.kind, o.R, o.W, prio=i) for i, o in enumerate(sorted(pre, key=lambda o: o.seq))]
po, _ = schedule(pre2); assert verify(po) == 0
for s in finalize(po): e(s)
e("s_waitcnt lgkmcnt(0)")
e("s_nop 1")
L.append(".p2align 6"); L.append("L_loop:")
stamp_it = DBG
if DBG: e("s_lshl_b32 s34, s22, 1"); e("s_mov_b32 m0, s34"); e("s_memrealtime s[36:37]"); e("s_waitcnt lgkmcnt(0)"); e(f"s_movreld_b32 s{40+2*NST[0]}, s36"); lo = NST[0]; NST[0] += 4
for s in body: e(s)
e(f"s_add_u32 s{S_IT}, s{S_IT}, 1"); e(f"s_cmp_lt_u32 s{S_IT}, {int(opts.get('iters', 4))}"); e("s_cbranch_scc1 L_loop")
stamp()
e("s_nop 7")
ops = []; IT[0] = 0; at(0, 1)
for o in sorted(post_ops, key=lambda o: o.seq):
    if getattr(o, "rot", False): continue
    valu(o.text, o.R, o.W, o.kind, cost=o.cost)
add(NUM, NUM, DEN)
swap(16, TC, TB); add(TC, TC, TB); swap(16, TA, NUM); add(TA, TA, NUM)
for c in (8, 4, 2, 1):
    for r in (TC, TA): valu(f"v_add_f32_dpp v{r}, v{r}, v{r} row_ror:{c} {FULL}", [f"v{r}"], [f"v{r}"], "dpp")
swap(32, TC, TA)
valu(f"v_rcp_f32 v{TA}, v{TA}", [f"v{TA}"], [f"v{TA}"], "trans", cost=2)
valu(f"v_mul_f32 v{TC}, v{TC}, v{TA}", [f"v{TC}", f"v{TA}"], [f"v{TC}"])
valu(f"v_cvt_pk_bf16_f32 v{TC}, v{TC}, v{TC}", [f"v{TC}"], [f"v{TC}"])
to, _ = schedule(ops); assert verify(to) == 0
print("tail est", est_cycles(to), "pre est", est_cycles(po), file=sys.stderr)
for s in finalize(to): e(s)
stamp()
if DBG == 4:
    a_, b_, K_ = int(opts["sa"]), int(opts["sb"]), int(opts["sk"])
    if b_ < 0: b_ += NST[0]
    e("s_waitcnt lgkmcnt(0)")
    e(f"s_sub_u32 s34, s{40+2*b_}, s{40+2*a_}"); e(f"s_mul_i32 s34, s34, {K_}")
    L.append("L_spin:")
    e("s_memrealtime s[36:37]"); e("s_waitcnt lgkmcnt(0)")
    e(f"s_sub_u32 s35, s36, s{40+2*(NST[0]-1)}"); e("s_cmp_lt_u32 s35, s34"); e("s_cbranch_scc1 L_spin")
if DBG == 1:
    e("s_load_dwordx2 s[36:37], s[0:1], 80"); e("s_waitcnt lgkmcnt(0)")
    e("s_lshl_b32 s3, s3, 4"); e(f"v_mov_b32 v1, s3")
    for k in range(NST[0]):
        e(f"v_mov_b32 v2, s{40+2*k}"); e(f"global_store_dword v1, v2, s[36:37] offset:{4*k}")
    e(f"v_mov_b32 v2, {NST[0]}"); e(f"global_store_dword v1, v2, s[36:37] offset:124")
e(f"s_mov_b64 exec, s[{S_OM}:{S_OM+1}]")
e(f"global_store_short v{OOFF}, v{TC}, s[{S_OUT}:{S_OUT+1}]")
L.append("L_done:")
e("s_endpgm")
L.append("L_end:")
L += ['.section .rodata,"a"', ".p2align 6", ".amdhsa_kernel %s_kernel" % NAME,
      "  .amdhsa_next_free_vgpr 512", "  .amdhsa_next_free_sgpr %d" % (100 if DBG else 40), "  .amdhsa_accum_offset 256",
      "  .amdhsa_group_segment_fixed_size 0", "  .amdhsa_kernarg_size 88", "  .amdhsa_user_sgpr_count 2",
      "  .amdhsa_user_sgpr_kernarg_segment_ptr 1", "  .amdhsa_system_sgpr_workgroup_id_x 1",
      "  .amdhsa_float_denorm_mode_32 3",
      ".end_amdhsa_kernel"]
print("\n".join(L))
```

```python
import re, heapq
def vr(b, n=1, p='v'):
    return [f"{p}{b+i}" for i in range(n)]
def rng(b, n, p='v'):
    return f"{p}{b}" if n == 1 else f"{p}[{b}:{b+n-1}]"
class Op:
    def __init__(s, text, kind, R=(), W=(), C=(), covers=None, lat=0, prio=None, cost=1, passes=4):
        s.text = text; s.kind = kind; s.R = list(R); s.W = list(W); s.C = list(C)
        s.covers = covers; s.lat = lat; s.prio = prio; s.cost = cost; s.passes = passes
        s.preds = {}; s.succs = {}; s.pos = None; s.gap = None; s.dl = 1e18; s.nb = -1e18
VALUK = ("valu", "dpp", "trans", "perm", "readlane")
MF_RAW = {2: 5, 4: 8, 8: 12, 16: 20}; MF_COV = {2: 4, 4: 6, 8: 10, 16: 18}; MF_WAR = {2: 1, 4: 3, 8: 7, 16: 15}
def hazard(p, c, typ, reg):
    if typ == "RAW":
        if p.kind in VALUK:
            if reg[0] == 's' or reg == 'vcc':
                if c.kind in VALUK: return 2
                if c.kind in ("vmem",): return 5
                return 1
            if c.kind == "mfma": return 2
            if c.kind in ("dpp", "perm"): return 2
            if c.kind == "readlane": return 1
            if p.kind == "trans" and c.kind in VALUK: return 1
            return 0
        if p.kind == "mfma":
            if c.kind == "mfma":
                if reg in c.C and reg not in c.AB:
                    if c.C == p.W and c.passes == p.passes: return 2 if p.passes == 2 else 0
                    return MF_COV[p.passes]
                return MF_RAW[p.passes]
            return MF_RAW[p.passes]
        return 0
    if typ == "WAW":
        if p.kind == "mfma":
            if c.kind == "mfma":
                return 0 if (c.W == p.W and c.passes == p.passes) else MF_COV[p.passes]
            return MF_RAW[p.passes]
        return 0
    if typ == "WAR":
        if p.kind == "mfma" and reg in p.C and c.kind in VALUK: return MF_WAR[p.passes]
        if p.kind == "vmem" and getattr(p, "wide_store", False) and c.kind in VALUK: return 2
        return 0
def mfma(text, D, A, B, C, passes=4):
    o = Op(text, "mfma", R=list(A) + list(B) + list(C), W=D, C=C, passes=passes); o.AB = set(A) | set(B); o.free = 2; return o
def build_deps(ops):
    lw = {}; rd = {}
    def edge(p, c, h):
        if p is c: return
        if c.preds.get(p, -1) < h: c.preds[p] = h; p.succs[c] = h
    for o in ops:
        for r in o.R:
            if r in lw: edge(lw[r], o, hazard(lw[r], o, "RAW", r))
        for r in o.W:
            if r in lw: edge(lw[r], o, hazard(lw[r], o, "WAW", r))
            for q in rd.get(r, ()): edge(q, o, hazard(q, o, "WAR", r))
        for r in o.R: rd.setdefault(r, []).append(o)
        for r in o.W: lw[r] = o; rd[r] = []
        if o.covers:
            for l in o.covers: edge(l, o, max(o.lat, 0))
def schedule(ops, min_fill=2, max_fill=4, look=12, late=0):
    build_deps(ops)
    M = [o for o in ops if o.kind == "mfma"]; F = [o for o in ops if o.kind != "mfma"]
    for i, o in enumerate(ops): o.seq = i
    for g, o in enumerate(M): o.g = g
    n = len(M)
    for o in ops:
        if o.kind == "mfma": o.dl = o.g
        else:
            assert o.prio is not None, o.text
            o.dl = o.prio
    out = []; cur = [0]; curg = [-1]
    remaining = {o: len(o.preds) for o in ops}
    ready = [(o.dl, o.seq, o) for o in F if remaining[o] == 0]; heapq.heapify(ready)
    tot = sum(o.cost for o in F); done = [0]; nops = [0]
    def ok_at(o):
        return max([p.pos + 1 + h for p, h in o.preds.items()] + [0])
    def emit(o):
        o.pos = cur[0]; out.append(o); cur[0] += 1
        if o.kind != "mfma": done[0] += o.cost
        for s in o.succs:
            remaining[s] -= 1
            if remaining[s] == 0 and s.kind != "mfma": heapq.heappush(ready, (s.dl, s.seq, s))
    def nop(k):
        while k > 0:
            q = min(k, 16); x = Op(f"s_nop {q-1}", "nop"); x.pos = cur[0]; out.append(x); cur[0] += q; k -= q; nops[0] += q
    def pick(maxdl=None, maxcost=9, due=-1e18):
        tmp = []; res = None
        while ready:
            it = heapq.heappop(ready)
            if maxdl is not None and it[0] > maxdl: tmp.append(it); break
            if ok_at(it[2]) <= cur[0] and it[2].nb <= curg[0] and (it[2].cost <= maxcost or it[0] <= due): res = it[2]; break
            tmp.append(it)
        for it in tmp: heapq.heappush(ready, it)
        return res
    def force(o):
        for p in sorted(o.preds, key=lambda x: x.seq):
            if p.pos is None:
                assert p.kind != "mfma", ("mfma order violated", p.text, o.text)
                force(p); settle(p)
                for i, it in enumerate(ready):
                    if it[2] is p: ready.pop(i); heapq.heapify(ready); break
                if p.pos is None: emit(p)
    def settle(o):
        while o.pos is None and ok_at(o) > cur[0]:
            need = ok_at(o) - cur[0]
            x = pick()
            if x is not None: emit(x)
            elif o.kind == "wait": break
            else: nop(need)
    starved = 0
    for g, m in enumerate(M):
        force(m); settle(m); emit(m); curg[0] = g
        k = 0; min_fill = m.free
        while True:
            x = pick(maxdl=g + 1 - late) if k >= min_fill else pick(maxdl=g + look, maxcost=min_fill - k, due=g + 1 - late)
            if x is None: break
            emit(x); k += x.cost
            if k >= max_fill: break
        if k < min_fill: starved += min_fill - k
    curg[0] = 1e18
    while ready:
        x = pick()
        if x is None:
            it = min(ready, key=lambda t: ok_at(t[2])); ready.remove(it); heapq.heapify(ready)
            x = it[2]
            if x.kind != "wait": nop(ok_at(x) - cur[0])
        emit(x)
    assert all(o.pos is not None for o in ops)
    stats = dict(n_mfma=n, n_fill=len(F), fill_cost=tot, nops=nops[0], starved=starved)
    return out, stats
def finalize(out, vm_before=0):
    lines = []; vm = []
    for o in out:
        if o.kind == "vmem": vm.append(o)
        if o.kind == "wait":
            last = max((vm.index(l) for l in o.covers if l in vm), default=-1)
            ncnt = len(vm) - 1 - last
            if getattr(o, "extra_after", None) is not None and last < 0: ncnt += o.extra_after
            assert ncnt <= 63
            lines.append(f"s_waitcnt vmcnt({ncnt})")
        else: lines.append(o.text)
    return lines
def verify(out):
    lw = {}; rd = {}; bad = 0; pos = 0
    for o in out:
        if o.kind == "nop": pos += int(o.text.split()[1]) + 1; continue
        o.vp = pos
        def chk(p, typ, r):
            nonlocal bad
            h = hazard(p, o, typ, r)
            if o.vp - p.vp - 1 < h: bad += 1; print("HAZARD", typ, r, "|", p.text, "->", o.text, o.vp - p.vp - 1, h)
            if p.seq > o.seq: bad += 1; print("ORDER", typ, r, p.text, "->", o.text)
        for r in o.R:
            if r in lw: chk(lw[r], "RAW", r)
        for r in o.W:
            if r in lw and lw[r] is not o: chk(lw[r], "WAW", r)
            for q in rd.get(r, ()):
                if q is not o: chk(q, "WAR", r)
        for r in o.R: rd.setdefault(r, []).append(o)
        for r in o.W: lw[r] = o; rd[r] = []
        pos += 1
    return bad
def est_cycles(out):
    t = 0; pipe = 0
    for o in out:
        if o.kind == "mfma":
            t = max(t, pipe); pipe = t + 4 * o.passes; t += 4 * (o.passes - o.free)
        elif o.kind == "nop": t += 4 * (int(o.text.split()[1]) + 1)
        else: t += 4 * o.cost
    return t
```

```python
import sys, math, struct
from sched import *
NAME = "standalone__factorization_afm__recsys"
opts = dict(a.split("=") for a in sys.argv[1:] if "=" in a)
LAT_FAR = int(opts.get("latfar", 450)); LAT_NEAR = int(opts.get("latnear", 300))
DBG = int(opts.get("dbg", 0)); PF = int(opts.get("pf", 2))
MS = [int(c) for c in opts.get("ms", "444443333222222222233")]
TOUCH = int(opts.get('touch', 1))
LSP = float(opts.get('lsp', 9))
EPI = float(opts.get("epi", 3.1)); LOOK = int(opts.get("look", 30))
assert len(MS) == 21 and MS[20] <= 3
PAIRS = {0: [], 1: [1], 2: [0, 2], 3: [0, 1, 2], 4: [0, 1, 2, 3]}
YT = [6,0,4,4,2,3,6,9,3,7,0,1,8,5,3,4]
ZT = [5,2,7,7,9,7,1,0,1,5,4,8,2,9,6,8]
K10 = [("", lambda n: n), ("quad_perm:[1,0,3,2]", lambda n: n ^ 1), ("quad_perm:[2,3,0,1]", lambda n: n ^ 2)]
seen = set(); inval = 0
for k, (_, pi) in enumerate(K10):
    for n in range(16):
        a, b = ZT[n], YT[pi(n)]; key = (min(a, b), max(a, b))
        if a == b or key in seen: inval |= 1 << (16 * k + n)
        else: seen.add(key)
assert len(seen) == 45
POS = [YT.index(c) for c in range(10)]
FULL = "row_mask:0xf bank_mask:0xf"
BIAS = 0; VX = 32; VY = 64; VZ = 96; F = [128, 144]; TMP = 160; ACC = 168; RR = 184; D9 = 192; D9M = 212
MASKC = 216; RF = 220
H = 232; NEGINF = 234; MX = 235; NUM = 236; DEN = 237; TA = 238; TB = 239; TC = 240; E0 = 241; S0 = 242; EM = 243; SM = 244
IDX = 245; OX = 248; OY = 249; OZ = 250; GOFF = 251; OOFF = 252; VCS = 253; PFR = 254
AW = 0; AN9 = 128; AH = 192
S_IDX = 4; S_TAB = 6; S_W = 8; S_B = 10; S_H = 12; S_P = 14; S_OUT = 16; S_WAVE = 18; S_MA = 20; S_MAX = 24; S_T = 26; S_OM = 30; S_IT = 22; S_INC = 23; S_SRD = 36
LN9 = 32768; AS = 320
O_HI, O_P, O_LO, O_Z, O_HH, O_B, O_H = [LN9 + AS * i for i in range(7)]
CSC = 0.5 * math.log2(math.e)
def f32(x): return "0x%08x" % struct.unpack("<I", struct.pack("<f", x))[0]
L = []
def e(s): L.append("    " + s)
hdr = open("cdna_kernels/%s.s.ref" % NAME).read().split("\n")
for line in hdr:
    if line.startswith("; @launch"):
        L.append("; @launch grid=(256,1,1) block=(256,1,1) lds=35072"); break
    L.append(line)
L += ['.amdgcn_target "amdgcn-amd-amdhsa--gfx950"', ".text", ".globl %s_kernel" % NAME, ".p2align 8",
      ".type %s_kernel,@function" % NAME, "%s_kernel:" % NAME]
NST = [0]
STEPST = int(opts.get('stepst', 0))
def stamp(force=False):
    if DBG and (not STEPST or force): e(f"s_memrealtime s[{40+2*NST[0]}:{41+2*NST[0]}]"); NST[0] += 1
NSTEP = 21; PIT = sum(36 + m for m in MS)
ops = []
TT = [0.0, 0.0]; IT = [0]; MC = [0]
def at(t, inc): TT[0] = t; TT[1] = inc
def push(o): o.it = IT[0]; ops.append(o); return o
def valu(text, R, W, kind="valu", **kw):
    if kind in ("perm", "vmem"): kw["cost"] = 2
    o = Op(text, kind, R, W, prio=round(TT[0] + 1e-4, 3), **kw); TT[0] += TT[1]; return push(o)
def view_load(raw, ireg):
    return [valu(f"global_load_dwordx4 {rng(raw+4*q,4)}, v{ireg}, s[{S_TAB}:{S_TAB+1}] offset:{64*q}", [f"v{ireg}"], vr(raw+4*q,4), "vmem") for q in range(4)]
def wait_for(regs, ls, lat):
    return push(Op("wait", "wait", R=regs, W=regs, covers=ls, lat=lat, prio=round(TT[0] + 1e-4, 3)))
def unpack(V, raw):
    for q in range(16):
        s = raw + q
        valu(f"v_lshlrev_b32 v{V+2*q}, 16, v{s}", [f"v{s}"], [f"v{V+2*q}"])
        valu(f"v_and_b32 v{V+2*q+1}, 0xffff0000, v{s}", [f"v{s}"], [f"v{V+2*q+1}"])
def form(fb, P, ctrl, Q, t0, t1):
    at(t0 + 0.2, (t1 - t0 - 2.5) / 48)
    for i in range(32):
        d = TMP + i % 8
        if ctrl: valu(f"v_mul_f32_dpp v{d}, v{P+i}, v{Q+i} {ctrl} {FULL}", [f"v{P+i}", f"v{Q+i}"], [f"v{d}"], "dpp")
        else: valu(f"v_mul_f32 v{d}, v{P+i}, v{Q+i}", [f"v{P+i}", f"v{Q+i}"], [f"v{d}"])
        if i % 2: valu(f"v_cvt_pk_bf16_f32 v{fb+i//2}, v{d-1}, v{d}", [f"v{d-1}", f"v{d}"], [f"v{fb+i//2}"])
def mm(D, A, B, ct, cr):
    MC[0] += 1
    push(mfma(f"v_mfma_f32_16x16x32_bf16 {rng(D,4)}, {rng(A,4,'a')}, {rng(B,4)}, {ct}", vr(D,4), vr(A,4,'a'), vr(B,4), cr))
deferred = []
rfc = [0]
def step_mm(fb, r, d9, var, cinit, m, fin):
    ci = [cinit]
    def mm9(A, B):
        if ci[0] is not None: ct, cr = ("0", []) if ci[0] == 0 else (rng(ci[0], 4), vr(ci[0], 4)); ci[0] = None
        else: ct, cr = rng(d9, 4), vr(d9, 4)
        mm(d9, A, B, ct, cr)
    first = True; rf = {}
    for t in range(8):
        acc = ACC + 4 * (t % 4)
        for ks in range(4):
            c = BIAS + 4 * t if ks == 0 else acc
            mm(acc, AW + (t * 4 + ks) * 4, fb + 4 * ks, rng(c, 4), vr(c, 4))
        q = t // 2
        at(MC[0] - 1 + EPI, 1.0)
        if q in PAIRS[m]:
            if t % 2 == 0: rf[q] = RF + 4 * (rfc[0] % 3); rfc[0] += 1
            for c in range(2):
                d = rf[q] + 2 * (t % 2) + c
                valu(f"v_cvt_pk_bf16_f32 v{d}, |v{acc+2*c}|, |v{acc+2*c+1}|", [f"v{acc+2*c}", f"v{acc+2*c+1}"], [f"v{d}"])
        else:
            for k in range(4):
                i = 4 * t + k
                if first: valu(f"v_mul_f32_dpp v{r}, v{H+i//16}, |v{acc+k}| row_newbcast:{i%16} {FULL}", [f"v{H+i//16}", f"v{acc+k}"], [f"v{r}"], "dpp"); first = False
                else: valu(f"v_fmac_f32_dpp v{r}, v{H+i//16}, |v{acc+k}| row_newbcast:{i%16} {FULL}", [f"v{H+i//16}", f"v{acc+k}", f"v{r}"], [f"v{r}"], "dpp")
        if t == 0:
            for cb in deferred: cb()
            deferred.clear()
        if t % 2 == 1 and t >= 3 and (t - 3) // 2 in PAIRS[m]:
            qq = (t - 3) // 2; mm9(AH + 16 * qq + 4 * var, rf[qq])
    for ks in range(4): mm9(AN9 + 16 * var + 4 * ks, fb + 4 * ks)
    if 3 in PAIRS[m]:
        deferred.append(lambda: mm9(AH + 48 + 4 * var, rf[3]))
        if fin: deferred.append(fin)
    elif fin: fin()
def swap(w, a, b): valu(f"v_permlane{w}_swap_b32 v{a}, v{b}", [f"v{a}", f"v{b}"], [f"v{a}", f"v{b}"], "perm")
def add(d, a, b): valu(f"v_add_f32 v{d}, v{a}, v{b}", [f"v{a}", f"v{b}"], [f"v{d}"])
def mov(d, a): valu(f"v_mov_b32 v{d}, v{a}", [f"v{a}"], [f"v{d}"])
def tred(r):
    swap(32, r, r+2); add(r, r, r+2); swap(32, r+1, r+3); add(r+1, r+1, r+3); swap(16, r, r+1); add(r, r, r+1)
def softmax(ES):
    E = [x[0] for x in ES]
    valu(f"v_max3_f32 v{MX}, v{E[0]}, v{E[1]}, v{E[2]}", [f"v{x}" for x in E[:3]], [f"v{MX}"])
    valu(f"v_max3_f32 v{MX}, v{MX}, v{E[3]}, v{E[4]}", [f"v{MX}", f"v{E[3]}", f"v{E[4]}"], [f"v{MX}"])
    valu(f"v_max_f32 v{MX}, v{MX}, v{E[5]}", [f"v{MX}", f"v{E[5]}"], [f"v{MX}"])
    for c in ("row_ror:8 " + FULL, "row_ror:4 " + FULL, "row_ror:2 " + FULL, "row_ror:1 " + FULL, "row_bcast:15 row_mask:0xa bank_mask:0xf", "row_bcast:31 row_mask:0xc bank_mask:0xf"):
        valu(f"v_max_f32_dpp v{MX}, v{MX}, v{MX} {c}", [f"v{MX}"], [f"v{MX}"], "dpp")
    valu(f"v_mul_f32 v{MX}, v{VCS}, v{MX}", [f"v{MX}", f"v{VCS}"], [f"v{MX}"])
    valu(f"v_readlane_b32 s{S_MAX}, v{MX}, 63", [f"v{MX}"], [f"s{S_MAX}"], "readlane")
    for i, (x, s) in enumerate(ES):
        valu(f"v_fma_f32 v{x}, v{x}, v{VCS}, -s{S_MAX}", [f"s{S_MAX}", f"v{x}", f"v{VCS}"], [f"v{x}"])
        valu(f"v_exp_f32 v{x}, v{x}", [f"v{x}"], [f"v{x}"], "trans", cost=2)
        if i == 0: valu(f"v_mul_f32 v{NUM}, v{x}, v{s}", [f"v{x}", f"v{s}"], [f"v{NUM}"])
        else: valu(f"v_fmac_f32 v{NUM}, v{x}, v{s}", [f"v{x}", f"v{s}", f"v{NUM}"], [f"v{NUM}"])
        if i == 1: add(DEN, ES[0][0], x)
        elif i > 1: add(DEN, DEN, x)
    swap(32, NUM, DEN)
    o1 = len(ops); mov(TC, TB); mov(TB, TA); add(TA, NUM, DEN)
    for o in ops[o1:]: o.rot = True
def salu(text, R, W): return valu(text, R, W, "salu")
STEPS = [("ror8", 8)] + [("ror", t) for t in range(1, 8)] + [("star", 0)] + [("k10", k) for k in range(3)] + [("star", c) for c in range(1, 10)]
def do_form(si, t0, t1):
    kind, a = STEPS[si]
    fb = VZ if kind == "ror8" else F[(si - 1) % 2]
    if kind == "star": form(fb, VY, f"row_newbcast:{POS[a]}", VX, t0, t1)
    elif kind == "k10": form(fb, VY, K10[a][0], VZ, t0, t1)
    else: form(fb, VX, f"row_ror:{a}", VX, t0, t1)
    return fb
NIT = 4
ST = [0]
for m in MS: ST.append(ST[-1] + 36 + m)
for it in range(NIT):
    IT[0] = it; B0 = it * PIT; rfc[0] = 0
    assert MC[0] == B0
    S = lambda x: B0 + ST[int(x)] + (x - int(x)) * (ST[int(x) + 1] - ST[int(x)] if int(x) < 21 else 0)
    tiles = []
    o1 = len(ops)
    at(B0 + 1, LSP); ly = view_load(VY + 16, IDX + 1); lz = view_load(VZ + 16, IDX + 2)
    for o in ly + lz: o.nb2 = o.prio - 1
    IT[0] = it + 1
    at(S(8.5), 3.0)
    TT[1] = LSP
    li = [valu(f"buffer_load_dword v{IDX+k}, v{[OX,OY,OZ][k]}, s[{S_SRD}:{S_SRD+3}], s{S_IT} offen offset:{64 if k else 0}", [f"v{[OX,OY,OZ][k]}", f"s{S_IT}"], [f"v{IDX+k}"], "vmem") for k in range(3)]
    salu(f"s_addk_i32 s{S_IT}, 104", [f"s{S_IT}"], [f"s{S_IT}", "scc"]); salu(f"s_cmp_lt_u32 s{S_IT}, {104 * (int(opts.get('iters', 4)) + 1)}", [f"s{S_IT}"], ["scc"])
    for o in li: o.nb2 = o.prio - 1
    for o in ops[o1:]: o.nb = getattr(o, 'nb2', B0)
    IT[0] = it
    grp = 0
    for si in range(NSTEP):
        kind, a = STEPS[si]; m = MS[si]
        if si == 8:
            at(S(4), (S(6.5) - S(4)) / 32); wait_for(vr(VY+16,16), ly, LAT_FAR); unpack(VY, VY + 16)
        if si == 9:
            at(S(6.3), (S(8.3) - S(6.3)) / 32); wait_for(vr(VZ+16,16), lz, LAT_FAR); unpack(VZ, VZ + 16)
        if si > 0 or it == 0: fb = do_form(si, S(si - 1) if si else -40, S(si))
        else: fb = VZ
        if si == 11:
            IT[0] = it + 1
            at(S(12.2), 2.0); wait_for(vr(IDX,3), li, LAT_NEAR)
            for k in range(3): valu(f"v_lshl_add_u32 v{IDX+k}, v{IDX+k}, 8, v{GOFF}", [f"v{IDX+k}", f"v{GOFF}"], [f"v{IDX+k}"])
            TT[1] = LSP; o2 = len(ops)
            lx = view_load(VZ + 16, IDX)
            if TOUCH:
                for q in range(2): valu(f"global_load_dword v{PFR+q}, v{IDX+1}, s[{S_TAB}:{S_TAB+1}] offset:{128*q}", [f"v{IDX+1}"], [f"v{PFR+q}"], "vmem")
            for o in ops[o2:]: o.nb = o.prio - 1
            IT[0] = it
        if si == NSTEP - 1:
            IT[0] = it + 1
            at(S(19.4), (S(20.5) - S(19.4)) / 32); wait_for(vr(VZ+16,16), lx, LAT_FAR); unpack(VX, VZ + 16)
            do_form(0, S(20.15), S(21))
            IT[0] = it
        if kind == "ror8":
            rb = RR + 4 * (grp % 2); grp += 1
            def fin(rb=rb, m=m):
                at(MC[0] + 4, 2.0)
                if m < 4: swap(32, rb, rb+2); add(rb, rb, rb+2); swap(16, rb, rb+1); add(rb, rb, rb+1)
                add(D9M, D9M, D9M + 2)
                if m < 4: add(D9M, D9M, rb)
                at(S(3.2), 2.0)
                valu(f"v_cndmask_b32 v{EM}, v{NEGINF}, v{D9M}, s[{S_MA}:{S_MA+1}]", [f"v{NEGINF}", f"v{D9M}"], [f"v{EM}"])
                mov(SM, D9M + 1)
            step_mm(fb, rb, D9M, 0, 0, m, fin)
            tiles.append((EM, SM))
        else:
            reg = si - 1; var = reg % 4
            if var == 0:
                d9 = D9 + 4 * (reg // 4); rb = RR + 4 * (grp % 2); grp += 1
                g4 = [MS[si + j] == 4 for j in range(4)]; assert all(g4) or not any(g4)
            fin = None
            if var == 3:
                def fin(rb=rb, d9=d9, reg=reg, full=all(g4)):
                    at(MC[0] + 5, 3.0)
                    dst = E0 if reg == 3 else d9
                    if full: add(dst, d9, d9 + 2)
                    else: tred(rb); add(d9, d9, d9 + 2); add(dst, d9, rb)
                    if reg == 3: mov(S0, d9 + 1)
                tiles.append((E0, S0) if reg == 3 else (d9, d9 + 1))
            step_mm(fb, rb + var, d9, var, (MASKC if reg == 8 else 0) if var == 0 else None, m, fin)
    at(B0 + PIT + 30, (ST[3] - 30) / 42)
    softmax(tiles)
out, st = schedule(ops, look=LOOK, late=float(opts.get('late', 4)))
bad = verify(out)
assert bad == 0
lines = finalize(out)
cuts = [i for i, o in enumerate(out) if o.kind == "mfma" and o.g % PIT == 0]
s1 = lines[cuts[1]:cuts[2]]; s2 = lines[cuts[2]:cuts[3]]
if s1 != s2:
    for i, (a, b) in enumerate(zip(s1, s2)):
        if a != b: print("diff at", i, len(s1), len(s2), s1[i-3:i+3], s2[i-3:i+3], file=sys.stderr); break
    raise SystemExit("body not periodic")
body = s1; bops = out[cuts[1]:cuts[2]]
pre_ops = [o for o in out[:cuts[1]] if o.kind != "nop" and o.it >= 1]
post_ops = [o for o in bops if o.kind != "nop" and o.it == 0]
assert sum(1 for o in pre_ops if o.kind == 'vmem') == 7 + 2 * TOUCH and sum(1 for o in pre_ops if o.kind == 'salu') == 2
assert not any(o.kind == "mfma" for o in post_ops)
nm = sum(1 for o in bops if o.kind == "mfma"); nf = sum(o.cost for o in bops if o.kind not in ("mfma", "nop"))
print(st, "body len", len(body), "est cycles/iter", est_cycles(bops), "issue", nm * 8 + nf * 4, "pipe", nm * 16, "pre", len(pre_ops), "post", len(post_ops), "nops in body", sum(1 for o in bops if o.kind == "nop"), file=sys.stderr)
if int(opts.get("prof", 0)):
    seg = []; cur_ = []; nm_ = 0
    for o in bops:
        if o.kind == "mfma":
            if nm_ in ST and cur_: seg.append(cur_); cur_ = []
            nm_ += 1
        cur_.append(o)
    seg.append(cur_)
    from collections import Counter
    for i, sg in enumerate(seg): print(i, est_cycles(sg + [sg[0]]) - 8, dict(Counter(o.kind for o in sg)), file=sys.stderr)
e("s_cmp_ge_u32 s2, 256"); e("s_cbranch_scc1 L_done")
stamp()
e("s_load_dwordx4 s[4:7], s[0:1], 0"); e("s_load_dwordx4 s[8:11], s[0:1], 32")
e("s_load_dwordx4 s[12:15], s[0:1], 48"); e("s_load_dwordx2 s[16:17], s[0:1], 64")
T = D9
vN, vG, vL, vW0, vW1, vWN, vPF, vSM, vT0, vT1, vT2, vWV, vTR, vNA = T, T+1, T+2, T+3, T+4, T+5, T+6, T+7, T+8, T+9, T+10, T+11, T+12, T+20
vHA = RF; vBA = RF + 4; vHD = RF + 5
vm = []; dsq = []
def vmem(s, tag): e(s); vm.append(tag)
def vwait(tag):
    last = max(i for i, t in enumerate(vm) if t == tag)
    e(f"s_waitcnt vmcnt({len(vm) - 1 - last})")
def ds(s, tag): e(s); dsq.append(tag)
def dwait(tag):
    last = max(i for i, t in enumerate(dsq) if t == tag)
    e(f"s_waitcnt lgkmcnt({min(15, len(dsq) - 1 - last)})")
e(f"v_lshrrev_b32 v{vWV}, 6, v0")
e(f"v_and_b32 v{vN}, 15, v0")
e(f"v_readfirstlane_b32 s{S_WAVE}, v{vWV}")
e(f"v_bfe_u32 v{vG}, v0, 4, 2")
e(f"v_lshlrev_b32 v{OX}, 2, v{vN}")
e(f"s_lshl_b32 s3, s2, 2"); e(f"s_add_u32 s3, s3, s{S_WAVE}")
e(f"s_mul_i32 s19, s3, 416")
def nib(tab): return sum(v << (4 * i) for i, v in enumerate(tab))
e(f"s_mov_b32 s{S_T}, 0x{nib(YT) & 0xffffffff:08x}"); e(f"s_mov_b32 s{S_T+1}, 0x{nib(YT) >> 32:08x}")
e(f"s_mov_b32 s{S_T+2}, 0x{nib(ZT) & 0xffffffff:08x}"); e(f"s_mov_b32 s{S_T+3}, 0x{nib(ZT) >> 32:08x}")
e(f"v_lshrrev_b64 v[{vT0}:{vT0+1}], v{OX}, s[{S_T}:{S_T+1}]")
e(f"v_and_b32 v{OY}, 15, v{vT0}")
e(f"v_lshrrev_b64 v[{vT0}:{vT0+1}], v{OX}, s[{S_T+2}:{S_T+3}]")
e(f"v_and_b32 v{OZ}, 15, v{vT0}")
e(f"v_add_u32 v{OX}, s19, v{OX}")
e(f"v_lshl_add_u32 v{OY}, v{OY}, 2, s19")
e(f"v_lshl_add_u32 v{OZ}, v{OZ}, 2, s19")
e(f"v_lshlrev_b32 v{GOFF}, 4, v{vG}")
e(f"s_lshl_b32 s{S_T}, s{S_WAVE}, 13")
e(f"v_lshrrev_b32 v{vT2}, 1, v{vN}")
e(f"v_xor_b32 v{vT0}, v{vT2}, v{vG}")
e(f"v_lshlrev_b32 v{vT0}, 5, v{vT0}")
e(f"v_and_b32 v{vT1}, 1, v0")
e(f"v_lshl_add_u32 v{vT0}, v{vT1}, 4, v{vT0}")
e(f"v_lshl_add_u32 v{vT0}, v{vG}, 8, v{vT0}")
e(f"v_add_u32 v{vW0}, s{S_T}, v{vT0}")
e(f"v_xor_b32 v{vW1}, 0x80, v{vW0}")
e(f"v_and_b32 v{vL}, 63, v0"); e(f"v_lshlrev_b32 v{vL}, 2, v{vL}")
e(f"v_lshlrev_b32 v{vT1}, 2, v{vT1}")
e(f"v_lshl_add_u32 v{vT0}, v{vT2}, 5, v{vT1}"); e(f"v_lshl_add_u32 v{vT0}, v{vG}, 3, v{vT0}")
e(f"v_cmp_eq_u32 vcc, 0, v{vWV}")
e(f"v_and_b32 v{vT2}, 1, v{vT2}"); e(f"v_lshl_add_u32 v{vT1}, v{vT2}, 5, v{vT1}")
e(f"v_cndmask_b32 v{vSM}, v{vL}, v{vT0}, vcc")
e(f"v_cmp_eq_u32 vcc, 3, v{vWV}")
e(f"v_lshrrev_b32 v{vT2}, 2, v{vN}"); e(f"v_lshl_add_u32 v{vT1}, v{vT2}, 3, v{vT1}"); e(f"v_lshl_add_u32 v{vT1}, v{vG}, 6, v{vT1}")
e(f"v_cndmask_b32 v{vSM}, v{vSM}, v{vT1}, vcc")
if PF:
    e("s_getpc_b64 s[32:33]")
    L.append("L_pfbase:")
    e(f"v_lshlrev_b32 v{vPF}, 7, v0")
    e(f"v_min_u32 v{vPF}, L_end-L_pfbase-4, v{vPF}")
e(f"s_add_u32 s{S_T+1}, s{S_T}, 0x1000")
e(f"s_mov_b32 s{S_T+2}, {O_P}"); e(f"s_cmp_eq_u32 s{S_WAVE}, 0"); e(f"s_cselect_b32 s{S_T+2}, {O_B}, s{S_T+2}")
e(f"s_cmp_eq_u32 s{S_WAVE}, 1"); e(f"s_cselect_b32 s{S_T+2}, {O_H}, s{S_T+2}")
e(f"s_cmp_eq_u32 s{S_WAVE}, 3"); e(f"s_cselect_b32 s{S_T+2}, {O_HH}, s{S_T+2}")
e(f"s_mov_b32 m0, s{S_T}")
e(f"s_cmp_eq_u32 s{S_WAVE}, 0")
e("s_waitcnt lgkmcnt(0)")
stamp()
vmem(f"global_load_dword v{IDX}, v{OX}, s[{S_IDX}:{S_IDX+1}]", "idx0")
for half in range(2):
    for q in range(4):
        vmem(f"global_load_lds_dwordx4 v{vW1 if q & 2 else vW0}, s[{S_W}:{S_W+1}] offset:{1024*q}", "wdma")
    if half == 0:
        e(f"v_add_u32 v{vW0}, 0x1000, v{vW0}"); e(f"s_mov_b32 m0, s{S_T+1}"); e(f"v_add_u32 v{vW1}, 0x1000, v{vW1}")
e(f"s_cselect_b64 s[34:35], s[{S_B}:{S_B+1}], s[{S_H}:{S_H+1}]")
e(f"s_cmp_eq_u32 s{S_WAVE}, 2"); e(f"s_mov_b32 m0, s{S_T+2}"); e(f"s_cselect_b64 s[34:35], s[{S_P}:{S_P+1}], s[34:35]")
vmem(f"global_load_lds_dword v{vSM}, s[34:35]", "wdma")
if PF == 1: vmem(f"global_load_dword v{PFR}, v{vPF}, s[32:33]", "pf")
stamp()
vwait("idx0"); stamp()
e(f"v_lshl_add_u32 v{IDX}, v{IDX}, 8, v{GOFF}")
for q in range(4): vmem(f"global_load_dwordx4 {rng(VZ+16+4*q,4)}, v{IDX}, s[{S_TAB}:{S_TAB+1}] offset:{64*q}", "view0")
if PF == 2: vmem(f"global_load_dword v{PFR}, v{vPF}, s[32:33]", "pf")
for k in range(1, 3): vmem(f"global_load_dword v{IDX+k}, v{[OX,OY,OZ][k]}, s[{S_IDX}:{S_IDX+1}] offset:64", "idx1")
for r in range(4): e(f"v_mov_b32 v{MASKC+r}, 0")
ds(f"ds_write_b32 v{vL}, v{MASKC+1} offset:{O_Z}", "z")
e(f"v_mov_b32 v{NEGINF}, 0xff800000")
e(f"v_mov_b32 v{VCS}, {f32(CSC)}")
e(f"s_mov_b32 s{S_MA}, 0x{inval & 0xffffffff:08x}"); e(f"s_mov_b32 s{S_MA+1}, 0x{inval >> 32:08x}")
e(f"v_cndmask_b32 v{MASKC}, v{MASKC}, v{NEGINF}, s[{S_MA}:{S_MA+1}]")
e(f"s_mov_b32 s{S_MA}, 0xff"); e(f"s_mov_b32 s{S_MA+1}, 0"); e(f"s_movk_i32 s{S_IT}, 104")
e(f"s_mov_b32 s{S_OM}, 0x00010001"); e(f"s_mov_b32 s{S_OM+1}, 0x00010001")
e(f"s_mov_b32 s{S_SRD}, s{S_IDX}"); e(f"s_mov_b32 s{S_SRD+1}, s{S_IDX+1}"); e(f"s_mov_b32 s{S_SRD+2}, {4096*104}"); e(f"s_mov_b32 s{S_SRD+3}, 0x00020000")
e(f"s_lshl_b32 s3, s3, 3"); e(f"v_lshl_add_u32 v{OOFF}, v{vG}, 1, s3")
e(f"v_lshrrev_b32 v{vT0}, 3, v{vN}"); e(f"v_and_b32 v{vT1}, 3, v{vN}"); e(f"v_lshl_or_b32 v{vT0}, v{vT0}, 2, v{vT1}")
e(f"v_lshrrev_b32 v{vT1}, 1, v{vG}"); e(f"v_xor_b32 v{vT0}, v{vT0}, v{vT1}"); e(f"v_lshlrev_b32 v{vT0}, 5, v{vT0}")
e(f"v_and_b32 v{vT1}, 1, v{vG}"); e(f"v_lshl_add_u32 v{vT0}, v{vT1}, 4, v{vT0}"); e(f"v_lshl_add_u32 v{vT0}, v{vN}, 8, v{vT0}")
e(f"v_add_u32 v{vWN}, s{S_T}, v{vT0}")
vWNk = [vWN, vW0, vW1, vSM]
for ks in range(1, 4): e(f"v_xor_b32 v{vWNk[ks]}, {ks << 6}, v{vWN}")
e(f"v_lshrrev_b32 v{vT0}, 2, v{vN}")
e(f"v_lshl_or_b32 v{vT1}, v{vT1}, 2, v{vT0}")
e(f"v_lshl_add_u32 v{vT0}, v{vG}, 3, v{vT0}"); e(f"v_lshlrev_b32 v{vT0}, 8, v{vT0}")
e(f"v_lshl_add_u32 v{vT0}, v{vT1}, 5, v{vT0}")
e(f"v_and_b32 v{vT1}, 3, v{vN}"); e(f"v_lshl_add_u32 v{vTR}, v{vT1}, 3, v{vT0}")
for t in range(1, 8): e(f"v_xor_b32 v{vTR+t}, {t << 5}, v{vTR}")
e(f"s_movk_i32 s{S_T+2}, {AS}")
for var in range(4):
    e(f"v_subrev_u32 v{vT0}, {4*var}, v{vN}"); e(f"v_min_u32 v{vNA+var}, 3, v{vT0}")
    e(f"v_mad_u32_u24 v{vNA+var}, v{vNA+var}, s{S_T+2}, v{GOFF}")
    e(f"v_min_u32 v{vT0}, 1, v{vT0}"); e(f"v_xor_b32 v{vT0}, 1, v{vT0}"); e(f"v_mad_u32_u24 v{vHA+var}, v{vT0}, s{S_T+2}, v{GOFF}")
e(f"v_lshrrev_b32 v{vT0}, 2, v{vN}"); e(f"v_lshlrev_b32 v{vT0}, 5, v{vT0}")
e(f"v_lshl_add_u32 v{vT0}, v{vT1}, 1, v{vT0}"); e(f"v_lshl_add_u32 v{vHD}, v{vG}, 3, v{vT0}")
e(f"v_lshlrev_b32 v{vBA}, 6, v{vG}")
e(f"s_lshl_b32 s{S_T+1}, s{S_WAVE}, 6"); e(f"v_lshl_add_u32 v{vT2}, v{vN}, 1, s{S_T+1}")
vwait("wdma"); e("s_waitcnt lgkmcnt(0)")
stamp(); e("s_barrier"); stamp()
WN = F[0]; HB = ACC; WHA = RR
trs = [f"ds_read_b64_tr_b16 {rng(AW+(t*4+ks)*4+2*u,2,'a')}, v{vTR+t} offset:{8192*ks+1024*u}" for t in range(8) for ks in range(4) for u in range(2)]
def tr(n):
    for _ in range(n):
        if trs: ds(trs.pop(0), "tr")
for ks in range(4): ds(f"ds_read_b128 {rng(HB+4*ks,4)}, v{GOFF} offset:{O_H+64*ks}", "wn")
for uu in range(2):
    for ks in range(4): ds(f"ds_read_b128 {rng(WN+16*uu+4*ks,4)}, v{vWNk[ks]} offset:{4096*uu}", "wn")
for k in range(4): ds(f"ds_read_b128 {rng(BIAS+16+4*k,4)}, v{vBA} offset:{O_B+16*k}", "bb")
for q in range(2): ds(f"ds_read_u16 v{H+q}, v{vHD} offset:{O_H+128*q}", "bb")
tr(6)
dwait("wn")
for ks in range(4):
    for uu in range(2):
        c = "0" if ks == 0 else rng(WHA+4*uu, 4)
        e(f"v_mfma_f32_16x16x32_bf16 {rng(WHA+4*uu,4)}, {rng(HB+4*ks,4)}, {rng(WN+16*uu+4*ks,4)}, {c}")
        tr(1)
tr(8)
for uu in range(2):
    a = WHA + 4 * uu
    e(f"v_cvt_pk_bf16_f32 v{a+1}, v{a}, v{a}")
    e(f"v_lshlrev_b32 v{a+2}, 16, v{a+1}")
    e(f"v_sub_f32 v{a+2}, v{a}, v{a+2}")
    e(f"v_cvt_pk_bf16_f32 v{a+2}, v{a+2}, v{a+2}")
    ds(f"ds_write_b16 v{vT2}, v{a+1} offset:{O_HI+32*uu}", "whw")
    ds(f"ds_write_b16 v{vT2}, v{a+2} offset:{O_LO+32*uu}", "whw")
dwait("bb")
bu = [f"v_lshlrev_b32 v{H+q}, 16, v{H+q}" for q in range(2)]
for q in range(16):
    s_ = BIAS + 16 + q
    bu += [f"v_lshlrev_b32 v{BIAS+2*q}, 16, v{s_}", f"v_and_b32 v{BIAS+2*q+1}, 0xffff0000, v{s_}"]
while trs:
    tr(1)
    if bu: e(bu.pop(0))
assert not bu
for var in range(4):
    for q in range(4): ds(f"ds_read_b128 {rng(AH+16*q+4*var,4,'a')}, v{vHA+var} offset:{O_Z+64*q}", "ah")
dwait("whw")
e("s_barrier")
stamp()
vwait("idx1")
stamp()
for k in range(1, 3): e(f"v_lshl_add_u32 v{IDX+k}, v{IDX+k}, 8, v{GOFF}")
if TOUCH:
    for q in range(2): vmem(f"global_load_dword v{PFR+q}, v{IDX+1}, s[{S_TAB}:{S_TAB+1}] offset:{128*q}", "touch")
n9 = [f"ds_read_b128 {rng(AN9+16*var+4*ks,4,'a')}, v{vNA+var} offset:{O_HI+64*ks}" for var in range(4) for ks in range(4)]
pre = [o for o in pre_ops if o.kind in VALUK and not o.text.startswith("v_lshl_add_u32")]
pre2 = [Op(o.text, o.kind, o.R, o.W, prio=i) for i, o in enumerate(sorted(pre, key=lambda o: o.seq))]
po, _ = schedule(pre2); assert verify(po) == 0
for i, s_ in enumerate(finalize(po)):
    e(s_)
    if i % 3 == 0 and n9: ds(n9.pop(0), "n9")
assert not n9
e("s_waitcnt lgkmcnt(0)")
e("s_nop 1")
if DBG: e("s_mov_b32 s34, 0")
L.append(".p2align 6"); L.append("L_loop:")
if DBG and not STEPST: e("s_mov_b32 m0, s34"); e("s_memrealtime s[32:33]"); e("s_waitcnt lgkmcnt(0)"); e(f"s_movreld_b32 s{40+2*NST[0]}, s32"); e("s_add_u32 s34, s34, 2"); NST[0] += 4
nm_ = 0
for s in body:
    if s.startswith("v_mfma"):
        if STEPST and nm_ in ST: stamp(True)
        nm_ += 1
    e(s)
if STEPST: stamp(True)
e("s_cbranch_scc1 L_loop")
stamp()
e("s_nop 7")
ops = []; IT[0] = 0; at(0, 1)
for o in sorted(post_ops, key=lambda o: o.seq):
    if getattr(o, "rot", False): continue
    valu(o.text, o.R, o.W, o.kind, cost=o.cost)
add(NUM, NUM, DEN)
swap(16, TC, TB); add(TC, TC, TB); swap(16, TA, NUM); add(TA, TA, NUM)
for c in (8, 4, 2, 1):
    for r in (TC, TA): valu(f"v_add_f32_dpp v{r}, v{r}, v{r} row_ror:{c} {FULL}", [f"v{r}"], [f"v{r}"], "dpp")
swap(32, TC, TA)
valu(f"v_rcp_f32 v{TA}, v{TA}", [f"v{TA}"], [f"v{TA}"], "trans", cost=2)
valu(f"v_mul_f32 v{TC}, v{TC}, v{TA}", [f"v{TC}", f"v{TA}"], [f"v{TC}"])
valu(f"v_cvt_pk_bf16_f32 v{TC}, v{TC}, v{TC}", [f"v{TC}"], [f"v{TC}"])
to, _ = schedule(ops); assert verify(to) == 0
print("tail est", est_cycles(to), "pre est", est_cycles(po), file=sys.stderr)
for s in finalize(to): e(s)
stamp()
if DBG == 1:
    e("s_load_dwordx2 s[34:35], s[0:1], 80"); e("s_waitcnt lgkmcnt(0)")
    e("s_lshl_b32 s3, s3, 4"); e(f"v_mov_b32 v1, s3")
    for k in range(NST[0]):
        e(f"v_mov_b32 v2, s{40+2*k}"); e(f"global_store_dword v1, v2, s[34:35] offset:{4*k}")
    e(f"v_mov_b32 v2, {NST[0]}"); e(f"global_store_dword v1, v2, s[34:35] offset:124")
e(f"s_mov_b64 exec, s[{S_OM}:{S_OM+1}]")
e(f"global_store_short v{OOFF}, v{TC}, s[{S_OUT}:{S_OUT+1}]")
L.append("L_done:")
e("s_endpgm")
L.append("L_end:")
L += ['.section .rodata,"a"', ".p2align 6", ".amdhsa_kernel %s_kernel" % NAME,
      "  .amdhsa_next_free_vgpr 512", "  .amdhsa_next_free_sgpr %d" % (100 if DBG else 40), "  .amdhsa_accum_offset 256",
      "  .amdhsa_group_segment_fixed_size 0", "  .amdhsa_kernarg_size 88", "  .amdhsa_user_sgpr_count 2",
      "  .amdhsa_user_sgpr_kernarg_segment_ptr 1", "  .amdhsa_system_sgpr_workgroup_id_x 1",
      "  .amdhsa_float_denorm_mode_32 3",
      ".end_amdhsa_kernel"]
print("\n".join(L))
```

```python
import sys, math, struct
from sched import *
NAME = "standalone__factorization_afm__recsys"
opts = dict(a.split("=") for a in sys.argv[1:] if "=" in a)
LAT_FAR = int(opts.get("latfar", 450)); LAT_NEAR = int(opts.get("latnear", 300))
DBG = int(opts.get("dbg", 0)); PF = int(opts.get("pf", 2))
MS = [int(c) for c in opts.get("ms", "444443333222222222233")]
TOUCH = int(opts.get('touch', 1))
LSP = float(opts.get('lsp', 9))
EPI = float(opts.get("epi", 3.1)); LOOK = int(opts.get("look", 30))
assert len(MS) == 21 and MS[20] <= 3
PAIRS = {0: [], 1: [1], 2: [0, 2], 3: [0, 1, 2], 4: [0, 1, 2, 3]}
YT = [6,0,4,4,2,3,6,9,3,7,0,1,8,5,3,4]
ZT = [5,2,7,7,9,7,1,0,1,5,4,8,2,9,6,8]
K10 = [("", lambda n: n), ("quad_perm:[1,0,3,2]", lambda n: n ^ 1), ("quad_perm:[2,3,0,1]", lambda n: n ^ 2)]
seen = set(); inval = 0
for k, (_, pi) in enumerate(K10):
    for n in range(16):
        a, b = ZT[n], YT[pi(n)]; key = (min(a, b), max(a, b))
        if a == b or key in seen: inval |= 1 << (16 * k + n)
        else: seen.add(key)
assert len(seen) == 45
POS = [YT.index(c) for c in range(10)]
FULL = "row_mask:0xf bank_mask:0xf"
BIAS = 0; VX = 32; VY = 64; VZ = 96; F = [128, 144]; TMP = 160; ACC = 168; RR = 184; D9 = 192; D9M = 212
MASKC = 216; RF = 220
H = 232; NEGINF = 234; MX = 235; NUM = 236; DEN = 237; TA = 238; TB = 239; TC = 240; E0 = 241; S0 = 242; EM = 243; SM = 244
IDX = 245; OX = 248; OY = 249; OZ = 250; GOFF = 251; OOFF = 252; VCS = 253; PFR = 254
AW = 0; AN9 = 128; AH = 192
S_IDX = 4; S_TAB = 6; S_W = 8; S_B = 10; S_H = 12; S_P = 14; S_OUT = 16; S_WAVE = 18; S_MA = 20; S_MAX = 24; S_T = 26; S_OM = 30; S_IT = 22; S_INC = 23; S_SRD = 36
LN9 = 32768; AS = 320
O_HI, O_P, O_LO, O_Z, O_HH, O_B, O_H = [LN9 + AS * i for i in range(7)]
CSC = 0.5 * math.log2(math.e)
def f32(x): return "0x%08x" % struct.unpack("<I", struct.pack("<f", x))[0]
L = []
def e(s): L.append("    " + s)
hdr = open("cdna_kernels/%s.s.ref" % NAME).read().split("\n")
for line in hdr:
    if line.startswith("; @launch"):
        L.append("; @launch grid=(256,1,1) block=(256,1,1) lds=35072"); break
    L.append(line)
L += ['.amdgcn_target "amdgcn-amd-amdhsa--gfx950"', ".text", ".globl %s_kernel" % NAME, ".p2align 8",
      ".type %s_kernel,@function" % NAME, "%s_kernel:" % NAME]
NST = [0]
STEPST = int(opts.get('stepst', 0))
def stamp(force=False):
    if DBG and (not STEPST or force): e(f"s_memrealtime s[{40+2*NST[0]}:{41+2*NST[0]}]"); NST[0] += 1
NSTEP = 21; PIT = sum(36 + m for m in MS)
ops = []
TT = [0.0, 0.0]; IT = [0]; MC = [0]
def at(t, inc): TT[0] = t; TT[1] = inc
def push(o): o.it = IT[0]; ops.append(o); return o
def valu(text, R, W, kind="valu", **kw):
    if kind in ("perm", "vmem"): kw["cost"] = 2
    o = Op(text, kind, R, W, prio=round(TT[0] + 1e-4, 3), **kw); TT[0] += TT[1]; return push(o)
def view_load(raw, ireg):
    return [valu(f"global_load_dwordx4 {rng(raw+4*q,4)}, v{ireg}, s[{S_TAB}:{S_TAB+1}] offset:{64*q}", [f"v{ireg}"], vr(raw+4*q,4), "vmem") for q in range(4)]
def wait_for(regs, ls, lat):
    return push(Op("wait", "wait", R=regs, W=regs, covers=ls, lat=lat, prio=round(TT[0] + 1e-4, 3)))
def unpack(V, raw):
    for q in range(16):
        s = raw + q
        valu(f"v_lshlrev_b32 v{V+2*q}, 16, v{s}", [f"v{s}"], [f"v{V+2*q}"])
        valu(f"v_and_b32 v{V+2*q+1}, 0xffff0000, v{s}", [f"v{s}"], [f"v{V+2*q+1}"])
def form(fb, P, ctrl, Q, t0, t1):
    at(t0 + 0.2, (t1 - t0 - 2.5) / 48)
    for i in range(32):
        d = TMP + i % 8
        if ctrl: valu(f"v_mul_f32_dpp v{d}, v{P+i}, v{Q+i} {ctrl} {FULL}", [f"v{P+i}", f"v{Q+i}"], [f"v{d}"], "dpp")
        else: valu(f"v_mul_f32 v{d}, v{P+i}, v{Q+i}", [f"v{P+i}", f"v{Q+i}"], [f"v{d}"])
        if i % 2: valu(f"v_cvt_pk_bf16_f32 v{fb+i//2}, v{d-1}, v{d}", [f"v{d-1}", f"v{d}"], [f"v{fb+i//2}"])
def mm(D, A, B, ct, cr):
    MC[0] += 1
    push(mfma(f"v_mfma_f32_16x16x32_bf16 {rng(D,4)}, {rng(A,4,'a')}, {rng(B,4)}, {ct}", vr(D,4), vr(A,4,'a'), vr(B,4), cr))
deferred = []
rfc = [0]
def step_mm(fb, r, d9, var, cinit, m, fin):
    ci = [cinit]
    def mm9(A, B):
        if ci[0] is not None: ct, cr = ("0", []) if ci[0] == 0 else (rng(ci[0], 4), vr(ci[0], 4)); ci[0] = None
        else: ct, cr = rng(d9, 4), vr(d9, 4)
        mm(d9, A, B, ct, cr)
    first = True; rf = {}
    for t in range(8):
        acc = ACC + 4 * (t % 4)
        for ks in range(4):
            c = BIAS + 4 * t if ks == 0 else acc
            mm(acc, AW + (t * 4 + ks) * 4, fb + 4 * ks, rng(c, 4), vr(c, 4))
        q = t // 2
        at(MC[0] - 1 + EPI, 1.0)
        if q in PAIRS[m]:
            if t % 2 == 0: rf[q] = RF + 4 * (rfc[0] % 3); rfc[0] += 1
            for c in range(2):
                d = rf[q] + 2 * (t % 2) + c
                valu(f"v_cvt_pk_bf16_f32 v{d}, |v{acc+2*c}|, |v{acc+2*c+1}|", [f"v{acc+2*c}", f"v{acc+2*c+1}"], [f"v{d}"])
        else:
            for k in range(4):
                i = 4 * t + k
                if first: valu(f"v_mul_f32_dpp v{r}, v{H+i//16}, |v{acc+k}| row_newbcast:{i%16} {FULL}", [f"v{H+i//16}", f"v{acc+k}"], [f"v{r}"], "dpp"); first = False
                else: valu(f"v_fmac_f32_dpp v{r}, v{H+i//16}, |v{acc+k}| row_newbcast:{i%16} {FULL}", [f"v{H+i//16}", f"v{acc+k}", f"v{r}"], [f"v{r}"], "dpp")
        if t == 0:
            for cb in deferred: cb()
            deferred.clear()
        if t % 2 == 1 and t >= 3 and (t - 3) // 2 in PAIRS[m]:
            qq = (t - 3) // 2; mm9(AH + 16 * qq + 4 * var, rf[qq])
    for ks in range(4): mm9(AN9 + 16 * var + 4 * ks, fb + 4 * ks)
    if 3 in PAIRS[m]:
        deferred.append(lambda: mm9(AH + 48 + 4 * var, rf[3]))
        if fin: deferred.append(fin)
    elif fin: fin()
def swap(w, a, b): valu(f"v_permlane{w}_swap_b32 v{a}, v{b}", [f"v{a}", f"v{b}"], [f"v{a}", f"v{b}"], "perm")
def add(d, a, b): valu(f"v_add_f32 v{d}, v{a}, v{b}", [f"v{a}", f"v{b}"], [f"v{d}"])
def mov(d, a): valu(f"v_mov_b32 v{d}, v{a}", [f"v{a}"], [f"v{d}"])
def tred(r):
    swap(32, r, r+2); add(r, r, r+2); swap(32, r+1, r+3); add(r+1, r+1, r+3); swap(16, r, r+1); add(r, r, r+1)
def softmax(ES):
    E = [x[0] for x in ES]
    valu(f"v_max3_f32 v{MX}, v{E[0]}, v{E[1]}, v{E[2]}", [f"v{x}" for x in E[:3]], [f"v{MX}"])
    valu(f"v_max3_f32 v{MX}, v{MX}, v{E[3]}, v{E[4]}", [f"v{MX}", f"v{E[3]}", f"v{E[4]}"], [f"v{MX}"])
    valu(f"v_max_f32 v{MX}, v{MX}, v{E[5]}", [f"v{MX}", f"v{E[5]}"], [f"v{MX}"])
    for c in ("row_ror:8 " + FULL, "row_ror:4 " + FULL, "row_ror:2 " + FULL, "row_ror:1 " + FULL, "row_bcast:15 row_mask:0xa bank_mask:0xf", "row_bcast:31 row_mask:0xc bank_mask:0xf"):
        valu(f"v_max_f32_dpp v{MX}, v{MX}, v{MX} {c}", [f"v{MX}"], [f"v{MX}"], "dpp")
    valu(f"v_mul_f32 v{MX}, v{VCS}, v{MX}", [f"v{MX}", f"v{VCS}"], [f"v{MX}"])
    valu(f"v_readlane_b32 s{S_MAX}, v{MX}, 63", [f"v{MX}"], [f"s{S_MAX}"], "readlane")
    for i, (x, s) in enumerate(ES):
        valu(f"v_fma_f32 v{x}, v{x}, v{VCS}, -s{S_MAX}", [f"s{S_MAX}", f"v{x}", f"v{VCS}"], [f"v{x}"])
        valu(f"v_exp_f32 v{x}, v{x}", [f"v{x}"], [f"v{x}"], "trans", cost=2)
        if i == 0: valu(f"v_mul_f32 v{NUM}, v{x}, v{s}", [f"v{x}", f"v{s}"], [f"v{NUM}"])
        else: valu(f"v_fmac_f32 v{NUM}, v{x}, v{s}", [f"v{x}", f"v{s}", f"v{NUM}"], [f"v{NUM}"])
        if i == 1: add(DEN, ES[0][0], x)
        elif i > 1: add(DEN, DEN, x)
    swap(32, NUM, DEN)
    o1 = len(ops); mov(TC, TB); mov(TB, TA); add(TA, NUM, DEN)
    for o in ops[o1:]: o.rot = True
def salu(text, R, W): return valu(text, R, W, "salu")
STEPS = [("ror8", 8)] + [("ror", t) for t in range(1, 8)] + [("star", 0)] + [("k10", k) for k in range(3)] + [("star", c) for c in range(1, 10)]
def do_form(si, t0, t1):
    kind, a = STEPS[si]
    fb = VZ if kind == "ror8" else F[(si - 1) % 2]
    if kind == "star": form(fb, VY, f"row_newbcast:{POS[a]}", VX, t0, t1)
    elif kind == "k10": form(fb, VY, K10[a][0], VZ, t0, t1)
    else: form(fb, VX, f"row_ror:{a}", VX, t0, t1)
    return fb
NIT = 4
ST = [0]
for m in MS: ST.append(ST[-1] + 36 + m)
for it in range(NIT):
    IT[0] = it; B0 = it * PIT; rfc[0] = 0
    assert MC[0] == B0
    S = lambda x: B0 + ST[int(x)] + (x - int(x)) * (ST[int(x) + 1] - ST[int(x)] if int(x) < 21 else 0)
    tiles = []
    o1 = len(ops)
    at(B0 + 1, LSP); ly = view_load(VY + 16, IDX + 1); lz = view_load(VZ + 16, IDX + 2)
    for o in ly + lz: o.nb2 = o.prio - 1
    IT[0] = it + 1
    at(S(8.5), 3.0)
    TT[1] = LSP
    li = [valu(f"buffer_load_dword v{IDX+k}, v{[OX,OY,OZ][k]}, s[{S_SRD}:{S_SRD+3}], s{S_IT} offen offset:{64 if k else 0}", [f"v{[OX,OY,OZ][k]}", f"s{S_IT}"], [f"v{IDX+k}"], "vmem") for k in range(3)]
    salu(f"s_addk_i32 s{S_IT}, 104", [f"s{S_IT}"], [f"s{S_IT}", "scc"]); salu(f"s_cmp_lt_u32 s{S_IT}, {104 * (int(opts.get('iters', 4)) + 1)}", [f"s{S_IT}"], ["scc"])
    for o in li: o.nb2 = o.prio - 1
    for o in ops[o1:]: o.nb = getattr(o, 'nb2', B0)
    IT[0] = it
    grp = 0
    for si in range(NSTEP):
        kind, a = STEPS[si]; m = MS[si]
        if si == 8:
            at(S(4), (S(6.5) - S(4)) / 32); wait_for(vr(VY+16,16), ly, LAT_FAR); unpack(VY, VY + 16)
        if si == 9:
            at(S(6.3), (S(8.3) - S(6.3)) / 32); wait_for(vr(VZ+16,16), lz, LAT_FAR); unpack(VZ, VZ + 16)
        if si > 0 or it == 0: fb = do_form(si, S(si - 1) if si else -40, S(si))
        else: fb = VZ
        if si == 11:
            IT[0] = it + 1
            at(S(12.2), 2.0); wait_for(vr(IDX,3), li, LAT_NEAR)
            for k in range(3): valu(f"v_lshl_add_u32 v{IDX+k}, v{IDX+k}, 8, v{GOFF}", [f"v{IDX+k}", f"v{GOFF}"], [f"v{IDX+k}"])
            TT[1] = LSP; o2 = len(ops)
            lx = view_load(VZ + 16, IDX)
            if TOUCH:
                for q in range(2): valu(f"global_load_dword v{PFR+q}, v{IDX+1}, s[{S_TAB}:{S_TAB+1}] offset:{128*q}", [f"v{IDX+1}"], [f"v{PFR+q}"], "vmem")
            for o in ops[o2:]: o.nb = o.prio - 1
            IT[0] = it
        if si == NSTEP - 1:
            IT[0] = it + 1
            at(S(19.4), (S(20.5) - S(19.4)) / 32); wait_for(vr(VZ+16,16), lx, LAT_FAR); unpack(VX, VZ + 16)
            do_form(0, S(20.15), S(21))
            IT[0] = it
        if kind == "ror8":
            rb = RR + 4 * (grp % 2); grp += 1
            def fin(rb=rb, m=m):
                at(MC[0] + 4, 2.0)
                if m < 4: swap(32, rb, rb+2); add(rb, rb, rb+2); swap(16, rb, rb+1); add(rb, rb, rb+1)
                add(D9M, D9M, D9M + 2)
                if m < 4: add(D9M, D9M, rb)
                at(S(3.2), 2.0)
                valu(f"v_cndmask_b32 v{EM}, v{NEGINF}, v{D9M}, s[{S_MA}:{S_MA+1}]", [f"v{NEGINF}", f"v{D9M}"], [f"v{EM}"])
                mov(SM, D9M + 1)
            step_mm(fb, rb, D9M, 0, 0, m, fin)
            tiles.append((EM, SM))
        else:
            reg = si - 1; var = reg % 4
            if var == 0:
                d9 = D9 + 4 * (reg // 4); rb = RR + 4 * (grp % 2); grp += 1
                g4 = [MS[si + j] == 4 for j in range(4)]; assert all(g4) or not any(g4)
            fin = None
            if var == 3:
                def fin(rb=rb, d9=d9, reg=reg, full=all(g4)):
                    at(MC[0] + 5, 3.0)
                    dst = E0 if reg == 3 else d9
                    if full: add(dst, d9, d9 + 2)
                    else: tred(rb); add(d9, d9, d9 + 2); add(dst, d9, rb)
                    if reg == 3: mov(S0, d9 + 1)
                tiles.append((E0, S0) if reg == 3 else (d9, d9 + 1))
            step_mm(fb, rb + var, d9, var, (MASKC if reg == 8 else 0) if var == 0 else None, m, fin)
    at(B0 + PIT + 30, (ST[3] - 30) / 42)
    softmax(tiles)
out, st = schedule(ops, look=LOOK, late=float(opts.get('late', 4)))
bad = verify(out)
assert bad == 0
lines = finalize(out)
cuts = [i for i, o in enumerate(out) if o.kind == "mfma" and o.g % PIT == 0]
s1 = lines[cuts[1]:cuts[2]]; s2 = lines[cuts[2]:cuts[3]]
if s1 != s2:
    for i, (a, b) in enumerate(zip(s1, s2)):
        if a != b: print("diff at", i, len(s1), len(s2), s1[i-3:i+3], s2[i-3:i+3], file=sys.stderr); break
    raise SystemExit("body not periodic")
body = s1; bops = out[cuts[1]:cuts[2]]
pre_ops = [o for o in out[:cuts[1]] if o.kind != "nop" and o.it >= 1]
post_ops = [o for o in bops if o.kind != "nop" and o.it == 0]
assert sum(1 for o in pre_ops if o.kind == 'vmem') == 7 + 2 * TOUCH and sum(1 for o in pre_ops if o.kind == 'salu') == 2
assert not any(o.kind == "mfma" for o in post_ops)
nm = sum(1 for o in bops if o.kind == "mfma"); nf = sum(o.cost for o in bops if o.kind not in ("mfma", "nop"))
print(st, "body len", len(body), "est cycles/iter", est_cycles(bops), "issue", nm * 8 + nf * 4, "pipe", nm * 16, "pre", len(pre_ops), "post", len(post_ops), "nops in body", sum(1 for o in bops if o.kind == "nop"), file=sys.stderr)
if int(opts.get("prof", 0)):
    seg = []; cur_ = []; nm_ = 0
    for o in bops:
        if o.kind == "mfma":
            if nm_ in ST and cur_: seg.append(cur_); cur_ = []
            nm_ += 1
        cur_.append(o)
    seg.append(cur_)
    from collections import Counter
    for i, sg in enumerate(seg): print(i, est_cycles(sg + [sg[0]]) - 8, dict(Counter(o.kind for o in sg)), file=sys.stderr)
e("s_cmp_ge_u32 s2, 256"); e("s_cbranch_scc1 L_done")
stamp()
e("s_load_dwordx4 s[4:7], s[0:1], 0"); e("s_load_dwordx4 s[8:11], s[0:1], 32")
e("s_load_dwordx4 s[12:15], s[0:1], 48"); e("s_load_dwordx2 s[16:17], s[0:1], 64")
T = D9
vN, vG, vL, vW0, vW1, vWN, vPF, vSM, vT0, vT1, vT2, vWV, vTR, vNA = T, T+1, T+2, T+3, T+4, T+5, T+6, T+7, T+8, T+9, T+10, T+11, T+12, T+20
vHA = RF; vBA = RF + 4; vHD = RF + 5
vm = []; dsq = []
def vmem(s, tag): e(s); vm.append(tag)
def vwait(tag):
    last = max(i for i, t in enumerate(vm) if t == tag)
    e(f"s_waitcnt vmcnt({len(vm) - 1 - last})")
def ds(s, tag): e(s); dsq.append(tag)
def dwait(tag):
    last = max(i for i, t in enumerate(dsq) if t == tag)
    e(f"s_waitcnt lgkmcnt({min(15, len(dsq) - 1 - last)})")
e(f"v_lshrrev_b32 v{vWV}, 6, v0")
e(f"v_and_b32 v{vN}, 15, v0")
e(f"v_readfirstlane_b32 s{S_WAVE}, v{vWV}")
e(f"v_bfe_u32 v{vG}, v0, 4, 2")
e(f"v_lshlrev_b32 v{OX}, 2, v{vN}")
e(f"s_lshl_b32 s3, s2, 2"); e(f"s_add_u32 s3, s3, s{S_WAVE}")
e(f"s_mul_i32 s19, s3, 416")
def nib(tab): return sum(v << (4 * i) for i, v in enumerate(tab))
e(f"s_mov_b32 s{S_T}, 0x{nib(YT) & 0xffffffff:08x}"); e(f"s_mov_b32 s{S_T+1}, 0x{nib(YT) >> 32:08x}")
e(f"s_mov_b32 s{S_T+2}, 0x{nib(ZT) & 0xffffffff:08x}"); e(f"s_mov_b32 s{S_T+3}, 0x{nib(ZT) >> 32:08x}")
e(f"v_lshrrev_b64 v[{vT0}:{vT0+1}], v{OX}, s[{S_T}:{S_T+1}]")
e(f"v_and_b32 v{OY}, 15, v{vT0}")
e(f"v_lshrrev_b64 v[{vT0}:{vT0+1}], v{OX}, s[{S_T+2}:{S_T+3}]")
e(f"v_and_b32 v{OZ}, 15, v{vT0}")
e(f"v_add_u32 v{OX}, s19, v{OX}")
e(f"v_lshl_add_u32 v{OY}, v{OY}, 2, s19")
e(f"v_lshl_add_u32 v{OZ}, v{OZ}, 2, s19")
e(f"v_lshlrev_b32 v{GOFF}, 4, v{vG}")
e(f"s_lshl_b32 s{S_T}, s{S_WAVE}, 13")
e(f"v_lshrrev_b32 v{vT2}, 1, v{vN}")
e(f"v_xor_b32 v{vT0}, v{vT2}, v{vG}")
e(f"v_lshlrev_b32 v{vT0}, 5, v{vT0}")
e(f"v_and_b32 v{vT1}, 1, v0")
e(f"v_lshl_add_u32 v{vT0}, v{vT1}, 4, v{vT0}")
e(f"v_lshl_add_u32 v{vT0}, v{vG}, 8, v{vT0}")
e(f"v_add_u32 v{vW0}, s{S_T}, v{vT0}")
e(f"v_xor_b32 v{vW1}, 0x80, v{vW0}")
e(f"v_and_b32 v{vL}, 63, v0"); e(f"v_lshlrev_b32 v{vL}, 2, v{vL}")
e(f"v_lshlrev_b32 v{vT1}, 2, v{vT1}")
e(f"v_lshl_add_u32 v{vT0}, v{vT2}, 5, v{vT1}"); e(f"v_lshl_add_u32 v{vT0}, v{vG}, 3, v{vT0}")
e(f"v_cmp_eq_u32 vcc, 0, v{vWV}")
e(f"v_and_b32 v{vT2}, 1, v{vT2}"); e(f"v_lshl_add_u32 v{vT1}, v{vT2}, 5, v{vT1}")
e(f"v_cndmask_b32 v{vSM}, v{vL}, v{vT0}, vcc")
e(f"v_cmp_eq_u32 vcc, 3, v{vWV}")
e(f"v_lshrrev_b32 v{vT2}, 2, v{vN}"); e(f"v_lshl_add_u32 v{vT1}, v{vT2}, 3, v{vT1}"); e(f"v_lshl_add_u32 v{vT1}, v{vG}, 6, v{vT1}")
e(f"v_cndmask_b32 v{vSM}, v{vSM}, v{vT1}, vcc")
if PF:
    e("s_getpc_b64 s[32:33]")
    L.append("L_pfbase:")
    e(f"v_lshlrev_b32 v{vPF}, 7, v0")
    e(f"v_min_u32 v{vPF}, L_end-L_pfbase-4, v{vPF}")
e(f"s_add_u32 s{S_T+1}, s{S_T}, 0x1000")
e(f"s_mov_b32 s{S_T+2}, {O_P}"); e(f"s_cmp_eq_u32 s{S_WAVE}, 0"); e(f"s_cselect_b32 s{S_T+2}, {O_B}, s{S_T+2}")
e(f"s_cmp_eq_u32 s{S_WAVE}, 1"); e(f"s_cselect_b32 s{S_T+2}, {O_H}, s{S_T+2}")
e(f"s_cmp_eq_u32 s{S_WAVE}, 3"); e(f"s_cselect_b32 s{S_T+2}, {O_HH}, s{S_T+2}")
e(f"s_mov_b32 m0, s{S_T}")
e(f"s_cmp_eq_u32 s{S_WAVE}, 0")
e("s_waitcnt lgkmcnt(0)")
stamp()
vmem(f"global_load_dword v{IDX}, v{OX}, s[{S_IDX}:{S_IDX+1}]", "idx0")
for half in range(2):
    for q in range(4):
        vmem(f"global_load_lds_dwordx4 v{vW1 if q & 2 else vW0}, s[{S_W}:{S_W+1}] offset:{1024*q}", "wdma")
    if half == 0:
        e(f"v_add_u32 v{vW0}, 0x1000, v{vW0}"); e(f"s_mov_b32 m0, s{S_T+1}"); e(f"v_add_u32 v{vW1}, 0x1000, v{vW1}")
e(f"s_cselect_b64 s[34:35], s[{S_B}:{S_B+1}], s[{S_H}:{S_H+1}]")
e(f"s_cmp_eq_u32 s{S_WAVE}, 2"); e(f"s_mov_b32 m0, s{S_T+2}"); e(f"s_cselect_b64 s[34:35], s[{S_P}:{S_P+1}], s[34:35]")
vmem(f"global_load_lds_dword v{vSM}, s[34:35]", "wdma")
if PF == 1: vmem(f"global_load_dword v{PFR}, v{vPF}, s[32:33]", "pf")
stamp()
vwait("idx0"); stamp()
e(f"v_lshl_add_u32 v{IDX}, v{IDX}, 8, v{GOFF}")
for q in range(4): vmem(f"global_load_dwordx4 {rng(VZ+16+4*q,4)}, v{IDX}, s[{S_TAB}:{S_TAB+1}] offset:{64*q}", "view0")
if PF == 2: vmem(f"global_load_dword v{PFR}, v{vPF}, s[32:33]", "pf")
for k in range(1, 3): vmem(f"global_load_dword v{IDX+k}, v{[OX,OY,OZ][k]}, s[{S_IDX}:{S_IDX+1}] offset:64", "idx1")
for r in range(4): e(f"v_mov_b32 v{MASKC+r}, 0")
ds(f"ds_write_b32 v{vL}, v{MASKC+1} offset:{O_Z}", "z")
e(f"v_mov_b32 v{NEGINF}, 0xff800000")
e(f"v_mov_b32 v{VCS}, {f32(CSC)}")
e(f"s_mov_b32 s{S_MA}, 0x{inval & 0xffffffff:08x}"); e(f"s_mov_b32 s{S_MA+1}, 0x{inval >> 32:08x}")
e(f"v_cndmask_b32 v{MASKC}, v{MASKC}, v{NEGINF}, s[{S_MA}:{S_MA+1}]")
e(f"s_mov_b32 s{S_MA}, 0xff"); e(f"s_mov_b32 s{S_MA+1}, 0"); e(f"s_movk_i32 s{S_IT}, 104")
e(f"s_mov_b32 s{S_OM}, 0x00010001"); e(f"s_mov_b32 s{S_OM+1}, 0x00010001")
e(f"s_mov_b32 s{S_SRD}, s{S_IDX}"); e(f"s_mov_b32 s{S_SRD+1}, s{S_IDX+1}"); e(f"s_mov_b32 s{S_SRD+2}, {4096*104}"); e(f"s_mov_b32 s{S_SRD+3}, 0x00020000")
e(f"s_lshl_b32 s3, s3, 3"); e(f"v_lshl_add_u32 v{OOFF}, v{vG}, 1, s3")
e(f"v_lshrrev_b32 v{vT0}, 3, v{vN}"); e(f"v_and_b32 v{vT1}, 3, v{vN}"); e(f"v_lshl_or_b32 v{vT0}, v{vT0}, 2, v{vT1}")
e(f"v_lshrrev_b32 v{vT1}, 1, v{vG}"); e(f"v_xor_b32 v{vT0}, v{vT0}, v{vT1}"); e(f"v_lshlrev_b32 v{vT0}, 5, v{vT0}")
e(f"v_and_b32 v{vT1}, 1, v{vG}"); e(f"v_lshl_add_u32 v{vT0}, v{vT1}, 4, v{vT0}"); e(f"v_lshl_add_u32 v{vT0}, v{vN}, 8, v{vT0}")
e(f"v_add_u32 v{vWN}, s{S_T}, v{vT0}")
vWNk = [vWN, vW0, vW1, vSM]
for ks in range(1, 4): e(f"v_xor_b32 v{vWNk[ks]}, {ks << 6}, v{vWN}")
e(f"v_lshrrev_b32 v{vT0}, 2, v{vN}")
e(f"v_lshl_or_b32 v{vT1}, v{vT1}, 2, v{vT0}")
e(f"v_lshl_add_u32 v{vT0}, v{vG}, 3, v{vT0}"); e(f"v_lshlrev_b32 v{vT0}, 8, v{vT0}")
e(f"v_lshl_add_u32 v{vT0}, v{vT1}, 5, v{vT0}")
e(f"v_and_b32 v{vT1}, 3, v{vN}"); e(f"v_lshl_add_u32 v{vTR}, v{vT1}, 3, v{vT0}")
for t in range(1, 8): e(f"v_xor_b32 v{vTR+t}, {t << 5}, v{vTR}")
e(f"s_movk_i32 s{S_T+2}, {AS}")
for var in range(4):
    e(f"v_subrev_u32 v{vT0}, {4*var}, v{vN}"); e(f"v_min_u32 v{vNA+var}, 3, v{vT0}")
    e(f"v_mad_u32_u24 v{vNA+var}, v{vNA+var}, s{S_T+2}, v{GOFF}")
    e(f"v_min_u32 v{vT0}, 1, v{vT0}"); e(f"v_xor_b32 v{vT0}, 1, v{vT0}"); e(f"v_mad_u32_u24 v{vHA+var}, v{vT0}, s{S_T+2}, v{GOFF}")
e(f"v_lshrrev_b32 v{vT0}, 2, v{vN}"); e(f"v_lshlrev_b32 v{vT0}, 5, v{vT0}")
e(f"v_lshl_add_u32 v{vT0}, v{vT1}, 1, v{vT0}"); e(f"v_lshl_add_u32 v{vHD}, v{vG}, 3, v{vT0}")
e(f"v_lshlrev_b32 v{vBA}, 6, v{vG}")
e(f"s_lshl_b32 s{S_T+1}, s{S_WAVE}, 6"); e(f"v_lshl_add_u32 v{vT2}, v{vN}, 1, s{S_T+1}")
vwait("wdma"); e("s_waitcnt lgkmcnt(0)")
stamp(); e("s_barrier"); stamp()
WN = F[0]; HB = ACC; WHA = RR
trs = [f"ds_read_b64_tr_b16 {rng(AW+(t*4+ks)*4+2*u,2,'a')}, v{vTR+t} offset:{8192*ks+1024*u}" for t in range(8) for ks in range(4) for u in range(2)]
def tr(n):
    for _ in range(n):
        if trs: ds(trs.pop(0), "tr")
for ks in range(4): ds(f"ds_read_b128 {rng(HB+4*ks,4)}, v{GOFF} offset:{O_H+64*ks}", "wn")
for uu in range(2):
    for ks in range(4): ds(f"ds_read_b128 {rng(WN+16*uu+4*ks,4)}, v{vWNk[ks]} offset:{4096*uu}", "wn")
for k in range(4): ds(f"ds_read_b128 {rng(BIAS+16+4*k,4)}, v{vBA} offset:{O_B+16*k}", "bb")
for q in range(2): ds(f"ds_read_u16 v{H+q}, v{vHD} offset:{O_H+128*q}", "bb")
tr(6)
dwait("wn")
for ks in range(4):
    for uu in range(2):
        c = "0" if ks == 0 else rng(WHA+4*uu, 4)
        e(f"v_mfma_f32_16x16x32_bf16 {rng(WHA+4*uu,4)}, {rng(HB+4*ks,4)}, {rng(WN+16*uu+4*ks,4)}, {c}")
        tr(1)
tr(8)
for uu in range(2):
    a = WHA + 4 * uu
    e(f"v_cvt_pk_bf16_f32 v{a+1}, v{a}, v{a}")
    e(f"v_lshlrev_b32 v{a+2}, 16, v{a+1}")
    e(f"v_sub_f32 v{a+2}, v{a}, v{a+2}")
    e(f"v_cvt_pk_bf16_f32 v{a+2}, v{a+2}, v{a+2}")
    ds(f"ds_write_b16 v{vT2}, v{a+1} offset:{O_HI+32*uu}", "whw")
    ds(f"ds_write_b16 v{vT2}, v{a+2} offset:{O_LO+32*uu}", "whw")
dwait("bb")
bu = [f"v_lshlrev_b32 v{H+q}, 16, v{H+q}" for q in range(2)]
for q in range(16):
    s_ = BIAS + 16 + q
    bu += [f"v_lshlrev_b32 v{BIAS+2*q}, 16, v{s_}", f"v_and_b32 v{BIAS+2*q+1}, 0xffff0000, v{s_}"]
while trs:
    tr(1)
    if bu: e(bu.pop(0))
assert not bu
for var in range(4):
    for q in range(4): ds(f"ds_read_b128 {rng(AH+16*q+4*var,4,'a')}, v{vHA+var} offset:{O_Z+64*q}", "ah")
dwait("whw")
e("s_barrier")
stamp()
vwait("idx1")
stamp()
for k in range(1, 3): e(f"v_lshl_add_u32 v{IDX+k}, v{IDX+k}, 8, v{GOFF}")
if TOUCH:
    for q in range(2): vmem(f"global_load_dword v{PFR+q}, v{IDX+1}, s[{S_TAB}:{S_TAB+1}] offset:{128*q}", "touch")
n9 = [f"ds_read_b128 {rng(AN9+16*var+4*ks,4,'a')}, v{vNA+var} offset:{O_HI+64*ks}" for var in range(4) for ks in range(4)]
pre = [o for o in pre_ops if o.kind in VALUK and not o.text.startswith("v_lshl_add_u32")]
pre2 = [Op(o.text, o.kind, o.R, o.W, prio=i) for i, o in enumerate(sorted(pre, key=lambda o: o.seq))]
po, _ = schedule(pre2); assert verify(po) == 0
for i, s_ in enumerate(finalize(po)):
    e(s_)
    if i % 3 == 0 and n9: ds(n9.pop(0), "n9")
assert not n9
e("s_waitcnt lgkmcnt(0)")
e("s_nop 1")
if DBG == 4:
    e("s_load_dwordx2 s[98:99], s[0:1], 72"); e("s_waitcnt lgkmcnt(0)"); e("s_not_b32 s34, s40"); e(f"v_mov_b32 v{PFR}, s34"); e(f"v_mov_b32 v{PFR+1}, 0")
    e("s_waitcnt vmcnt(0)"); e("s_mov_b64 exec, 1"); e(f"global_atomic_umax v{PFR+1}, v{PFR}, s[98:99]"); e("s_mov_b64 exec, -1")
if DBG: e("s_mov_b32 s34, 0")
L.append(".p2align 6"); L.append("L_loop:")
if DBG and not STEPST: e("s_mov_b32 m0, s34"); e("s_memrealtime s[32:33]"); e("s_waitcnt lgkmcnt(0)"); e(f"s_movreld_b32 s{40+2*NST[0]}, s32"); e("s_add_u32 s34, s34, 2"); NST[0] += 4
nm_ = 0
for s in body:
    if s.startswith("v_mfma"):
        if STEPST and nm_ in ST: stamp(True)
        nm_ += 1
    e(s)
if STEPST: stamp(True)
e("s_cbranch_scc1 L_loop")
stamp()
e("s_nop 7")
ops = []; IT[0] = 0; at(0, 1)
for o in sorted(post_ops, key=lambda o: o.seq):
    if getattr(o, "rot", False): continue
    valu(o.text, o.R, o.W, o.kind, cost=o.cost)
add(NUM, NUM, DEN)
swap(16, TC, TB); add(TC, TC, TB); swap(16, TA, NUM); add(TA, TA, NUM)
for c in (8, 4, 2, 1):
    for r in (TC, TA): valu(f"v_add_f32_dpp v{r}, v{r}, v{r} row_ror:{c} {FULL}", [f"v{r}"], [f"v{r}"], "dpp")
swap(32, TC, TA)
valu(f"v_rcp_f32 v{TA}, v{TA}", [f"v{TA}"], [f"v{TA}"], "trans", cost=2)
valu(f"v_mul_f32 v{TC}, v{TC}, v{TA}", [f"v{TC}", f"v{TA}"], [f"v{TC}"])
valu(f"v_cvt_pk_bf16_f32 v{TC}, v{TC}, v{TC}", [f"v{TC}"], [f"v{TC}"])
to, _ = schedule(ops); assert verify(to) == 0
print("tail est", est_cycles(to), "pre est", est_cycles(po), file=sys.stderr)
for s in finalize(to): e(s)
stamp()
if DBG == 4:
    a_, b_, K_ = int(opts["sa"]), int(opts["sb"]), int(opts["sk"])
    if b_ < 0: b_ += NST[0]
    e("s_waitcnt lgkmcnt(0)")
    if a_ >= 0:
        e(f"s_sub_u32 s34, s{40+2*b_}, s{40+2*a_}")
    else:
        e("v_mov_b32 v1, 0"); e("global_load_dword v2, v1, s[98:99] sc1"); e("s_waitcnt vmcnt(0)"); e("v_readfirstlane_b32 s34, v2"); e("s_nop 3")
        e("s_not_b32 s34, s34"); e(f"s_sub_u32 s34, s{40+2*b_}, s34")
    e("s_min_u32 s34, s34, 10000"); e(f"s_mul_i32 s34, s34, {K_}"); e("s_min_u32 s34, s34, 20000")
    stamp(); e("s_waitcnt lgkmcnt(0)")
    L.append("L_spin:")
    e("s_memrealtime s[32:33]"); e("s_waitcnt lgkmcnt(0)")
    e(f"s_sub_u32 s35, s32, s{40+2*(NST[0]-1)}"); e("s_cmp_lt_u32 s35, s34"); e("s_cbranch_scc1 L_spin")
if DBG == 1:
    e("s_load_dwordx2 s[34:35], s[0:1], 80"); e("s_waitcnt lgkmcnt(0)")
    e("s_lshl_b32 s3, s3, 4"); e(f"v_mov_b32 v1, s3")
    for k in range(NST[0]):
        e(f"v_mov_b32 v2, s{40+2*k}"); e(f"global_store_dword v1, v2, s[34:35] offset:{4*k}")
    e(f"v_mov_b32 v2, {NST[0]}"); e(f"global_store_dword v1, v2, s[34:35] offset:124")
e(f"s_mov_b64 exec, s[{S_OM}:{S_OM+1}]")
e(f"global_store_short v{OOFF}, v{TC}, s[{S_OUT}:{S_OUT+1}]")
L.append("L_done:")
e("s_endpgm")
L.append("L_end:")
L += ['.section .rodata,"a"', ".p2align 6", ".amdhsa_kernel %s_kernel" % NAME,
      "  .amdhsa_next_free_vgpr 512", "  .amdhsa_next_free_sgpr %d" % (100 if DBG else 40), "  .amdhsa_accum_offset 256",
      "  .amdhsa_group_segment_fixed_size 0", "  .amdhsa_kernarg_size 88", "  .amdhsa_user_sgpr_count 2",
      "  .amdhsa_user_sgpr_kernarg_segment_ptr 1", "  .amdhsa_system_sgpr_workgroup_id_x 1",
      "  .amdhsa_float_denorm_mode_32 3",
      ".end_amdhsa_kernel"]
print("\n".join(L))
```

```python
import sys, math, struct
from sched import *
NAME = "standalone__factorization_afm__recsys"
opts = dict(a.split("=") for a in sys.argv[1:] if "=" in a)
LAT_FAR = int(opts.get("latfar", 450)); LAT_NEAR = int(opts.get("latnear", 300))
DBG = int(opts.get("dbg", 0)); PF = int(opts.get("pf", 2))
TOUCH = int(opts.get('touch', 1))
LSP = float(opts.get('lsp', 9))
EPI = float(opts.get("epi", 3.1)); LOOK = int(opts.get("look", 30))
YT = [6,0,4,4,2,3,6,9,3,7,0,1,8,5,3,4]
ZT = [5,2,7,7,9,7,1,0,1,5,4,8,2,9,6,8]
K10 = [("", lambda n: n), ("quad_perm:[1,0,3,2]", lambda n: n ^ 1), ("quad_perm:[2,3,0,1]", lambda n: n ^ 2)]
seen = set(); inval = 0
for k, (_, pi) in enumerate(K10):
    for n in range(16):
        a, b = ZT[n], YT[pi(n)]; key = (min(a, b), max(a, b))
        if a == b or key in seen: inval |= 1 << (16 * k + n)
        else: seen.add(key)
assert len(seen) == 45
POS = [YT.index(c) for c in range(10)]
FULL = "row_mask:0xf bank_mask:0xf"
BIAS = 0; VX = 32; VY = 64; VZ = 96; F = [128, 144]; TMP = 160; ACC = 168; RR = 184; D9 = 192; D9M = 212
MASKC = 216; RF = 220; RF2 = RR
SIX = 232; NEGINF = 234; MX = 235; NUM = 236; DEN = 237; TA = 238; TB = 239; TC = 240; E0 = 241; S0 = 242; EM = 243; SM = 244
IDX = 245; OX = 248; OY = 249; OZ = 250; GOFF = 251; OOFF = 252; VCS = 253; PFR = 254
AW = 0; AN9 = 128; AH = 160; AZ = 192
S_IDX = 4; S_TAB = 6; S_W = 8; S_B = 10; S_H = 12; S_P = 14; S_OUT = 16; S_WAVE = 18; S_MA = 20; S_MAX = 24; S_T = 26; S_OM = 30; S_IT = 22; S_INC = 23; S_SRD = 36
LN9 = 32768
O_HI = LN9; O_P = LN9 + 256; O_Z = LN9 + 512; O_HH = LN9 + 640; O_B = LN9 + 896; O_H = O_B + 256
CSC = 0.5 * math.log2(math.e)
def f32(x): return "0x%08x" % struct.unpack("<I", struct.pack("<f", x))[0]
L = []
def e(s): L.append("    " + s)
hdr = open("cdna_kernels/%s.s.ref" % NAME).read().split("\n")
for line in hdr:
    if line.startswith("; @launch"):
        L.append("; @launch grid=(256,1,1) block=(256,1,1) lds=34304"); break
    L.append(line)
L += ['.amdgcn_target "amdgcn-amd-amdhsa--gfx950"', ".text", ".globl %s_kernel" % NAME, ".p2align 8",
      ".type %s_kernel,@function" % NAME, "%s_kernel:" % NAME]
NST = [0]
STEPST = int(opts.get('stepst', 0))
def stamp(force=False):
    if DBG and (not STEPST or force): e(f"s_memrealtime s[{40+2*NST[0]}:{41+2*NST[0]}]"); NST[0] += 1
NSTEP = 21; NM = [36 + (1 if si == 0 or (si - 1) % 4 == 0 else 0) for si in range(21)]; PIT = sum(NM)
ops = []
TT = [0.0, 0.0]; IT = [0]; MC = [0]
def at(t, inc): TT[0] = t; TT[1] = inc
def push(o): o.it = IT[0]; ops.append(o); return o
def valu(text, R, W, kind="valu", **kw):
    if kind in ("perm", "vmem"): kw["cost"] = 2
    o = Op(text, kind, R, W, prio=round(TT[0] + 1e-4, 3), **kw); TT[0] += TT[1]; return push(o)
def view_load(raw, ireg):
    return [valu(f"global_load_dwordx4 {rng(raw+4*q,4)}, v{ireg}, s[{S_TAB}:{S_TAB+1}] offset:{64*q}", [f"v{ireg}"], vr(raw+4*q,4), "vmem") for q in range(4)]
def wait_for(regs, ls, lat):
    return push(Op("wait", "wait", R=regs, W=regs, covers=ls, lat=lat, prio=round(TT[0] + 1e-4, 3)))
def unpack(V, raw):
    for q in range(16):
        s = raw + q
        valu(f"v_lshlrev_b32 v{V+2*q}, 16, v{s}", [f"v{s}"], [f"v{V+2*q}"])
        valu(f"v_and_b32 v{V+2*q+1}, 0xffff0000, v{s}", [f"v{s}"], [f"v{V+2*q+1}"])
def form(fb, P, ctrl, Q, t0, t1, sfx=''):
    at(t0 + 0.2, (t1 - t0 - 2.5) / 48)
    for i in range(32):
        d = TMP + i % 8
        if ctrl: valu(f"v_mul_f32_dpp v{d}, v{P+i}, v{Q+i} {ctrl} {FULL}{sfx}", [f"v{P+i}", f"v{Q+i}"], [f"v{d}"], "dpp")
        else: valu(f"v_mul_f32 v{d}, v{P+i}, v{Q+i}", [f"v{P+i}", f"v{Q+i}"], [f"v{d}"])
        if i % 2: valu(f"v_cvt_pk_bf16_f32 v{fb+i//2}, v{d-1}, v{d}", [f"v{d-1}", f"v{d}"], [f"v{fb+i//2}"])
def mm(D, A, B, ct, cr):
    MC[0] += 1
    push(mfma(f"v_mfma_f32_16x16x32_bf16 {rng(D,4)}, {rng(A,4,'a')}, {rng(B,4)}, {ct}", vr(D,4), vr(A,4,'a'), vr(B,4), cr))
deferred = []
def smf(D, A, B):
    MC[0] += 1
    o = mfma(f"v_smfmac_f32_16x16x64_bf16 {rng(D,4)}, {rng(A,4,'a')}, {rng(B,8)}, v{SIX}", vr(D,4), vr(A,4,'a') + [f"v{SIX}"], vr(B,8), vr(D,4)); o.free = 1
    push(o)
def step_mm(fb, d9, var, cinit, fin):
    it0 = IT[0]
    for t in range(8):
        acc = ACC + 4 * (t % 4)
        for ks in range(4):
            c = BIAS + 4 * t if ks == 0 else acc
            mm(acc, AW + (t * 4 + ks) * 4, fb + 4 * ks, rng(c, 4), vr(c, 4))
        at(MC[0] - 1 + EPI, 1.0)
        rf = RF if t < 4 else RF2
        for c in range(2):
            d = rf + 2 * (t % 4) + c
            valu(f"v_cvt_pk_bf16_f32 v{d}, |v{acc+2*c}|, |v{acc+2*c+1}|", [f"v{acc+2*c}", f"v{acc+2*c+1}"], [f"v{d}"])
        if t == 1:
            for cb in deferred: cb()
            deferred.clear(); IT[0] = it0
        if t == 2 and cinit is not None:
            ct, cr = ("0", []) if cinit == 0 else (rng(cinit, 4), vr(cinit, 4))
            mm(d9, AZ, fb, ct, cr)
        if t == 3: smf(d9, AN9 + 8 * var, fb)
        if t == 5: smf(d9, AH + 8 * var, RF)
        if t == 6: smf(d9, AN9 + 8 * var + 4, fb + 8)
    def late():
        IT[0] = it0
        smf(d9, AH + 8 * var + 4, RF2)
        if fin: fin()
    deferred.append(late)
def swap(w, a, b): valu(f"v_permlane{w}_swap_b32 v{a}, v{b}", [f"v{a}", f"v{b}"], [f"v{a}", f"v{b}"], "perm")
def add(d, a, b): valu(f"v_add_f32 v{d}, v{a}, v{b}", [f"v{a}", f"v{b}"], [f"v{d}"])
def mov(d, a): valu(f"v_mov_b32 v{d}, v{a}", [f"v{a}"], [f"v{d}"])
def tred(r):
    swap(32, r, r+2); add(r, r, r+2); swap(32, r+1, r+3); add(r+1, r+1, r+3); swap(16, r, r+1); add(r, r, r+1)
def softmax(ES):
    E = [x[0] for x in ES]
    valu(f"v_max3_f32 v{MX}, v{E[0]}, v{E[1]}, v{E[2]}", [f"v{x}" for x in E[:3]], [f"v{MX}"])
    valu(f"v_max3_f32 v{MX}, v{MX}, v{E[3]}, v{E[4]}", [f"v{MX}", f"v{E[3]}", f"v{E[4]}"], [f"v{MX}"])
    valu(f"v_max_f32 v{MX}, v{MX}, v{E[5]}", [f"v{MX}", f"v{E[5]}"], [f"v{MX}"])
    for c in ("row_ror:8 " + FULL, "row_ror:4 " + FULL, "row_ror:2 " + FULL, "row_ror:1 " + FULL, "row_bcast:15 row_mask:0xa bank_mask:0xf", "row_bcast:31 row_mask:0xc bank_mask:0xf"):
        valu(f"v_max_f32_dpp v{MX}, v{MX}, v{MX} {c}", [f"v{MX}"], [f"v{MX}"], "dpp")
    valu(f"v_mul_f32 v{MX}, v{VCS}, v{MX}", [f"v{MX}", f"v{VCS}"], [f"v{MX}"])
    valu(f"v_readlane_b32 s{S_MAX}, v{MX}, 63", [f"v{MX}"], [f"s{S_MAX}"], "readlane")
    for i, (x, s) in enumerate(ES):
        valu(f"v_fma_f32 v{x}, v{x}, v{VCS}, -s{S_MAX}", [f"s{S_MAX}", f"v{x}", f"v{VCS}"], [f"v{x}"])
        valu(f"v_exp_f32 v{x}, v{x}", [f"v{x}"], [f"v{x}"], "trans", cost=2)
        if i == 0: valu(f"v_mul_f32 v{NUM}, v{x}, v{s}", [f"v{x}", f"v{s}"], [f"v{NUM}"])
        else: valu(f"v_fmac_f32 v{NUM}, v{x}, v{s}", [f"v{x}", f"v{s}", f"v{NUM}"], [f"v{NUM}"])
        if i == 1: add(DEN, ES[0][0], x)
        elif i > 1: add(DEN, DEN, x)
    swap(32, NUM, DEN)
    o1 = len(ops); mov(TC, TB); mov(TB, TA); add(TA, NUM, DEN)
    for o in ops[o1:]: o.rot = True
def salu(text, R, W): return valu(text, R, W, "salu")
STEPS = [("ror8", 8)] + [("ror", t) for t in range(1, 8)] + [("star", 0)] + [("k10", k) for k in range(3)] + [("star", c) for c in range(1, 10)]
def do_form(si, t0, t1):
    kind, a = STEPS[si]
    fb = VZ if kind == "ror8" else F[(si - 1) % 2]
    if kind == "star": form(fb, VY, f"row_newbcast:{POS[a]}", VX, t0, t1)
    elif kind == "k10": form(fb, VY, K10[a][0], VZ, t0, t1)
    elif kind == "ror8" and opts.get("z8"): form(fb, VX, f"row_{opts['z8']}:8", VX, t0, t1, " bound_ctrl:0")
    else: form(fb, VX, f"row_ror:{a}", VX, t0, t1)
    return fb
NIT = 5; CUT = []
ST = [0]
for m in NM: ST.append(ST[-1] + m)
for it in range(NIT):
    IT[0] = it; B0 = MC[0]; CUT.append(B0)
    S = lambda x: B0 + ST[int(x)] + (x - int(x)) * (ST[int(x) + 1] - ST[int(x)] if int(x) < 21 else 0)
    tiles = []
    o1 = len(ops)
    at(B0 + 1, LSP); ly = view_load(VY + 16, IDX + 1); lz = view_load(VZ + 16, IDX + 2)
    for o in ly + lz: o.nb2 = o.prio - 1
    IT[0] = it + 1
    at(S(8.5), 3.0)
    TT[1] = LSP
    li = [valu(f"buffer_load_dword v{IDX+k}, v{[OX,OY,OZ][k]}, s[{S_SRD}:{S_SRD+3}], s{S_IT} offen offset:{64 if k else 0}", [f"v{[OX,OY,OZ][k]}", f"s{S_IT}"], [f"v{IDX+k}"], "vmem") for k in range(3)]
    salu(f"s_addk_i32 s{S_IT}, 104", [f"s{S_IT}"], [f"s{S_IT}", "scc"]); salu(f"s_cmp_lt_u32 s{S_IT}, {104 * (int(opts.get('iters', 4)) + 1)}", [f"s{S_IT}"], ["scc"])
    for o in li: o.nb2 = o.prio - 1
    for o in ops[o1:]: o.nb = getattr(o, 'nb2', B0)
    IT[0] = it
    for si in range(NSTEP):
        kind, a = STEPS[si]
        if si == 8:
            at(S(4), (S(6.5) - S(4)) / 32); wait_for(vr(VY+16,16), ly, LAT_FAR); unpack(VY, VY + 16)
        if si == 9:
            at(S(6.3), (S(8.3) - S(6.3)) / 32); wait_for(vr(VZ+16,16), lz, LAT_FAR); unpack(VZ, VZ + 16)
        if si > 0 or it == 0: fb = do_form(si, S(si - 1) if si else -40, S(si))
        else: fb = VZ
        if si == 11:
            IT[0] = it + 1
            at(S(12.2), 2.0); wait_for(vr(IDX,3), li, LAT_NEAR)
            for k in range(3): valu(f"v_lshl_add_u32 v{IDX+k}, v{IDX+k}, 8, v{GOFF}", [f"v{IDX+k}", f"v{GOFF}"], [f"v{IDX+k}"])
            TT[1] = LSP; o2 = len(ops)
            lx = view_load(VZ + 16, IDX)
            if TOUCH:
                for q in range(2): valu(f"global_load_dword v{PFR+q}, v{IDX+1}, s[{S_TAB}:{S_TAB+1}] offset:{128*q}", [f"v{IDX+1}"], [f"v{PFR+q}"], "vmem")
            for o in ops[o2:]: o.nb = o.prio - 1
            IT[0] = it
        if si == NSTEP - 1:
            IT[0] = it + 1
            at(S(19.4), (S(20.5) - S(19.4)) / 32); wait_for(vr(VZ+16,16), lx, LAT_FAR); unpack(VX, VZ + 16)
            do_form(0, S(20.15), S(21))
            IT[0] = it
        if kind == "ror8":
            def fin(S=S):
                at(S(3.2), 2.0)
                add(D9M, D9M, D9M + 1)
                valu(f"v_cndmask_b32 v{EM}, v{NEGINF}, v{D9M}, s[{S_MA}:{S_MA+1}]", [f"v{NEGINF}", f"v{D9M}"], [f"v{EM}"])
                add(SM, D9M + 2, D9M + 3)
            step_mm(fb, D9M, 0, 0, fin)
            tiles.append((EM, SM))
        else:
            reg = si - 1; var = reg % 4
            d9 = D9 + 4 * (reg // 4)
            fin = None
            if var == 3:
                de, ds_ = (E0, S0) if reg == 3 else (d9, d9 + 2)
                tiles.append((de, ds_))
                def fin(d9=d9, de=de, ds_=ds_, last=(si == NSTEP - 1), tiles=tiles):
                    at(MC[0] + 4, 3.0)
                    add(de, d9, d9 + 1); add(ds_, d9 + 2, d9 + 3)
                    if last:
                        at(MC[0] + 8, (ST[3] - 20) / 42)
                        softmax(tiles)
            step_mm(fb, d9, var, (MASKC if reg == 8 else 0) if var == 0 else None, fin)
for cb in deferred: cb()
out, st = schedule(ops, look=LOOK, late=float(opts.get('late', 4)))
bad = verify(out)
assert bad == 0
lines = finalize(out)
cuts = [i for i, o in enumerate(out) if o.kind == "mfma" and o.g in CUT]
s1 = lines[cuts[2]:cuts[3]]; s2 = lines[cuts[3]:cuts[4]]
if s1 != s2:
    for i, (a, b) in enumerate(zip(s1, s2)):
        if a != b: print("diff at", i, len(s1), len(s2), s1[i-3:i+3], s2[i-3:i+3], file=sys.stderr); break
    raise SystemExit("body not periodic")
body = s1; bops = out[cuts[2]:cuts[3]]
pre_ops = [o for o in out[:cuts[2]] if o.kind != "nop" and o.it >= 2]
post_ops = [o for o in bops if o.kind != "nop" and o.it == 1]
assert sum(1 for o in pre_ops if o.kind == 'vmem') == 7 + 2 * TOUCH and sum(1 for o in pre_ops if o.kind == 'salu') == 2
nm = sum(1 for o in bops if o.kind == "mfma"); nf = sum(o.cost for o in bops if o.kind not in ("mfma", "nop"))
print(st, "body len", len(body), "est cycles/iter", est_cycles(bops), "issue", sum(4 * (4 - o.free) for o in bops if o.kind == "mfma") + nf * 4, "pipe", nm * 16, "pre", len(pre_ops), "post", len(post_ops), "nops in body", sum(1 for o in bops if o.kind == "nop"), file=sys.stderr)
if int(opts.get("prof", 0)):
    seg = []; cur_ = []; nm_ = 0
    for o in bops:
        if o.kind == "mfma":
            if nm_ in ST and cur_: seg.append(cur_); cur_ = []
            nm_ += 1
        cur_.append(o)
    seg.append(cur_)
    from collections import Counter
    for i, sg in enumerate(seg): print(i, est_cycles(sg + [sg[0]]) - 8, dict(Counter(o.kind for o in sg)), file=sys.stderr)
e("s_cmp_ge_u32 s2, 256"); e("s_cbranch_scc1 L_done")
stamp()
e("s_load_dwordx4 s[4:7], s[0:1], 0"); e("s_load_dwordx4 s[8:11], s[0:1], 32")
e("s_load_dwordx4 s[12:15], s[0:1], 48"); e("s_load_dwordx2 s[16:17], s[0:1], 64")
T = D9
vN, vG, vL, vW0, vW1, vWN, vPF, vSM, vT0, vT1, vT2, vWV, vTR, vNA = T, T+1, T+2, T+3, T+4, T+5, T+6, T+7, T+8, T+9, T+10, T+11, T+12, T+20
vHA = RF; vBA = RF + 4; vHD = RF + 5
vm = []; dsq = []
def vmem(s, tag): e(s); vm.append(tag)
def vwait(tag):
    last = max(i for i, t in enumerate(vm) if t == tag)
    e(f"s_waitcnt vmcnt({len(vm) - 1 - last})")
def ds(s, tag): e(s); dsq.append(tag)
def dwait(tag):
    last = max(i for i, t in enumerate(dsq) if t == tag)
    e(f"s_waitcnt lgkmcnt({min(15, len(dsq) - 1 - last)})")
e(f"v_lshrrev_b32 v{vWV}, 6, v0")
e(f"v_and_b32 v{vN}, 15, v0")
e(f"v_readfirstlane_b32 s{S_WAVE}, v{vWV}")
e(f"v_bfe_u32 v{vG}, v0, 4, 2")
e(f"v_lshlrev_b32 v{OX}, 2, v{vN}")
e(f"s_lshl_b32 s3, s2, 2"); e(f"s_add_u32 s3, s3, s{S_WAVE}")
e(f"s_mul_i32 s19, s3, 416")
def nib(tab): return sum(v << (4 * i) for i, v in enumerate(tab))
e(f"s_mov_b32 s{S_T}, 0x{nib(YT) & 0xffffffff:08x}"); e(f"s_mov_b32 s{S_T+1}, 0x{nib(YT) >> 32:08x}")
e(f"s_mov_b32 s{S_T+2}, 0x{nib(ZT) & 0xffffffff:08x}"); e(f"s_mov_b32 s{S_T+3}, 0x{nib(ZT) >> 32:08x}")
e(f"v_lshrrev_b64 v[{vT0}:{vT0+1}], v{OX}, s[{S_T}:{S_T+1}]")
e(f"v_and_b32 v{OY}, 15, v{vT0}")
e(f"v_lshrrev_b64 v[{vT0}:{vT0+1}], v{OX}, s[{S_T+2}:{S_T+3}]")
e(f"v_and_b32 v{OZ}, 15, v{vT0}")
e(f"v_add_u32 v{OX}, s19, v{OX}")
e(f"v_lshl_add_u32 v{OY}, v{OY}, 2, s19")
e(f"v_lshl_add_u32 v{OZ}, v{OZ}, 2, s19")
e(f"v_lshlrev_b32 v{GOFF}, 4, v{vG}")
e(f"s_lshl_b32 s{S_T}, s{S_WAVE}, 13")
e(f"v_lshrrev_b32 v{vT2}, 1, v{vN}")
e(f"v_xor_b32 v{vT0}, v{vT2}, v{vG}")
e(f"v_lshlrev_b32 v{vT0}, 5, v{vT0}")
e(f"v_and_b32 v{vT1}, 1, v0")
e(f"v_lshl_add_u32 v{vT0}, v{vT1}, 4, v{vT0}")
e(f"v_lshl_add_u32 v{vT0}, v{vG}, 8, v{vT0}")
e(f"v_add_u32 v{vW0}, s{S_T}, v{vT0}")
e(f"v_xor_b32 v{vW1}, 0x80, v{vW0}")
e(f"v_and_b32 v{vL}, 63, v0"); e(f"v_lshlrev_b32 v{vL}, 2, v{vL}")
e(f"v_lshlrev_b32 v{vSM}, 2, v{vT1}")
e(f"v_lshl_add_u32 v{vT0}, v{vT2}, 5, v{vSM}"); e(f"v_lshl_add_u32 v{vT0}, v{vG}, 3, v{vT0}")
e(f"v_cmp_eq_u32 vcc, 0, v{vWV}")
e(f"v_lshlrev_b32 v{vT1}, 5, v{vT1}"); e(f"v_and_b32 v{vT2}, 3, v{vT2}")
e(f"v_cndmask_b32 v{vSM}, v{vL}, v{vT0}, vcc")
e(f"v_lshl_add_u32 v{vT1}, v{vT2}, 3, v{vT1}"); e(f"v_bfe_u32 v{vT2}, v0, 3, 2"); e(f"v_lshl_add_u32 v{vT1}, v{vT2}, 6, v{vT1}")
e(f"v_bfe_u32 v{vT2}, v0, 5, 1"); e(f"v_lshlrev_b32 v{vT2}, 2, v{vT2}")
e(f"v_cmp_eq_u32 vcc, 3, v{vWV}")
e(f"v_xor_b32 v{vT0}, 4, v{vT2}"); e(f"v_add_u32 v{vT1}, v{vT1}, v{vT0}")
e(f"v_cndmask_b32 v{vSM}, v{vSM}, v{vT1}, vcc")
e(f"v_cmp_eq_u32 vcc, 2, v{vWV}")
e(f"v_and_b32 v{vT0}, 31, v0"); e(f"v_lshl_add_u32 v{vT0}, v{vT0}, 3, v{vT2}")
e(f"v_cndmask_b32 v{vSM}, v{vSM}, v{vT0}, vcc")
if PF:
    e("s_getpc_b64 s[32:33]")
    L.append("L_pfbase:")
    e(f"v_lshlrev_b32 v{vPF}, 7, v0")
    e(f"v_min_u32 v{vPF}, L_end-L_pfbase-4, v{vPF}")
e(f"s_add_u32 s{S_T+1}, s{S_T}, 0x1000")
e(f"s_mov_b32 s{S_T+2}, {O_P}"); e(f"s_cmp_eq_u32 s{S_WAVE}, 0"); e(f"s_cselect_b32 s{S_T+2}, {O_B}, s{S_T+2}")
e(f"s_cmp_eq_u32 s{S_WAVE}, 1"); e(f"s_cselect_b32 s{S_T+2}, {O_H}, s{S_T+2}")
e(f"s_cmp_eq_u32 s{S_WAVE}, 3"); e(f"s_cselect_b32 s{S_T+2}, {O_HH}, s{S_T+2}")
e(f"s_mov_b32 m0, s{S_T}")
e(f"s_cmp_eq_u32 s{S_WAVE}, 0")
e("s_waitcnt lgkmcnt(0)")
stamp()
vmem(f"global_load_dword v{IDX}, v{OX}, s[{S_IDX}:{S_IDX+1}]", "idx0")
for half in range(2):
    for q in range(4):
        vmem(f"global_load_lds_dwordx4 v{vW1 if q & 2 else vW0}, s[{S_W}:{S_W+1}] offset:{1024*q}", "wdma")
    if half == 0:
        e(f"v_add_u32 v{vW0}, 0x1000, v{vW0}"); e(f"s_mov_b32 m0, s{S_T+1}"); e(f"v_add_u32 v{vW1}, 0x1000, v{vW1}")
e(f"s_cselect_b64 s[34:35], s[{S_B}:{S_B+1}], s[{S_H}:{S_H+1}]")
e(f"s_cmp_eq_u32 s{S_WAVE}, 2"); e(f"s_mov_b32 m0, s{S_T+2}"); e(f"s_cselect_b64 s[34:35], s[{S_P}:{S_P+1}], s[34:35]")
vmem(f"global_load_lds_dword v{vSM}, s[34:35]", "wdma")
if PF == 1: vmem(f"global_load_dword v{PFR}, v{vPF}, s[32:33]", "pf")
stamp()
vwait("idx0"); stamp()
e(f"v_lshl_add_u32 v{IDX}, v{IDX}, 8, v{GOFF}")
for q in range(4): vmem(f"global_load_dwordx4 {rng(VZ+16+4*q,4)}, v{IDX}, s[{S_TAB}:{S_TAB+1}] offset:{64*q}", "view0")
if PF == 2: vmem(f"global_load_dword v{PFR}, v{vPF}, s[32:33]", "pf")
for k in range(1, 3): vmem(f"global_load_dword v{IDX+k}, v{[OX,OY,OZ][k]}, s[{S_IDX}:{S_IDX+1}] offset:64", "idx1")
for r in range(4): e(f"v_mov_b32 v{MASKC+r}, 0")
e(f"v_lshrrev_b32 v{vL}, 1, v{vL}")
ds(f"ds_write_b16 v{vL}, v{MASKC+1} offset:{O_Z}", "z")
for r in range(4): e(f"v_accvgpr_write_b32 a{AZ+r}, 0")
e(f"v_and_b32 v{SIX}, 1, v{vN}"); e(f"v_mul_u32_u24 v{SIX}, 0xaaaa, v{SIX}"); e(f"v_add_u32 v{SIX}, 0x4444, v{SIX}")
e(f"v_mov_b32 v{NEGINF}, 0xff800000")
e(f"v_mov_b32 v{VCS}, {f32(CSC)}")
e(f"s_mov_b32 s{S_MA}, 0x{inval & 0xffffffff:08x}"); e(f"s_mov_b32 s{S_MA+1}, 0x{inval >> 32:08x}")
e(f"v_cndmask_b32 v{MASKC}, v{MASKC}, v{NEGINF}, s[{S_MA}:{S_MA+1}]")
e(f"s_mov_b32 s{S_MA}, 0xff"); e(f"s_mov_b32 s{S_MA+1}, 0"); e(f"s_movk_i32 s{S_IT}, 104")
e(f"s_mov_b32 s{S_OM}, 0x00010001"); e(f"s_mov_b32 s{S_OM+1}, 0x00010001")
e(f"s_mov_b32 s{S_SRD}, s{S_IDX}"); e(f"s_mov_b32 s{S_SRD+1}, s{S_IDX+1}"); e(f"s_mov_b32 s{S_SRD+2}, {4096*104}"); e(f"s_mov_b32 s{S_SRD+3}, 0x00020000")
e(f"s_lshl_b32 s3, s3, 3"); e(f"v_lshl_add_u32 v{OOFF}, v{vG}, 1, s3")
e(f"v_lshrrev_b32 v{vT0}, 3, v{vN}"); e(f"v_and_b32 v{vT1}, 3, v{vN}"); e(f"v_lshl_or_b32 v{vT0}, v{vT0}, 2, v{vT1}")
e(f"v_lshrrev_b32 v{vT1}, 1, v{vG}"); e(f"v_xor_b32 v{vT0}, v{vT0}, v{vT1}"); e(f"v_lshlrev_b32 v{vT0}, 5, v{vT0}")
e(f"v_and_b32 v{vT1}, 1, v{vG}"); e(f"v_lshl_add_u32 v{vT0}, v{vT1}, 4, v{vT0}"); e(f"v_lshl_add_u32 v{vT0}, v{vN}, 8, v{vT0}")
e(f"v_add_u32 v{vWN}, s{S_T}, v{vT0}")
vWNk = [vWN, vW0, vW1, vSM]
for ks in range(1, 4): e(f"v_xor_b32 v{vWNk[ks]}, {ks << 6}, v{vWN}")
e(f"v_lshrrev_b32 v{vT0}, 2, v{vN}")
e(f"v_lshl_or_b32 v{vT1}, v{vT1}, 2, v{vT0}")
e(f"v_lshl_add_u32 v{vT0}, v{vG}, 3, v{vT0}"); e(f"v_lshlrev_b32 v{vT0}, 8, v{vT0}")
e(f"v_lshl_add_u32 v{vT0}, v{vT1}, 5, v{vT0}")
e(f"v_and_b32 v{vT1}, 3, v{vN}"); e(f"v_lshl_add_u32 v{vTR}, v{vT1}, 3, v{vT0}")
for t in range(1, 8): e(f"v_xor_b32 v{vTR+t}, {t << 5}, v{vTR}")
for var in range(4):
    e(f"v_subrev_u32 v{vT0}, {4*var}, v{vN}"); e(f"v_min_u32 v{vNA+var}, 4, v{vT0}")
    e(f"v_lshl_add_u32 v{vNA+var}, v{vNA+var}, 7, v{GOFF}")
    e(f"v_min_u32 v{vT0}, 2, v{vT0}"); e(f"v_sub_u32 v{vT0}, 2, v{vT0}"); e(f"v_lshl_add_u32 v{vHA+var}, v{vT0}, 7, v{GOFF}")
e(f"v_lshlrev_b32 v{vBA}, 6, v{vG}")
e(f"s_lshl_b32 s{S_T+1}, s{S_WAVE}, 5"); e(f"v_and_b32 v{vT0}, 12, v{vN}"); e(f"v_add_u32 v{vT2}, s{S_T+1}, v{vT0}")
e(f"v_bfe_u32 v{vT0}, v{vN}, 1, 1"); e(f"v_lshl_add_u32 v{vT2}, v{vT0}, 7, v{vT2}")
e(f"v_and_b32 v{vT0}, 1, v{vN}"); e(f"v_lshl_add_u32 v{vT2}, v{vT0}, 1, v{vT2}")
vwait("wdma"); e("s_waitcnt lgkmcnt(0)")
stamp(); e("s_barrier"); stamp()
WN = F[0]; HB = ACC; WHA = RR
trs = [f"ds_read_b64_tr_b16 {rng(AW+(t*4+ks)*4+2*u,2,'a')}, v{vTR+t} offset:{8192*ks+1024*u}" for t in range(8) for ks in range(4) for u in range(2)]
def tr(n):
    for _ in range(n):
        if trs: ds(trs.pop(0), "tr")
for ks in range(4): ds(f"ds_read_b128 {rng(HB+4*ks,4)}, v{GOFF} offset:{O_H+64*ks}", "wn")
for uu in range(2):
    for ks in range(4): ds(f"ds_read_b128 {rng(WN+16*uu+4*ks,4)}, v{vWNk[ks]} offset:{4096*uu}", "wn")
for k in range(4): ds(f"ds_read_b128 {rng(BIAS+16+4*k,4)}, v{vBA} offset:{O_B+16*k}", "bb")
tr(6)
dwait("wn")
for ks in range(4):
    for uu in range(2):
        c = "0" if ks == 0 else rng(WHA+4*uu, 4)
        e(f"v_mfma_f32_16x16x32_bf16 {rng(WHA+4*uu,4)}, {rng(HB+4*ks,4)}, {rng(WN+16*uu+4*ks,4)}, {c}")
        tr(1)
tr(8)
for uu in range(2):
    a = WHA + 4 * uu
    e(f"v_cvt_pk_bf16_f32 v{a+1}, v{a}, v{a}")
    ds(f"ds_write_b16 v{vT2}, v{a+1} offset:{O_HI+16*uu}", "whw")
dwait("bb")
bu = []
for q in range(16):
    s_ = BIAS + 16 + q
    bu += [f"v_lshlrev_b32 v{BIAS+2*q}, 16, v{s_}", f"v_and_b32 v{BIAS+2*q+1}, 0xffff0000, v{s_}"]
while trs:
    tr(1)
    if bu: e(bu.pop(0))
assert not bu
for var in range(4):
    for u in range(2): ds(f"ds_read_b128 {rng(AH+8*var+4*u,4,'a')}, v{vHA+var} offset:{O_Z+64*u}", "ah")
dwait("whw")
e("s_barrier")
stamp()
vwait("idx1")
stamp()
for k in range(1, 3): e(f"v_lshl_add_u32 v{IDX+k}, v{IDX+k}, 8, v{GOFF}")
if TOUCH:
    for q in range(2): vmem(f"global_load_dword v{PFR+q}, v{IDX+1}, s[{S_TAB}:{S_TAB+1}] offset:{128*q}", "touch")
n9 = [f"ds_read_b128 {rng(AN9+8*var+4*u,4,'a')}, v{vNA+var} offset:{O_HI+64*u}" for var in range(4) for u in range(2)]
pre = [o for o in pre_ops if o.kind in VALUK and not o.text.startswith("v_lshl_add_u32")]
pre2 = [Op(o.text, o.kind, o.R, o.W, prio=i) for i, o in enumerate(sorted(pre, key=lambda o: o.seq))]
po, _ = schedule(pre2); assert verify(po) == 0
for i, s_ in enumerate(finalize(po)):
    e(s_)
    if i % 3 == 0 and n9: ds(n9.pop(0), "n9")
assert not n9
e("s_waitcnt lgkmcnt(0)")
e("s_nop 1")
if DBG == 4:
    e("s_load_dwordx2 s[98:99], s[0:1], 72"); e("s_waitcnt lgkmcnt(0)"); e("s_not_b32 s34, s40"); e(f"v_mov_b32 v{PFR}, s34"); e(f"v_mov_b32 v{PFR+1}, 0")
    e("s_waitcnt vmcnt(0)"); e("s_mov_b64 exec, 1"); e(f"global_atomic_umax v{PFR+1}, v{PFR}, s[98:99]"); e("s_mov_b64 exec, -1")
if DBG: e("s_mov_b32 s34, 0")
L.append(".p2align 6"); L.append("L_loop:")
if DBG and not STEPST: e("s_mov_b32 m0, s34"); e("s_memrealtime s[32:33]"); e("s_waitcnt lgkmcnt(0)"); e(f"s_movreld_b32 s{40+2*NST[0]}, s32"); e("s_add_u32 s34, s34, 2"); NST[0] += 4
nm_ = 0
for s in body:
    if s.startswith("v_mfma") or s.startswith("v_smfmac"):
        if STEPST and nm_ in ST: stamp(True)
        nm_ += 1
    e(s)
if STEPST: stamp(True)
e("s_cbranch_scc1 L_loop")
stamp()
e("s_nop 7")
ops = []; IT[0] = 0; at(0, 1)
for o in sorted(post_ops, key=lambda o: o.seq):
    if getattr(o, "rot", False): continue
    if o.kind == "mfma":
        o2 = mfma(o.text, o.W, [r for r in o.R if r in o.AB], [], o.C); o2.free = o.free; push(o2)
    else: valu(o.text, o.R, o.W, o.kind, cost=o.cost)
add(NUM, NUM, DEN)
swap(16, TC, TB); add(TC, TC, TB); swap(16, TA, NUM); add(TA, TA, NUM)
for c in (8, 4, 2, 1):
    for r in (TC, TA): valu(f"v_add_f32_dpp v{r}, v{r}, v{r} row_ror:{c} {FULL}", [f"v{r}"], [f"v{r}"], "dpp")
swap(32, TC, TA)
valu(f"v_rcp_f32 v{TA}, v{TA}", [f"v{TA}"], [f"v{TA}"], "trans", cost=2)
valu(f"v_mul_f32 v{TC}, v{TC}, v{TA}", [f"v{TC}", f"v{TA}"], [f"v{TC}"])
valu(f"v_cvt_pk_bf16_f32 v{TC}, v{TC}, v{TC}", [f"v{TC}"], [f"v{TC}"])
to, _ = schedule(ops); assert verify(to) == 0
print("tail est", est_cycles(to), "pre est", est_cycles(po), file=sys.stderr)
for s in finalize(to): e(s)
stamp()
if DBG == 4:
    a_, b_, K_ = int(opts["sa"]), int(opts["sb"]), int(opts["sk"])
    if b_ < 0: b_ += NST[0]
    e("s_waitcnt lgkmcnt(0)")
    if a_ >= 0:
        e(f"s_sub_u32 s34, s{40+2*b_}, s{40+2*a_}")
    else:
        e("v_mov_b32 v1, 0"); e("global_load_dword v2, v1, s[98:99] sc1"); e("s_waitcnt vmcnt(0)"); e("v_readfirstlane_b32 s34, v2"); e("s_nop 3")
        e("s_not_b32 s34, s34"); e(f"s_sub_u32 s34, s{40+2*b_}, s34")
    e("s_min_u32 s34, s34, 10000"); e(f"s_mul_i32 s34, s34, {K_}"); e("s_min_u32 s34, s34, 20000")
    stamp(); e("s_waitcnt lgkmcnt(0)")
    L.append("L_spin:")
    e("s_memrealtime s[32:33]"); e("s_waitcnt lgkmcnt(0)")
    e(f"s_sub_u32 s35, s32, s{40+2*(NST[0]-1)}"); e("s_cmp_lt_u32 s35, s34"); e("s_cbranch_scc1 L_spin")
if DBG == 1:
    e("s_load_dwordx2 s[34:35], s[0:1], 80"); e("s_waitcnt lgkmcnt(0)")
    e("s_lshl_b32 s3, s3, 4"); e(f"v_mov_b32 v1, s3")
    for k in range(NST[0]):
        e(f"v_mov_b32 v2, s{40+2*k}"); e(f"global_store_dword v1, v2, s[34:35] offset:{4*k}")
    e(f"v_mov_b32 v2, {NST[0]}"); e(f"global_store_dword v1, v2, s[34:35] offset:124")
e(f"s_mov_b64 exec, s[{S_OM}:{S_OM+1}]")
e(f"global_store_short v{OOFF}, v{TC}, s[{S_OUT}:{S_OUT+1}]")
L.append("L_done:")
e("s_endpgm")
L.append("L_end:")
L += ['.section .rodata,"a"', ".p2align 6", ".amdhsa_kernel %s_kernel" % NAME,
      "  .amdhsa_next_free_vgpr 512", "  .amdhsa_next_free_sgpr %d" % (100 if DBG else 40), "  .amdhsa_accum_offset 256",
      "  .amdhsa_group_segment_fixed_size 0", "  .amdhsa_kernarg_size 88", "  .amdhsa_user_sgpr_count 2",
      "  .amdhsa_user_sgpr_kernarg_segment_ptr 1", "  .amdhsa_system_sgpr_workgroup_id_x 1",
      "  .amdhsa_float_denorm_mode_32 3",
      ".end_amdhsa_kernel"]
print("\n".join(L))
```

```python
import sys, math, struct
from sched import *
NAME = "standalone__factorization_afm__recsys"
opts = dict(z8="shl"); opts.update(dict(a.split("=") for a in sys.argv[1:] if "=" in a))
LAT_FAR = int(opts.get("latfar", 450)); LAT_NEAR = int(opts.get("latnear", 300))
DBG = int(opts.get("dbg", 0)); PF = int(opts.get("pf", 2))
TOUCH = int(opts.get('touch', 0))
LSP = float(opts.get('lsp', 9))
EPI = float(opts.get("epi", 3.1)); LOOK = int(opts.get("look", 30))
YT = [6,0,4,4,2,3,6,9,3,7,0,1,8,5,3,4]
ZT = [5,2,7,7,9,7,1,0,1,5,4,8,2,9,6,8]
K10 = [("", lambda n: n), ("quad_perm:[1,0,3,2]", lambda n: n ^ 1), ("quad_perm:[2,3,0,1]", lambda n: n ^ 2)]
seen = set(); inval = 0
for k, (_, pi) in enumerate(K10):
    for n in range(16):
        a, b = ZT[n], YT[pi(n)]; key = (min(a, b), max(a, b))
        if a == b or key in seen: inval |= 1 << (16 * k + n)
        else: seen.add(key)
assert len(seen) == 45
POS = [YT.index(c) for c in range(10)]
FULL = "row_mask:0xf bank_mask:0xf"
BIAS = 0; VX = 32; VY = 64; VZ = 96; F = [128, 144]; TMP = 160; ACC = 168; RF = 184; RF2 = 192; D9 = 200; ND9 = 3
MASKC = 212; ES = 216
EM = 226; EMB = 227; SM = 228
SIX = 232; NEGINF = 234; MX = 235; NUM = 236; DEN = 237; TA = 238; TB = 239; TC = 240
IDX = 245; OX = 248; OY = 249; OZ = 250; GOFF = 251; OOFF = 252; VCS = 253; PFR = 254
AW = 0; AN9 = 128; AH = 160; AZ = 192; ASEL = 196
EPB = int(opts.get("epb", 1)); UM = opts.get("um", "")
S_IDX = 4; S_TAB = 6; S_W = 8; S_B = 10; S_H = 12; S_P = 14; S_OUT = 16; S_WAVE = 18; S_MA = 20; S_MB = 40 if 0 else 28; S_MAX = 24; S_T = 26; S_OM = 30; S_IT = 22; S_INC = 23; S_SRD = 36
LN9 = 32768
O_HI = LN9; O_P = LN9 + 256; O_Z = LN9 + 512; O_HH = LN9 + 640; O_B = LN9 + 896; O_H = O_B + 256
CSC = 0.5 * math.log2(math.e)
def f32(x): return "0x%08x" % struct.unpack("<I", struct.pack("<f", x))[0]
L = []
def e(s): L.append("    " + s)
hdr = open("cdna_kernels/%s.s.ref" % NAME).read().split("\n")
for line in hdr:
    if line.startswith("; @launch"):
        L.append("; @launch grid=(256,1,1) block=(256,1,1) lds=34304"); break
    L.append(line)
L += ['.amdgcn_target "amdgcn-amd-amdhsa--gfx950"', ".text", ".globl %s_kernel" % NAME, ".p2align 8",
      ".type %s_kernel,@function" % NAME, "%s_kernel:" % NAME]
NST = [0]
STEPST = int(opts.get('stepst', 0))
def stamp(force=False):
    if DBG and (not STEPST or force): e(f"s_memrealtime s[{40+2*NST[0]}:{41+2*NST[0]}]"); NST[0] += 1
ops = []
TT = [0.0, 0.0]; IT = [0]; MC = [0]
def at(t, inc): TT[0] = t; TT[1] = inc
def push(o): o.it = IT[0]; ops.append(o); return o
def valu(text, R, W, kind="valu", **kw):
    if kind in ("perm", "vmem"): kw["cost"] = 2
    o = Op(text, kind, R, W, prio=round(TT[0] + 1e-4, 3), **kw); TT[0] += TT[1]; return push(o)
def view_load(raw, ireg):
    return [valu(f"global_load_dwordx4 {rng(raw+4*q,4)}, v{ireg}, s[{S_TAB}:{S_TAB+1}] offset:{64*q}", [f"v{ireg}"], vr(raw+4*q,4), "vmem") for q in range(4)]
def wait_for(regs, ls, lat):
    return push(Op("wait", "wait", R=regs, W=regs, covers=ls, lat=lat, prio=round(TT[0] + 1e-4, 3)))
def unpack(V, raw):
    for q in range(16):
        s = raw + q
        valu(f"v_lshlrev_b32 v{V+2*q}, 16, v{s}", [f"v{s}"], [f"v{V+2*q}"])
        valu(f"v_and_b32 v{V+2*q+1}, 0xffff0000, v{s}", [f"v{s}"], [f"v{V+2*q+1}"])
def form(fb, P, ctrl, Q, t0, t1, sfx=''):
    at(t0 + 0.2, (t1 - t0 - 2.5) / 48)
    for i in range(32):
        d = TMP + i % 8
        if ctrl: valu(f"v_mul_f32_dpp v{d}, v{P+i}, v{Q+i} {ctrl} {FULL}{sfx}", [f"v{P+i}", f"v{Q+i}"], [f"v{d}"], "dpp")
        else: valu(f"v_mul_f32 v{d}, v{P+i}, v{Q+i}", [f"v{P+i}", f"v{Q+i}"], [f"v{d}"])
        if i % 2: valu(f"v_cvt_pk_bf16_f32 v{fb+i//2}, v{d-1}, v{d}", [f"v{d-1}", f"v{d}"], [f"v{fb+i//2}"])
def unpack_chunk(V, raw, q):
    for j in range(4 * q, 4 * q + 4):
        s_ = raw + j
        valu(f"v_lshlrev_b32 v{V+2*j}, 16, v{s_}", [f"v{s_}"], [f"v{V+2*j}"])
        valu(f"v_and_b32 v{V+2*j+1}, 0xffff0000, v{s_}", [f"v{s_}"], [f"v{V+2*j+1}"])
def mm(D, A, B, ct, cr):
    MC[0] += 1
    push(mfma(f"v_mfma_f32_16x16x32_bf16 {rng(D,4)}, {rng(A,4,'a')}, {rng(B,4)}, {ct}", vr(D,4), vr(A,4,'a'), vr(B,4), cr))
deferred = []
def smf(D, A, B):
    MC[0] += 1
    o = mfma(f"v_smfmac_f32_16x16x64_bf16 {rng(D,4)}, {rng(A,4,'a')}, {rng(B,8)}, v{SIX}", vr(D,4), vr(A,4,'a') + [f"v{SIX}"], vr(B,8), vr(D,4)); o.free = 1
    push(o)
def step_mm(fb, d9, var, cinit, fin, extra):
    it0 = IT[0]
    for t in range(8):
        acc = ACC + 4 * (t % 4)
        for ks in range(4):
            c = BIAS + 4 * t if ks == 0 else acc
            mm(acc, AW + (t * 4 + ks) * 4, fb + 4 * ks, rng(c, 4), vr(c, 4))
        at(MC[0] - 1 + EPI, 1.0)
        rf = RF if t < 4 else RF2
        for c in range(2):
            d = rf + 2 * (t % 4) + c
            valu(f"v_cvt_pk_bf16_f32 v{d}, |v{acc+2*c}|, |v{acc+2*c+1}|", [f"v{acc+2*c}", f"v{acc+2*c+1}"], [f"v{d}"])
        if t == 1:
            for cb in deferred: cb()
            deferred.clear(); IT[0] = it0
        if t == 2 and cinit is not None:
            ct, cr = ("0", []) if cinit == 0 else (rng(cinit, 4), vr(cinit, 4))
            mm(d9, AZ, fb, ct, cr)
        if t == 3: smf(d9, AN9 + 8 * var, fb)
        if t == 5: smf(d9, AH + 8 * var, RF)
        if t == 6: smf(d9, AN9 + 8 * var + 4, fb + 8)
        for cb in extra.get(t, []): cb()
        IT[0] = it0
    def late():
        IT[0] = it0
        smf(d9, AH + 8 * var + 4, RF2)
        if fin: fin()
    deferred.append(late)
def swap(w, a, b): valu(f"v_permlane{w}_swap_b32 v{a}, v{b}", [f"v{a}", f"v{b}"], [f"v{a}", f"v{b}"], "perm")
def add(d, a, b): valu(f"v_add_f32 v{d}, v{a}, v{b}", [f"v{a}", f"v{b}"], [f"v{d}"])
def mov(d, a): valu(f"v_mov_b32 v{d}, v{a}", [f"v{a}"], [f"v{d}"])
def tred(r):
    swap(32, r, r+2); add(r, r, r+2); swap(32, r+1, r+3); add(r+1, r+1, r+3); swap(16, r, r+1); add(r, r, r+1)
def softmax(ES, odd, t0, t1, t2):
    E = [x[0] for x in ES]
    at(t0, (t1 - t0) / 11)
    valu(f"v_max3_f32 v{MX}, v{E[0]}, v{E[1]}, v{E[2]}", [f"v{x}" for x in E[:3]], [f"v{MX}"])
    valu(f"v_max3_f32 v{MX}, v{MX}, v{E[3]}, v{E[4]}", [f"v{MX}", f"v{E[3]}", f"v{E[4]}"], [f"v{MX}"])
    valu(f"v_max_f32 v{MX}, v{MX}, v{E[5]}", [f"v{MX}", f"v{E[5]}"], [f"v{MX}"])
    for c in ("row_ror:8 " + FULL, "row_ror:4 " + FULL, "row_ror:2 " + FULL, "row_ror:1 " + FULL, "row_bcast:15 row_mask:0xa bank_mask:0xf", "row_bcast:31 row_mask:0xc bank_mask:0xf"):
        valu(f"v_max_f32_dpp v{MX}, v{MX}, v{MX} {c}", [f"v{MX}"], [f"v{MX}"], "dpp")
    valu(f"v_mul_f32 v{MX}, v{VCS}, v{MX}", [f"v{MX}", f"v{VCS}"], [f"v{MX}"])
    valu(f"v_readlane_b32 s{S_MAX}, v{MX}, 63", [f"v{MX}"], [f"s{S_MAX}"], "readlane")
    at(t1, (t2 - t1) / 28)
    for i, (x, s) in enumerate(ES):
        valu(f"v_fma_f32 v{x}, v{x}, v{VCS}, -s{S_MAX}", [f"s{S_MAX}", f"v{x}", f"v{VCS}"], [f"v{x}"])
        valu(f"v_exp_f32 v{x}, v{x}", [f"v{x}"], [f"v{x}"], "trans", cost=2)
        if i == 0: valu(f"v_mul_f32 v{NUM}, v{x}, v{s}", [f"v{x}", f"v{s}"], [f"v{NUM}"])
        else: valu(f"v_fmac_f32 v{NUM}, v{x}, v{s}", [f"v{x}", f"v{s}", f"v{NUM}"], [f"v{NUM}"])
        if i == 1: add(DEN, ES[0][0], x)
        elif i > 1: add(DEN, DEN, x)
    swap(32, NUM, DEN)
    o1 = len(ops)
    if EPB == 1: mov(TC, TB); mov(TB, TA); add(TA, NUM, DEN)
    elif odd: add(TB, NUM, DEN)
    else: mov(TC, TA); add(TA, NUM, DEN)
    for o in ops[o1:]: o.rot = True
def salu(text, R, W): return valu(text, R, W, "salu")
BASE = [("ror", t) for t in range(1, 8)] + [("star", 0)] + [("k10", k) for k in range(3)] + [("star", c) for c in range(1, 10)]
def steps_of(el):
    if EPB == 1: return [("ror8", 8)] + BASE
    return BASE if el % 2 == 0 else [("mrg", 8)] + BASE
def fbuf(steps, si):
    off = len(steps) - 20
    return VZ if si == 0 else F[(si - off) % 2]
def do_form(steps, si, t0, t1):
    kind, a = steps[si]; fb = fbuf(steps, si)
    if kind == "star": form(fb, VY, f"row_newbcast:{POS[a]}", VX, t0, t1)
    elif kind == "k10": form(fb, VY, K10[a][0], VZ, t0, t1)
    elif kind == "ror8": form(fb, VX, "row_shl:8", VX, t0, t1, " bound_ctrl:0")
    else: form(fb, VX, f"row_ror:{a}", VX, t0, t1)
YT0, YT1, ZT0, ZT1 = [float(x) for x in opts.get("yz", "3,5.5,5.3,7.3").split(",")]
SM0, SM1, SM2 = [float(x) for x in opts.get("sm", "0.3,1.5,3.6").split(",")]
def um_slots(b0, b1):
    return [(int(b0 + (b1 - b0) * (j + 0.5) / 8), int(((b0 + (b1 - b0) * (j + 0.5) / 8) % 1) * 8)) for j in range(8)]
UMP = {"y": um_slots(YT0 + 0.3, YT1 + 0.3), "z": um_slots(ZT0, ZT1 - 0.4), "x": um_slots(float(opts.get("x0", 18.5)), float(opts.get("x1", 19.5)))}
def nm_of(steps):
    off = len(steps) - 20; r = []
    for si in range(len(steps)):
        n = 36 + (1 if si < off or (si - off) % 4 == 0 else 0)
        n += sum(1 for v in UM for (bs, t) in UMP[v] if bs == si - off)
        r.append(n)
    return r
NEL = 5 * EPB; CUT = []; STB = []
d9c = [0]
pend_softmax = None
for el in range(NEL):
    it = el // EPB; nit = (el + 1) // EPB
    steps = steps_of(el); nsteps = steps_of(el + 1); N = len(steps); off = N - 20
    IT[0] = it; B0 = MC[0]
    if el % EPB == 0: CUT.append(B0); d9c[0] = 0
    ST = [0]
    for m in nm_of(steps): ST.append(ST[-1] + m)
    if it == 2: STB += [B0 - CUT[2] + x for x in ST[:-1]]
    def S(x, B0=B0, ST=ST, off=off, N=N):
        x += off; i = int(math.floor(x))
        return B0 + ST[i] + ((x - i) * (ST[i + 1] - ST[i]) if i < N else 0)
    tiles = []
    o1 = len(ops)
    at(B0 + 1, LSP); ly = view_load(VY + 16, IDX + 1); lz = view_load(VZ + 16, IDX + 2)
    IT[0] = nit
    at(S(float(opts.get('ti', 7.5))), LSP)
    li = [valu(f"buffer_load_dword v{IDX+k}, v{[OX,OY,OZ][k]}, s[{S_SRD}:{S_SRD+3}], s{S_IT} offen offset:{(64 if k else 0) + 104 * (el % EPB)}", [f"v{[OX,OY,OZ][k]}", f"s{S_IT}"], [f"v{IDX+k}"], "vmem") for k in range(3)]
    if el % EPB == EPB - 1:
        salu(f"s_addk_i32 s{S_IT}, {104 * EPB}", [f"s{S_IT}"], [f"s{S_IT}", "scc"]); salu(f"s_cmp_lt_u32 s{S_IT}, {104 * (int(opts.get('iters', 4)) + 1)}", [f"s{S_IT}"], ["scc"])
    for o in ops[o1:]: o.nb = o.prio - 1
    IT[0] = it
    if el == 0: do_form(steps, 0, -40, 0) if steps[0][0] != "mrg" else None
    extra = {}
    def sched_unpack(v, V, raw, loads, t0, t1, itv, pre=None, post=None):
        if v in UM:
            for j, (bs, t) in enumerate(UMP[v]):
                def cb(j=j):
                    IT[0] = itv
                    if j == 0: at(MC[0] - 3, 0); wait_for(vr(raw,16), loads(), LAT_FAR)
                    if pre and j % 2 == 0: pre(j // 2)
                    mm(V + 4 * j, ASEL + 4 * (j % 2), raw + 4 * (j // 2), "0", [])
                    if post and j % 2 == 1: post(j // 2)
                extra.setdefault((bs + off, t), []).append(cb)
        else:
            def now():
                IT[0] = itv
                at(t0, 0); wait_for(vr(raw,16), loads(), LAT_FAR)
                for q in range(4):
                    if pre: pre(q)
                    at(t0 + (t1 - t0) * q / 4, (t1 - t0) / 32); unpack_chunk(V, raw, q)
                    if post: post(q)
            return now
    ny = sched_unpack("y", VY, VY + 16, lambda ly=ly: ly, S(YT0), S(YT1), it)
    nz = sched_unpack("z", VZ, VZ + 16, lambda lz=lz: lz, S(ZT0), S(ZT1), it)
    lxh = []
    nk, na = nsteps[0]; nfb = fbuf(nsteps, 0)
    XA, XB = S(float(opts.get("x0", 18.5))), S(float(opts.get("x1", 19.5)))
    def xpre(q):
        if nk != "mrg": return
        at(XA + (XB - XA) * q / 4 - 8, 0.7)
        for i in range(8 * q, 8 * q + 8):
            d = VY + i % 16
            valu(f"v_mul_f32_dpp v{d}, v{VX+i}, v{VX+i} row_shl:8 {FULL} bound_ctrl:0", [f"v{VX+i}"], [f"v{d}"], "dpp")
    def xpost(q, S=S):
        ta, tb = S(19.2), S(20) - 2.5
        at(ta + (tb - ta) * q / 4, (tb - ta) / 48)
        for i in range(8 * q, 8 * q + 8):
            if nk == "mrg":
                d = VY + i % 16
                valu(f"v_mul_f32_dpp v{d}, v{VX+i}, v{VX+i} row_shr:8 row_mask:0xf bank_mask:0xc", [f"v{VX+i}", f"v{d}"], [f"v{d}"], "dpp")
            else:
                d = TMP + i % 8
                ctl = f"row_shl:8 {FULL} bound_ctrl:0" if nk == "ror8" else f"row_ror:{na} {FULL}"
                valu(f"v_mul_f32_dpp v{d}, v{VX+i}, v{VX+i} {ctl}", [f"v{VX+i}"], [f"v{d}"], "dpp")
            if i % 2: valu(f"v_cvt_pk_bf16_f32 v{nfb+i//2}, v{d-1}, v{d}", [f"v{d-1}", f"v{d}"], [f"v{nfb+i//2}"])
    nx = sched_unpack("x", VX, VZ + 16, lambda lxh=lxh: lxh, XA, XB, nit, xpre, xpost)
    for si in range(N):
        kind, a = steps[si]; bs = si - off
        if bs == 6 and ny: ny(); IT[0] = it
        if bs == 7 and nz: nz(); IT[0] = it
        if si + 1 < N: do_form(steps, si + 1, S(bs), S(bs + 1))
        if bs == 9:
            IT[0] = nit
            at(S(float(opts.get('tx', 11.2))), 2.0); wait_for(vr(IDX,3), li, LAT_NEAR)
            for k in range(3): valu(f"v_lshl_add_u32 v{IDX+k}, v{IDX+k}, 8, v{GOFF}", [f"v{IDX+k}", f"v{GOFF}"], [f"v{IDX+k}"])
            TT[1] = LSP; o2 = len(ops)
            lxh += view_load(VZ + 16, IDX)
            for o in ops[o2:]: o.nb = o.prio - 1
            IT[0] = it
        if bs == 19 and nx: nx(); IT[0] = it
        fb = fbuf(steps, si)
        ex = {t: extra[(si, t)] for t in range(8) if (si, t) in extra}
        if bs < 0:
            d9 = D9 + 4 * (d9c[0] % ND9); d9c[0] += 1
            def fin(S=S, d9=d9, kind=kind, ps=pend_softmax):
                at(MC[0] + 4 if kind == "mrg" else S(SM1 + (SM2 - SM1) / 6 - 0.5), 2.0)
                add(d9, d9, d9 + 1)
                valu(f"v_cndmask_b32 v{EM}, v{NEGINF}, v{d9}, s[{S_MA}:{S_MA+1}]", [f"v{NEGINF}", f"v{d9}"], [f"v{EM}"])
                if kind == "mrg": valu(f"v_cndmask_b32 v{EMB}, v{NEGINF}, v{d9}, s[{S_MB}:{S_MB+1}]", [f"v{NEGINF}", f"v{d9}"], [f"v{EMB}"])
                add(SM, d9 + 2, d9 + 3)
                if kind == "mrg": ps(S(SM0 + 0.4), S(SM1 + 0.4), S(SM2 + 0.4))
            step_mm(fb, d9, 0, 0, fin, ex)
        else:
            var = bs % 4
            if var == 0: d9 = D9 + 4 * (d9c[0] % ND9); d9c[0] += 1
            fin = None
            if var == 3:
                de = ES + 2 * (bs // 4)
                tiles.append((de, de + 1))
                def fin(d9=d9, de=de, last=(bs == 19), tiles=tiles, el=el):
                    at(MC[0] + 4, 3.0)
                    add(de, d9, d9 + 1); add(de + 1, d9 + 2, d9 + 3)
                    if last and (EPB == 1 or el % 2 == 1):
                        b1 = MC[0] - 9
                        softmax([(EM if EPB == 1 else EMB, SM)] + tiles, True, b1 + 37 * SM0 + 9, b1 + 37 * SM1, b1 + 37 * SM2)
            step_mm(fb, d9, var, (MASKC if bs == 8 else 0) if var == 0 else None, fin, ex)
    pend_softmax = lambda t0, t1, t2, tiles=tiles: softmax(tiles + [(EM, SM)], False, t0, t1, t2)
for cb in deferred: cb()
ST = STB
out, st = schedule(ops, look=LOOK, late=float(opts.get('late', 4)))
bad = verify(out)
assert bad == 0
lines = finalize(out)
cuts = [i for i, o in enumerate(out) if o.kind == "mfma" and o.g in CUT]
s1 = lines[cuts[2]:cuts[3]]; s2 = lines[cuts[3]:cuts[4]]
if s1 != s2:
    for i, (a, b) in enumerate(zip(s1, s2)):
        if a != b: print("diff at", i, len(s1), len(s2), s1[i-3:i+3], s2[i-3:i+3], file=sys.stderr); break
    raise SystemExit("body not periodic")
body = s1; bops = out[cuts[2]:cuts[3]]
pre_ops = [o for o in out[:cuts[2]] if o.kind != "nop" and o.it >= 2]
post_ops = [o for o in bops if o.kind != "nop" and o.it == 1]
assert sum(1 for o in pre_ops if o.kind == 'vmem') == 7 and sum(1 for o in pre_ops if o.kind == 'salu') == 2
nm = sum(1 for o in bops if o.kind == "mfma"); nf = sum(o.cost for o in bops if o.kind not in ("mfma", "nop"))
print(st, "body len", len(body), "est cycles/iter", est_cycles(bops), "issue", sum(4 * (4 - o.free) for o in bops if o.kind == "mfma") + nf * 4, "pipe", nm * 16, "pre", len(pre_ops), "post", len(post_ops), "nops in body", sum(1 for o in bops if o.kind == "nop"), file=sys.stderr)
if int(opts.get("prof", 0)):
    seg = []; cur_ = []; nm_ = 0
    for o in bops:
        if o.kind == "mfma":
            if nm_ in ST and cur_: seg.append(cur_); cur_ = []
            nm_ += 1
        cur_.append(o)
    seg.append(cur_)
    from collections import Counter
    for i, sg in enumerate(seg): print(i, est_cycles(sg + [sg[0]]) - 8, dict(Counter(o.kind for o in sg)), file=sys.stderr)
e("s_cmp_ge_u32 s2, 256"); e("s_cbranch_scc1 L_done")
stamp()
e("s_load_dwordx4 s[4:7], s[0:1], 0"); e("s_load_dwordx4 s[8:11], s[0:1], 32")
e("s_load_dwordx4 s[12:15], s[0:1], 48"); e("s_load_dwordx2 s[16:17], s[0:1], 64")
T = VY
vN, vG, vL, vW0, vW1, vWN, vPF, vSM, vT0, vT1, vT2, vWV, vTR, vNA = T, T+1, T+2, T+3, T+4, T+5, T+6, T+7, T+8, T+9, T+10, T+11, T+12, T+20
vHA = VY + 24; vBA = VY + 28
vm = []; dsq = []
def vmem(s, tag): e(s); vm.append(tag)
def vwait(tag):
    last = max(i for i, t in enumerate(vm) if t == tag)
    e(f"s_waitcnt vmcnt({len(vm) - 1 - last})")
def ds(s, tag): e(s); dsq.append(tag)
def dwait(tag):
    last = max(i for i, t in enumerate(dsq) if t == tag)
    e(f"s_waitcnt lgkmcnt({min(15, len(dsq) - 1 - last)})")
def pf_addr():
    e("s_getpc_b64 s[32:33]")
    L.append("L_pfbase:")
    e(f"v_lshlrev_b32 v{vPF}, 7, v0")
    e(f"v_min_u32 v{vPF}, L_end-L_pfbase-4, v{vPF}")
def pf_load():
    vmem(f"global_load_dword v{PFR}, v{vPF}, s[32:33]", "pf")
    if EPB == 2:
        e(f"v_add_u32 v{vPF}, 0x8000, v{vPF}"); e(f"v_min_u32 v{vPF}, L_end-L_pfbase-4, v{vPF}")
        vmem(f"global_load_dword v{PFR+1}, v{vPF}, s[32:33]", "pf")
if PF == 3: pf_addr(); pf_load()
e(f"v_lshrrev_b32 v{vWV}, 6, v0")
e(f"v_and_b32 v{vN}, 15, v0")
e(f"v_readfirstlane_b32 s{S_WAVE}, v{vWV}")
e(f"v_bfe_u32 v{vG}, v0, 4, 2")
e(f"v_lshlrev_b32 v{OX}, 2, v{vN}")
e(f"s_lshl_b32 s3, s2, 2"); e(f"s_add_u32 s3, s3, s{S_WAVE}")
e(f"s_mul_i32 s19, s3, 416")
def nib(tab): return sum(v << (4 * i) for i, v in enumerate(tab))
e(f"s_mov_b32 s{S_T}, 0x{nib(YT) & 0xffffffff:08x}"); e(f"s_mov_b32 s{S_T+1}, 0x{nib(YT) >> 32:08x}")
e(f"s_mov_b32 s{S_T+2}, 0x{nib(ZT) & 0xffffffff:08x}"); e(f"s_mov_b32 s{S_T+3}, 0x{nib(ZT) >> 32:08x}")
e(f"v_lshrrev_b64 v[{vT0}:{vT0+1}], v{OX}, s[{S_T}:{S_T+1}]")
e(f"v_and_b32 v{OY}, 15, v{vT0}")
e(f"v_lshrrev_b64 v[{vT0}:{vT0+1}], v{OX}, s[{S_T+2}:{S_T+3}]")
e(f"v_and_b32 v{OZ}, 15, v{vT0}")
e(f"v_add_u32 v{OX}, s19, v{OX}")
e(f"v_lshl_add_u32 v{OY}, v{OY}, 2, s19")
e(f"v_lshl_add_u32 v{OZ}, v{OZ}, 2, s19")
e(f"v_lshlrev_b32 v{GOFF}, 4, v{vG}")
e(f"s_lshl_b32 s{S_T}, s{S_WAVE}, 13")
e(f"v_lshrrev_b32 v{vT2}, 1, v{vN}")
e(f"v_xor_b32 v{vT0}, v{vT2}, v{vG}")
e(f"v_lshlrev_b32 v{vT0}, 5, v{vT0}")
e(f"v_and_b32 v{vT1}, 1, v0")
e(f"v_lshl_add_u32 v{vT0}, v{vT1}, 4, v{vT0}")
e(f"v_lshl_add_u32 v{vT0}, v{vG}, 8, v{vT0}")
e(f"v_add_u32 v{vW0}, s{S_T}, v{vT0}")
e(f"v_xor_b32 v{vW1}, 0x80, v{vW0}")
e(f"v_and_b32 v{vL}, 63, v0"); e(f"v_lshlrev_b32 v{vL}, 2, v{vL}")
e(f"v_lshlrev_b32 v{vSM}, 2, v{vT1}")
e(f"v_lshl_add_u32 v{vT0}, v{vT2}, 5, v{vSM}"); e(f"v_lshl_add_u32 v{vT0}, v{vG}, 3, v{vT0}")
e(f"v_cmp_eq_u32 vcc, 0, v{vWV}")
e(f"v_lshlrev_b32 v{vT1}, 5, v{vT1}"); e(f"v_and_b32 v{vT2}, 3, v{vT2}")
e(f"v_cndmask_b32 v{vSM}, v{vL}, v{vT0}, vcc")
e(f"v_lshl_add_u32 v{vT1}, v{vT2}, 3, v{vT1}"); e(f"v_bfe_u32 v{vT2}, v0, 3, 2"); e(f"v_lshl_add_u32 v{vT1}, v{vT2}, 6, v{vT1}")
e(f"v_bfe_u32 v{vT2}, v0, 5, 1"); e(f"v_lshlrev_b32 v{vT2}, 2, v{vT2}")
e(f"v_cmp_eq_u32 vcc, 3, v{vWV}")
e(f"v_xor_b32 v{vT0}, 4, v{vT2}"); e(f"v_add_u32 v{vT1}, v{vT1}, v{vT0}")
e(f"v_cndmask_b32 v{vSM}, v{vSM}, v{vT1}, vcc")
e(f"v_cmp_eq_u32 vcc, 2, v{vWV}")
e(f"v_and_b32 v{vT0}, 31, v0"); e(f"v_lshl_add_u32 v{vT0}, v{vT0}, 3, v{vT2}")
e(f"v_cndmask_b32 v{vSM}, v{vSM}, v{vT0}, vcc")
if PF in (1, 2): pf_addr()
e(f"s_add_u32 s{S_T+1}, s{S_T}, 0x1000")
e(f"s_mov_b32 s{S_T+2}, {O_P}"); e(f"s_cmp_eq_u32 s{S_WAVE}, 0"); e(f"s_cselect_b32 s{S_T+2}, {O_B}, s{S_T+2}")
e(f"s_cmp_eq_u32 s{S_WAVE}, 1"); e(f"s_cselect_b32 s{S_T+2}, {O_H}, s{S_T+2}")
e(f"s_cmp_eq_u32 s{S_WAVE}, 3"); e(f"s_cselect_b32 s{S_T+2}, {O_HH}, s{S_T+2}")
e(f"s_mov_b32 m0, s{S_T}")
e(f"s_cmp_eq_u32 s{S_WAVE}, 0")
e("s_waitcnt lgkmcnt(0)")
stamp()
vmem(f"global_load_dword v{IDX}, v{OX}, s[{S_IDX}:{S_IDX+1}]", "idx0")
for half in range(2):
    for q in range(4):
        vmem(f"global_load_lds_dwordx4 v{vW1 if q & 2 else vW0}, s[{S_W}:{S_W+1}] offset:{1024*q}", "wdma")
    if half == 0:
        e(f"v_add_u32 v{vW0}, 0x1000, v{vW0}"); e(f"s_mov_b32 m0, s{S_T+1}"); e(f"v_add_u32 v{vW1}, 0x1000, v{vW1}")
e(f"s_cselect_b64 s[34:35], s[{S_B}:{S_B+1}], s[{S_H}:{S_H+1}]")
e(f"s_cmp_eq_u32 s{S_WAVE}, 2"); e(f"s_mov_b32 m0, s{S_T+2}"); e(f"s_cselect_b64 s[34:35], s[{S_P}:{S_P+1}], s[34:35]")
vmem(f"global_load_lds_dword v{vSM}, s[34:35]", "wdma")
TLB = int(opts.get("tlb", 0))
if TLB:
    e(f"v_min_u32 v{vT0}, {25600000 // (1 << TLB)}, v{vN if TLB >= 21 else 0}"); e(f"v_lshlrev_b32 v{vT0}, {TLB}, v{vT0}")
    vmem(f"global_load_dword v{PFR+1}, v{vT0}, s[{S_TAB}:{S_TAB+1}]", "pf")
if PF == 1: vmem(f"global_load_dword v{PFR}, v{vPF}, s[32:33]", "pf")
stamp()
vwait("idx0"); stamp()
e(f"v_lshl_add_u32 v{IDX}, v{IDX}, 8, v{GOFF}")
for q in range(4): vmem(f"global_load_dwordx4 {rng(VZ+16+4*q,4)}, v{IDX}, s[{S_TAB}:{S_TAB+1}] offset:{64*q}", "view0")
if PF == 2: pf_load()
for k in range(1, 3): vmem(f"global_load_dword v{IDX+k}, v{[OX,OY,OZ][k]}, s[{S_IDX}:{S_IDX+1}] offset:64", "idx1")
if PF == 4: pf_addr(); pf_load()
for r in range(4): e(f"v_mov_b32 v{MASKC+r}, 0")
e(f"v_lshrrev_b32 v{vL}, 1, v{vL}")
ds(f"ds_write_b16 v{vL}, v{MASKC+1} offset:{O_Z}", "z")
for r in range(4): e(f"v_accvgpr_write_b32 a{AZ+r}, 0")
e(f"v_and_b32 v{SIX}, 1, v{vN}"); e(f"v_mul_u32_u24 v{SIX}, 0xaaaa, v{SIX}"); e(f"v_add_u32 v{SIX}, 0x4444, v{SIX}")
if UM:
    e(f"v_lshrrev_b32 v{vT0}, 2, v{vN}"); e(f"v_cmp_eq_u32 vcc, v{vT0}, v{vG}")
    e(f"v_and_b32 v{vT0}, 1, v{vN}"); e(f"v_lshlrev_b32 v{vT0}, 4, v{vT0}"); e(f"v_mov_b32 v{vT1}, 0x3f80"); e(f"v_lshlrev_b32 v{vT1}, v{vT0}, v{vT1}")
    e(f"v_cndmask_b32 v{vT1}, 0, v{vT1}, vcc")
    e(f"v_and_b32 v{vT0}, 2, v{vN}"); e(f"v_cmp_eq_u32 vcc, 0, v{vT0}")
    for r in (2, 3, 4, 5): e(f"v_accvgpr_write_b32 a{ASEL+r}, 0")
    e(f"v_cndmask_b32 v{vT0}, 0, v{vT1}, vcc"); e(f"v_sub_u32 v{vT1}, v{vT1}, v{vT0}")
    e(f"v_accvgpr_write_b32 a{ASEL}, v{vT0}"); e(f"v_accvgpr_write_b32 a{ASEL+1}, v{vT1}")
    e(f"v_accvgpr_write_b32 a{ASEL+6}, v{vT0}"); e(f"v_accvgpr_write_b32 a{ASEL+7}, v{vT1}")
e(f"v_mov_b32 v{NEGINF}, 0xff800000")
e(f"v_mov_b32 v{VCS}, {f32(CSC)}")
e(f"s_mov_b32 s{S_MA}, 0x{inval & 0xffffffff:08x}"); e(f"s_mov_b32 s{S_MA+1}, 0x{inval >> 32:08x}")
e(f"v_cndmask_b32 v{MASKC}, v{MASKC}, v{NEGINF}, s[{S_MA}:{S_MA+1}]")
e(f"s_mov_b32 s{S_MA}, 0xff"); e(f"s_mov_b32 s{S_MA+1}, 0"); e(f"s_movk_i32 s{S_IT}, 104")
e(f"s_mov_b32 s{S_OM}, 0x00010001"); e(f"s_mov_b32 s{S_OM+1}, 0x00010001")
e(f"s_mov_b32 s{S_SRD}, s{S_IDX}"); e(f"s_mov_b32 s{S_SRD+1}, s{S_IDX+1}"); e(f"s_mov_b32 s{S_SRD+2}, {4096*104}"); e(f"s_mov_b32 s{S_SRD+3}, 0x00020000")
e(f"s_lshl_b32 s3, s3, 3"); e(f"v_lshl_add_u32 v{OOFF}, v{vG}, 1, s3")
e(f"v_lshrrev_b32 v{vT0}, 3, v{vN}"); e(f"v_and_b32 v{vT1}, 3, v{vN}"); e(f"v_lshl_or_b32 v{vT0}, v{vT0}, 2, v{vT1}")
e(f"v_lshrrev_b32 v{vT1}, 1, v{vG}"); e(f"v_xor_b32 v{vT0}, v{vT0}, v{vT1}"); e(f"v_lshlrev_b32 v{vT0}, 5, v{vT0}")
e(f"v_and_b32 v{vT1}, 1, v{vG}"); e(f"v_lshl_add_u32 v{vT0}, v{vT1}, 4, v{vT0}"); e(f"v_lshl_add_u32 v{vT0}, v{vN}, 8, v{vT0}")
e(f"v_add_u32 v{vWN}, s{S_T}, v{vT0}")
vWNk = [vWN, vW0, vW1, vSM]
for ks in range(1, 4): e(f"v_xor_b32 v{vWNk[ks]}, {ks << 6}, v{vWN}")
e(f"v_lshrrev_b32 v{vT0}, 2, v{vN}")
e(f"v_lshl_or_b32 v{vT1}, v{vT1}, 2, v{vT0}")
e(f"v_lshl_add_u32 v{vT0}, v{vG}, 3, v{vT0}"); e(f"v_lshlrev_b32 v{vT0}, 8, v{vT0}")
e(f"v_lshl_add_u32 v{vT0}, v{vT1}, 5, v{vT0}")
e(f"v_and_b32 v{vT1}, 3, v{vN}"); e(f"v_lshl_add_u32 v{vTR}, v{vT1}, 3, v{vT0}")
for t in range(1, 8): e(f"v_xor_b32 v{vTR+t}, {t << 5}, v{vTR}")
for var in range(4):
    e(f"v_subrev_u32 v{vT0}, {4*var}, v{vN}"); e(f"v_min_u32 v{vNA+var}, 4, v{vT0}")
    e(f"v_lshl_add_u32 v{vNA+var}, v{vNA+var}, 7, v{GOFF}")
    e(f"v_min_u32 v{vT0}, 2, v{vT0}"); e(f"v_sub_u32 v{vT0}, 2, v{vT0}"); e(f"v_lshl_add_u32 v{vHA+var}, v{vT0}, 7, v{GOFF}")
e(f"v_lshlrev_b32 v{vBA}, 6, v{vG}")
e(f"s_lshl_b32 s{S_T+1}, s{S_WAVE}, 5"); e(f"v_and_b32 v{vT0}, 12, v{vN}"); e(f"v_add_u32 v{vT2}, s{S_T+1}, v{vT0}")
e(f"v_bfe_u32 v{vT0}, v{vN}, 1, 1"); e(f"v_lshl_add_u32 v{vT2}, v{vT0}, 7, v{vT2}")
e(f"v_and_b32 v{vT0}, 1, v{vN}"); e(f"v_lshl_add_u32 v{vT2}, v{vT0}, 1, v{vT2}")
e(f"s_mov_b32 s{S_MB}, 0xff00"); e(f"s_mov_b32 s{S_MB+1}, 0")
vwait("wdma"); e("s_waitcnt lgkmcnt(0)")
stamp(); e("s_barrier"); stamp()
WN = F[0]; HB = ACC; WHA = RF
trs = [f"ds_read_b64_tr_b16 {rng(AW+(t*4+ks)*4+2*u,2,'a')}, v{vTR+t} offset:{8192*ks+1024*u}" for t in range(8) for ks in range(4) for u in range(2)]
def tr(n):
    for _ in range(n):
        if trs: ds(trs.pop(0), "tr")
for ks in range(4): ds(f"ds_read_b128 {rng(HB+4*ks,4)}, v{GOFF} offset:{O_H+64*ks}", "wn")
for uu in range(2):
    for ks in range(4): ds(f"ds_read_b128 {rng(WN+16*uu+4*ks,4)}, v{vWNk[ks]} offset:{4096*uu}", "wn")
for k in range(4): ds(f"ds_read_b128 {rng(BIAS+16+4*k,4)}, v{vBA} offset:{O_B+16*k}", "bb")
tr(6)
dwait("wn")
for ks in range(4):
    for uu in range(2):
        c = "0" if ks == 0 else rng(WHA+4*uu, 4)
        e(f"v_mfma_f32_16x16x32_bf16 {rng(WHA+4*uu,4)}, {rng(HB+4*ks,4)}, {rng(WN+16*uu+4*ks,4)}, {c}")
        tr(1)
tr(8)
for uu in range(2):
    a = WHA + 4 * uu
    e(f"v_cvt_pk_bf16_f32 v{a+1}, v{a}, v{a}")
    ds(f"ds_write_b16 v{vT2}, v{a+1} offset:{O_HI+16*uu}", "whw")
dwait("bb")
bu = []
for q in range(16):
    s_ = BIAS + 16 + q
    bu += [f"v_lshlrev_b32 v{BIAS+2*q}, 16, v{s_}", f"v_and_b32 v{BIAS+2*q+1}, 0xffff0000, v{s_}"]
while trs:
    tr(1)
    if bu: e(bu.pop(0))
assert not bu
for var in range(4):
    for u in range(2): ds(f"ds_read_b128 {rng(AH+8*var+4*u,4,'a')}, v{vHA+var} offset:{O_Z+64*u}", "ah")
dwait("whw")
e("s_barrier")
stamp()
vwait("idx1")
stamp()
for k in range(1, 3): e(f"v_lshl_add_u32 v{IDX+k}, v{IDX+k}, 8, v{GOFF}")
n9 = [f"ds_read_b128 {rng(AN9+8*var+4*u,4,'a')}, v{vNA+var} offset:{O_HI+64*u}" for var in range(4) for u in range(2)]
pre = [o for o in pre_ops if (o.kind in VALUK or o.kind == "mfma") and not o.text.startswith("v_lshl_add_u32")]
pre2 = []
for i, o in enumerate(sorted(pre, key=lambda o: o.seq)):
    if o.kind == "mfma": o2 = mfma(o.text, o.W, [r for r in o.R if r in o.AB], [], o.C); pre2.append(o2)
    else: pre2.append(Op(o.text, o.kind, o.R, o.W, prio=i * 0.01))
po, _ = schedule(pre2); assert verify(po) == 0
for i, s_ in enumerate(finalize(po)):
    e(s_)
    if i % 3 == 0 and n9: ds(n9.pop(0), "n9")
assert not n9
e("s_waitcnt lgkmcnt(0)")
e("s_nop 7")
if DBG == 4 and int(opts["sa"]) < 0:
    e("s_load_dwordx2 s[98:99], s[0:1], 72"); e("s_waitcnt lgkmcnt(0)"); e("s_not_b32 s34, s40"); e(f"v_mov_b32 v{PFR}, s34"); e(f"v_mov_b32 v{PFR+1}, 0")
    e("s_waitcnt vmcnt(0)"); e("s_mov_b64 exec, 1"); e(f"global_atomic_umax v{PFR+1}, v{PFR}, s[98:99]"); e("s_mov_b64 exec, -1")
if DBG: e("s_mov_b32 s34, 0")
L.append(".p2align 6"); L.append("L_loop:")
if DBG and not STEPST: e("s_mov_b32 m0, s34"); e("s_memrealtime s[32:33]"); e("s_waitcnt lgkmcnt(0)"); e(f"s_movreld_b32 s{40+2*NST[0]}, s32"); e("s_add_u32 s34, s34, 2"); NST[0] += 4
nm_ = 0
for s in body:
    if s.startswith("v_mfma") or s.startswith("v_smfmac"):
        if STEPST and nm_ in ST: stamp(True)
        nm_ += 1
    e(s)
if STEPST: stamp(True)
e("s_cbranch_scc1 L_loop")
stamp()
e("s_nop 7")
ops = []; IT[0] = 0; at(0, 1)
for o in sorted(post_ops, key=lambda o: o.seq):
    if getattr(o, "rot", False): continue
    if o.kind == "mfma":
        o2 = mfma(o.text, o.W, [r for r in o.R if r in o.AB], [], o.C); o2.free = o.free; push(o2)
    else: valu(o.text, o.R, o.W, o.kind, cost=o.cost)
add(NUM, NUM, DEN)
swap(16, TC, TB); add(TC, TC, TB); swap(16, TA, NUM); add(TA, TA, NUM)
for c in (8, 4, 2, 1):
    for r in (TC, TA): valu(f"v_add_f32_dpp v{r}, v{r}, v{r} row_ror:{c} {FULL}", [f"v{r}"], [f"v{r}"], "dpp")
swap(32, TC, TA)
valu(f"v_rcp_f32 v{TA}, v{TA}", [f"v{TA}"], [f"v{TA}"], "trans", cost=2)
valu(f"v_mul_f32 v{TC}, v{TC}, v{TA}", [f"v{TC}", f"v{TA}"], [f"v{TC}"])
valu(f"v_cvt_pk_bf16_f32 v{TC}, v{TC}, v{TC}", [f"v{TC}"], [f"v{TC}"])
to, _ = schedule(ops); assert verify(to) == 0
print("tail est", est_cycles(to), "pre est", est_cycles(po), file=sys.stderr)
for s in finalize(to): e(s)
stamp()
if DBG == 4:
    a_, b_, K_ = int(opts["sa"]), int(opts["sb"]), int(opts["sk"])
    if b_ < 0: b_ += NST[0]
    e("s_waitcnt lgkmcnt(0)")
    if a_ >= 0:
        e(f"s_sub_u32 s34, s{40+2*b_}, s{40+2*a_}")
    else:
        e("v_mov_b32 v1, 0"); e("global_load_dword v2, v1, s[98:99] sc1"); e("s_waitcnt vmcnt(0)"); e("v_readfirstlane_b32 s34, v2"); e("s_nop 3")
        e("s_not_b32 s34, s34"); e(f"s_sub_u32 s34, s{40+2*b_}, s34")
    e("s_min_u32 s34, s34, 10000"); e(f"s_mul_i32 s34, s34, {K_}"); e("s_min_u32 s34, s34, 20000")
    stamp(); e("s_waitcnt lgkmcnt(0)")
    L.append("L_spin:")
    e("s_memrealtime s[32:33]"); e("s_waitcnt lgkmcnt(0)")
    e(f"s_sub_u32 s35, s32, s{40+2*(NST[0]-1)}"); e("s_cmp_lt_u32 s35, s34"); e("s_cbranch_scc1 L_spin")
if DBG == 1:
    e("s_load_dwordx2 s[34:35], s[0:1], 80"); e("s_waitcnt lgkmcnt(0)")
    e("s_lshl_b32 s3, s3, 4"); e(f"v_mov_b32 v1, s3")
    for k in range(NST[0]):
        e(f"v_mov_b32 v2, s{40+2*k}"); e(f"global_store_dword v1, v2, s[34:35] offset:{4*k}")
    e(f"v_mov_b32 v2, {NST[0]}"); e(f"global_store_dword v1, v2, s[34:35] offset:124")
e(f"s_mov_b64 exec, s[{S_OM}:{S_OM+1}]")
e(f"global_store_short v{OOFF}, v{TC}, s[{S_OUT}:{S_OUT+1}]")
L.append("L_done:")
e("s_endpgm")
L.append("L_end:")
L += ['.section .rodata,"a"', ".p2align 6", ".amdhsa_kernel %s_kernel" % NAME,
      "  .amdhsa_next_free_vgpr 512", "  .amdhsa_next_free_sgpr %d" % (100 if DBG else 40), "  .amdhsa_accum_offset 256",
      "  .amdhsa_group_segment_fixed_size 0", "  .amdhsa_kernarg_size 88", "  .amdhsa_user_sgpr_count 2",
      "  .amdhsa_user_sgpr_kernarg_segment_ptr 1", "  .amdhsa_system_sgpr_workgroup_id_x 1",
      "  .amdhsa_float_denorm_mode_32 3",
      ".end_amdhsa_kernel"]
print("\n".join(L))
```

```python
import sys, math, struct
from sched import *
NAME = "standalone__factorization_afm__recsys"
opts = dict(z8="shl"); opts.update(dict(a.split("=") for a in sys.argv[1:] if "=" in a))
LAT_FAR = int(opts.get("latfar", 450)); LAT_NEAR = int(opts.get("latnear", 300))
DBG = int(opts.get("dbg", 0)); PF = int(opts.get("pf", 2))
TOUCH = int(opts.get('touch', 0))
LSP = float(opts.get('lsp', 9))
EPI = float(opts.get("epi", 3.1)); LOOK = int(opts.get("look", 30))
YT = [6,0,4,4,2,3,6,9,3,7,0,1,8,5,3,4]
ZT = [5,2,7,7,9,7,1,0,1,5,4,8,2,9,6,8]
K10 = [("", lambda n: n), ("quad_perm:[1,0,3,2]", lambda n: n ^ 1), ("quad_perm:[2,3,0,1]", lambda n: n ^ 2)]
seen = set(); inval = 0
for k, (_, pi) in enumerate(K10):
    for n in range(16):
        a, b = ZT[n], YT[pi(n)]; key = (min(a, b), max(a, b))
        if a == b or key in seen: inval |= 1 << (16 * k + n)
        else: seen.add(key)
assert len(seen) == 45
POS = [YT.index(c) for c in range(10)]
FULL = "row_mask:0xf bank_mask:0xf"
BIAS = 0; VX = 32; VY = 64; VZ = 96; F = [128, 144]; TMP = 160; ACC = 168; RF = 184; RF2 = 192; D9 = 200; ND9 = 3
MASKC = 212; ES = 216
EM = 226; EMB = 227; SM = 228
SIX = 232; NEGINF = 234; MX = 235; NUM = 236; DEN = 237; TA = 238; TB = 239; TC = 240
IDX = 245; OX = 248; OY = 249; OZ = 250; GOFF = 251; OOFF = 252; VCS = 253; PFR = 254
AW = 0; AN9 = 128; AH = 160; AZ = 192; ASEL = 196
EPB = int(opts.get("epb", 1)); UM = opts.get("um", "")
S_IDX = 4; S_TAB = 6; S_W = 8; S_B = 10; S_H = 12; S_P = 14; S_OUT = 16; S_WAVE = 18; S_MA = 20; S_MB = 40 if 0 else 28; S_MAX = 24; S_T = 26; S_OM = 30; S_IT = 22; S_INC = 23; S_SRD = 36
LN9 = 32768
O_HI = LN9; O_P = LN9 + 256; O_Z = LN9 + 512; O_HH = LN9 + 640; O_B = LN9 + 896; O_H = O_B + 256
CSC = 0.5 * math.log2(math.e)
def f32(x): return "0x%08x" % struct.unpack("<I", struct.pack("<f", x))[0]
L = []
def e(s): L.append("    " + s)
hdr = open("cdna_kernels/%s.s.ref" % NAME).read().split("\n")
for line in hdr:
    if line.startswith("; @launch"):
        L.append("; @launch grid=(256,1,1) block=(256,1,1) lds=34304"); break
    L.append(line)
L += ['.amdgcn_target "amdgcn-amd-amdhsa--gfx950"', ".text", ".globl %s_kernel" % NAME, ".p2align 8",
      ".type %s_kernel,@function" % NAME, "%s_kernel:" % NAME]
NST = [0]
STEPST = int(opts.get('stepst', 0))
def stamp(force=False):
    if DBG and (not STEPST or force): e(f"s_memrealtime s[{40+2*NST[0]}:{41+2*NST[0]}]"); NST[0] += 1
ops = []
TT = [0.0, 0.0]; IT = [0]; MC = [0]
def at(t, inc): TT[0] = t; TT[1] = inc
def push(o): o.it = IT[0]; ops.append(o); return o
def valu(text, R, W, kind="valu", **kw):
    if kind in ("perm", "vmem"): kw["cost"] = 2
    o = Op(text, kind, R, W, prio=round(TT[0] + 1e-4, 3), **kw); TT[0] += TT[1]; return push(o)
def view_load(raw, ireg):
    return [valu(f"global_load_dwordx4 {rng(raw+4*q,4)}, v{ireg}, s[{S_TAB}:{S_TAB+1}] offset:{64*q}", [f"v{ireg}"], vr(raw+4*q,4), "vmem") for q in range(4)]
def wait_for(regs, ls, lat):
    return push(Op("wait", "wait", R=regs, W=regs, covers=ls, lat=lat, prio=round(TT[0] + 1e-4, 3)))
def unpack(V, raw):
    for q in range(16):
        s = raw + q
        valu(f"v_lshlrev_b32 v{V+2*q}, 16, v{s}", [f"v{s}"], [f"v{V+2*q}"])
        valu(f"v_and_b32 v{V+2*q+1}, 0xffff0000, v{s}", [f"v{s}"], [f"v{V+2*q+1}"])
def form(fb, P, ctrl, Q, t0, t1, sfx=''):
    at(t0 + 0.2, (t1 - t0 - 2.5) / 48)
    for i in range(32):
        d = TMP + i % 8
        if ctrl: valu(f"v_mul_f32_dpp v{d}, v{P+i}, v{Q+i} {ctrl} {FULL}{sfx}", [f"v{P+i}", f"v{Q+i}"], [f"v{d}"], "dpp")
        else: valu(f"v_mul_f32 v{d}, v{P+i}, v{Q+i}", [f"v{P+i}", f"v{Q+i}"], [f"v{d}"])
        if i % 2: valu(f"v_cvt_pk_bf16_f32 v{fb+i//2}, v{d-1}, v{d}", [f"v{d-1}", f"v{d}"], [f"v{fb+i//2}"])
def unpack_chunk(V, raw, q):
    for j in range(4 * q, 4 * q + 4):
        s_ = raw + j
        valu(f"v_lshlrev_b32 v{V+2*j}, 16, v{s_}", [f"v{s_}"], [f"v{V+2*j}"])
        valu(f"v_and_b32 v{V+2*j+1}, 0xffff0000, v{s_}", [f"v{s_}"], [f"v{V+2*j+1}"])
def mm(D, A, B, ct, cr):
    MC[0] += 1
    push(mfma(f"v_mfma_f32_16x16x32_bf16 {rng(D,4)}, {rng(A,4,'a')}, {rng(B,4)}, {ct}", vr(D,4), vr(A,4,'a'), vr(B,4), cr))
deferred = []
def smf(D, A, B):
    MC[0] += 1
    o = mfma(f"v_smfmac_f32_16x16x64_bf16 {rng(D,4)}, {rng(A,4,'a')}, {rng(B,8)}, v{SIX}", vr(D,4), vr(A,4,'a') + [f"v{SIX}"], vr(B,8), vr(D,4)); o.free = 1
    push(o)
def step_mm(fb, d9, var, cinit, fin, extra):
    it0 = IT[0]
    for t in range(8):
        acc = ACC + 4 * (t % 4)
        for ks in range(4):
            c = BIAS + 4 * t if ks == 0 else acc
            mm(acc, AW + (t * 4 + ks) * 4, fb + 4 * ks, rng(c, 4), vr(c, 4))
        at(MC[0] - 1 + EPI, 1.0)
        rf = RF if t < 4 else RF2
        for c in range(2):
            d = rf + 2 * (t % 4) + c
            valu(f"v_cvt_pk_bf16_f32 v{d}, |v{acc+2*c}|, |v{acc+2*c+1}|", [f"v{acc+2*c}", f"v{acc+2*c+1}"], [f"v{d}"])
        if t == 1:
            for cb in deferred: cb()
            deferred.clear(); IT[0] = it0
        if t == 2 and cinit is not None:
            ct, cr = ("0", []) if cinit == 0 else (rng(cinit, 4), vr(cinit, 4))
            mm(d9, AZ, fb, ct, cr)
        if t == 3: smf(d9, AN9 + 8 * var, fb)
        if t == 5: smf(d9, AH + 8 * var, RF)
        if t == 6: smf(d9, AN9 + 8 * var + 4, fb + 8)
        for cb in extra.get(t, []): cb()
        IT[0] = it0
    def late():
        IT[0] = it0
        smf(d9, AH + 8 * var + 4, RF2)
        if fin: fin()
    deferred.append(late)
def swap(w, a, b): valu(f"v_permlane{w}_swap_b32 v{a}, v{b}", [f"v{a}", f"v{b}"], [f"v{a}", f"v{b}"], "perm")
def add(d, a, b): valu(f"v_add_f32 v{d}, v{a}, v{b}", [f"v{a}", f"v{b}"], [f"v{d}"])
def mov(d, a): valu(f"v_mov_b32 v{d}, v{a}", [f"v{a}"], [f"v{d}"])
def tred(r):
    swap(32, r, r+2); add(r, r, r+2); swap(32, r+1, r+3); add(r+1, r+1, r+3); swap(16, r, r+1); add(r, r, r+1)
def softmax(ES, odd, t0, t1, t2):
    E = [x[0] for x in ES]
    at(t0, (t1 - t0) / 11)
    valu(f"v_max3_f32 v{MX}, v{E[0]}, v{E[1]}, v{E[2]}", [f"v{x}" for x in E[:3]], [f"v{MX}"])
    valu(f"v_max3_f32 v{MX}, v{MX}, v{E[3]}, v{E[4]}", [f"v{MX}", f"v{E[3]}", f"v{E[4]}"], [f"v{MX}"])
    valu(f"v_max_f32 v{MX}, v{MX}, v{E[5]}", [f"v{MX}", f"v{E[5]}"], [f"v{MX}"])
    for c in ("row_ror:8 " + FULL, "row_ror:4 " + FULL, "row_ror:2 " + FULL, "row_ror:1 " + FULL, "row_bcast:15 row_mask:0xa bank_mask:0xf", "row_bcast:31 row_mask:0xc bank_mask:0xf"):
        valu(f"v_max_f32_dpp v{MX}, v{MX}, v{MX} {c}", [f"v{MX}"], [f"v{MX}"], "dpp")
    valu(f"v_mul_f32 v{MX}, v{VCS}, v{MX}", [f"v{MX}", f"v{VCS}"], [f"v{MX}"])
    valu(f"v_readlane_b32 s{S_MAX}, v{MX}, 63", [f"v{MX}"], [f"s{S_MAX}"], "readlane")
    at(t1, (t2 - t1) / 28)
    for i, (x, s) in enumerate(ES):
        valu(f"v_fma_f32 v{x}, v{x}, v{VCS}, -s{S_MAX}", [f"s{S_MAX}", f"v{x}", f"v{VCS}"], [f"v{x}"])
        valu(f"v_exp_f32 v{x}, v{x}", [f"v{x}"], [f"v{x}"], "trans", cost=2)
        if i == 0: valu(f"v_mul_f32 v{NUM}, v{x}, v{s}", [f"v{x}", f"v{s}"], [f"v{NUM}"])
        else: valu(f"v_fmac_f32 v{NUM}, v{x}, v{s}", [f"v{x}", f"v{s}", f"v{NUM}"], [f"v{NUM}"])
        if i == 1: add(DEN, ES[0][0], x)
        elif i > 1: add(DEN, DEN, x)
    swap(32, NUM, DEN)
    o1 = len(ops)
    if EPB == 1: mov(TC, TB); mov(TB, TA); add(TA, NUM, DEN)
    elif odd: add(TB, NUM, DEN)
    else: mov(TC, TA); add(TA, NUM, DEN)
    for o in ops[o1:]: o.rot = True
def salu(text, R, W): return valu(text, R, W, "salu")
BASE = [("ror", t) for t in range(1, 8)] + [("star", 0)] + [("k10", k) for k in range(3)] + [("star", c) for c in range(1, 10)]
def steps_of(el):
    if EPB == 1: return [("ror8", 8)] + BASE
    return BASE if el % 2 == 0 else [("mrg", 8)] + BASE
def fbuf(steps, si):
    off = len(steps) - 20
    return VZ if si == 0 else F[(si - off) % 2]
def do_form(steps, si, t0, t1):
    kind, a = steps[si]; fb = fbuf(steps, si)
    if kind == "star": form(fb, VY, f"row_newbcast:{POS[a]}", VX, t0, t1)
    elif kind == "k10": form(fb, VY, K10[a][0], VZ, t0, t1)
    elif kind == "ror8": form(fb, VX, "row_shl:8", VX, t0, t1, " bound_ctrl:0")
    else: form(fb, VX, f"row_ror:{a}", VX, t0, t1)
YT0, YT1, ZT0, ZT1 = [float(x) for x in opts.get("yz", "3,5.5,5.3,7.3").split(",")]
SM0, SM1, SM2 = [float(x) for x in opts.get("sm", "0.3,1.5,3.6").split(",")]
def um_slots(b0, b1):
    return [(int(b0 + (b1 - b0) * (j + 0.5) / 8), int(((b0 + (b1 - b0) * (j + 0.5) / 8) % 1) * 8)) for j in range(8)]
UMP = {"y": um_slots(YT0 + 0.3, YT1 + 0.3), "z": um_slots(ZT0, ZT1 - 0.4), "x": um_slots(float(opts.get("x0", 18.5)), float(opts.get("x1", 19.5)))}
def nm_of(steps):
    off = len(steps) - 20; r = []
    for si in range(len(steps)):
        n = 36 + (1 if si < off or (si - off) % 4 == 0 else 0)
        n += sum(1 for v in UM for (bs, t) in UMP[v] if bs == si - off)
        r.append(n)
    return r
NEL = 5 * EPB; CUT = []; STB = []
d9c = [0]
pend_softmax = None
for el in range(NEL):
    it = el // EPB; nit = (el + 1) // EPB
    steps = steps_of(el); nsteps = steps_of(el + 1); N = len(steps); off = N - 20
    IT[0] = it; B0 = MC[0]
    if el % EPB == 0: CUT.append(B0); d9c[0] = 0
    ST = [0]
    for m in nm_of(steps): ST.append(ST[-1] + m)
    if it == 2: STB += [B0 - CUT[2] + x for x in ST[:-1]]
    def S(x, B0=B0, ST=ST, off=off, N=N):
        x += off; i = int(math.floor(x))
        return B0 + ST[i] + ((x - i) * (ST[i + 1] - ST[i]) if i < N else 0)
    tiles = []
    o1 = len(ops)
    at(B0 + 1, LSP); ly = view_load(VY + 16, IDX + 1); lz = view_load(VZ + 16, IDX + 2)
    IT[0] = nit
    at(S(float(opts.get('ti', 7.5))), LSP)
    li = [valu(f"buffer_load_dword v{IDX+k}, v{[OX,OY,OZ][k]}, s[{S_SRD}:{S_SRD+3}], s{S_IT} offen offset:{(64 if k else 0) + 104 * (el % EPB)}", [f"v{[OX,OY,OZ][k]}", f"s{S_IT}"], [f"v{IDX+k}"], "vmem") for k in range(3)]
    if el % EPB == EPB - 1:
        salu(f"s_addk_i32 s{S_IT}, {104 * EPB}", [f"s{S_IT}"], [f"s{S_IT}", "scc"]); salu(f"s_cmp_lt_u32 s{S_IT}, {104 * (int(opts.get('iters', 4)) + 1)}", [f"s{S_IT}"], ["scc"])
    for o in ops[o1:]: o.nb = o.prio - 1
    IT[0] = it
    if el == 0: do_form(steps, 0, -40, 0) if steps[0][0] != "mrg" else None
    extra = {}
    def sched_unpack(v, V, raw, loads, t0, t1, itv, pre=None, post=None):
        if v in UM:
            for j, (bs, t) in enumerate(UMP[v]):
                def cb(j=j):
                    IT[0] = itv
                    if j == 0: at(MC[0] - 3, 0); wait_for(vr(raw,16), loads(), LAT_FAR)
                    if pre and j % 2 == 0: pre(j // 2)
                    mm(V + 4 * j, ASEL + 4 * (j % 2), raw + 4 * (j // 2), "0", [])
                    if post and j % 2 == 1: post(j // 2)
                extra.setdefault((bs + off, t), []).append(cb)
        else:
            def now():
                IT[0] = itv
                at(t0, 0); wait_for(vr(raw,16), loads(), LAT_FAR)
                for q in range(4):
                    if pre: pre(q)
                    at(t0 + (t1 - t0) * q / 4, (t1 - t0) / 32); unpack_chunk(V, raw, q)
                    if post: post(q)
            return now
    ny = sched_unpack("y", VY, VY + 16, lambda ly=ly: ly, S(YT0), S(YT1), it)
    nz = sched_unpack("z", VZ, VZ + 16, lambda lz=lz: lz, S(ZT0), S(ZT1), it)
    lxh = []
    nk, na = nsteps[0]; nfb = fbuf(nsteps, 0)
    XA, XB = S(float(opts.get("x0", 18.5))), S(float(opts.get("x1", 19.5)))
    def xpre(q):
        if nk != "mrg": return
        at(XA + (XB - XA) * q / 4 - 8, 0.7)
        for i in range(8 * q, 8 * q + 8):
            d = VY + i % 16
            valu(f"v_mul_f32_dpp v{d}, v{VX+i}, v{VX+i} row_shl:8 {FULL} bound_ctrl:0", [f"v{VX+i}"], [f"v{d}"], "dpp")
    def xpost(q, S=S):
        ta, tb = S(19.2), S(20) - 2.5
        at(ta + (tb - ta) * q / 4, (tb - ta) / 48)
        for i in range(8 * q, 8 * q + 8):
            if nk == "mrg":
                d = VY + i % 16
                valu(f"v_mul_f32_dpp v{d}, v{VX+i}, v{VX+i} row_shr:8 row_mask:0xf bank_mask:0xc", [f"v{VX+i}", f"v{d}"], [f"v{d}"], "dpp")
            else:
                d = TMP + i % 8
                ctl = f"row_shl:8 {FULL} bound_ctrl:0" if nk == "ror8" else f"row_ror:{na} {FULL}"
                valu(f"v_mul_f32_dpp v{d}, v{VX+i}, v{VX+i} {ctl}", [f"v{VX+i}"], [f"v{d}"], "dpp")
            if i % 2: valu(f"v_cvt_pk_bf16_f32 v{nfb+i//2}, v{d-1}, v{d}", [f"v{d-1}", f"v{d}"], [f"v{nfb+i//2}"])
    nx = sched_unpack("x", VX, VZ + 16, lambda lxh=lxh: lxh, XA, XB, nit, xpre, xpost)
    for si in range(N):
        kind, a = steps[si]; bs = si - off
        if bs == 6 and ny: ny(); IT[0] = it
        if bs == 7 and nz: nz(); IT[0] = it
        if si + 1 < N: do_form(steps, si + 1, S(bs), S(bs + 1))
        if bs == 9:
            IT[0] = nit
            at(S(float(opts.get('tx', 11.2))), 2.0); wait_for(vr(IDX,3), li, LAT_NEAR)
            for k in range(3): valu(f"v_lshl_add_u32 v{IDX+k}, v{IDX+k}, 8, v{GOFF}", [f"v{IDX+k}", f"v{GOFF}"], [f"v{IDX+k}"])
            TT[1] = LSP; o2 = len(ops)
            lxh += view_load(VZ + 16, IDX)
            for o in ops[o2:]: o.nb = o.prio - 1
            IT[0] = it
        if bs == 19 and nx: nx(); IT[0] = it
        fb = fbuf(steps, si)
        ex = {t: extra[(si, t)] for t in range(8) if (si, t) in extra}
        if bs < 0:
            d9 = D9 + 4 * (d9c[0] % ND9); d9c[0] += 1
            def fin(S=S, d9=d9, kind=kind, ps=pend_softmax):
                at(MC[0] + 4 if kind == "mrg" else S(SM1 + (SM2 - SM1) / 6 - 0.5), 2.0)
                add(d9, d9, d9 + 1)
                valu(f"v_cndmask_b32 v{EM}, v{NEGINF}, v{d9}, s[{S_MA}:{S_MA+1}]", [f"v{NEGINF}", f"v{d9}"], [f"v{EM}"])
                if kind == "mrg": valu(f"v_cndmask_b32 v{EMB}, v{NEGINF}, v{d9}, s[{S_MB}:{S_MB+1}]", [f"v{NEGINF}", f"v{d9}"], [f"v{EMB}"])
                add(SM, d9 + 2, d9 + 3)
                if kind == "mrg": ps(S(SM0 + 0.4), S(SM1 + 0.4), S(SM2 + 0.4))
            step_mm(fb, d9, 0, 0, fin, ex)
        else:
            var = bs % 4
            if var == 0: d9 = D9 + 4 * (d9c[0] % ND9); d9c[0] += 1
            fin = None
            if var == 3:
                de = ES + 2 * (bs // 4)
                tiles.append((de, de + 1))
                def fin(d9=d9, de=de, last=(bs == 19), tiles=tiles, el=el):
                    at(MC[0] + 4, 3.0)
                    add(de, d9, d9 + 1); add(de + 1, d9 + 2, d9 + 3)
                    if last and (EPB == 1 or el % 2 == 1):
                        b1 = MC[0] - 9
                        softmax([(EM if EPB == 1 else EMB, SM)] + tiles, True, b1 + 37 * SM0 + 9, b1 + 37 * SM1, b1 + 37 * SM2)
            step_mm(fb, d9, var, (MASKC if bs == 8 else 0) if var == 0 else None, fin, ex)
    pend_softmax = lambda t0, t1, t2, tiles=tiles: softmax(tiles + [(EM, SM)], False, t0, t1, t2)
for cb in deferred: cb()
ST = STB
out, st = schedule(ops, look=LOOK, late=float(opts.get('late', 4)))
bad = verify(out)
assert bad == 0
lines = finalize(out)
cuts = [i for i, o in enumerate(out) if o.kind == "mfma" and o.g in CUT]
s1 = lines[cuts[2]:cuts[3]]; s2 = lines[cuts[3]:cuts[4]]
if s1 != s2:
    for i, (a, b) in enumerate(zip(s1, s2)):
        if a != b: print("diff at", i, len(s1), len(s2), s1[i-3:i+3], s2[i-3:i+3], file=sys.stderr); break
    raise SystemExit("body not periodic")
body = s1; bops = out[cuts[2]:cuts[3]]
pre_ops = [o for o in out[:cuts[2]] if o.kind != "nop" and o.it >= 2]
post_ops = [o for o in bops if o.kind != "nop" and o.it == 1]
assert sum(1 for o in pre_ops if o.kind == 'vmem') == 7 and sum(1 for o in pre_ops if o.kind == 'salu') == 2
nm = sum(1 for o in bops if o.kind == "mfma"); nf = sum(o.cost for o in bops if o.kind not in ("mfma", "nop"))
print(st, "body len", len(body), "est cycles/iter", est_cycles(bops), "issue", sum(4 * (4 - o.free) for o in bops if o.kind == "mfma") + nf * 4, "pipe", nm * 16, "pre", len(pre_ops), "post", len(post_ops), "nops in body", sum(1 for o in bops if o.kind == "nop"), file=sys.stderr)
if int(opts.get("prof", 0)):
    seg = []; cur_ = []; nm_ = 0
    for o in bops:
        if o.kind == "mfma":
            if nm_ in ST and cur_: seg.append(cur_); cur_ = []
            nm_ += 1
        cur_.append(o)
    seg.append(cur_)
    from collections import Counter
    for i, sg in enumerate(seg): print(i, est_cycles(sg + [sg[0]]) - 8, dict(Counter(o.kind for o in sg)), file=sys.stderr)
e("s_cmp_ge_u32 s2, 256"); e("s_cbranch_scc1 L_done")
stamp()
e("s_load_dwordx4 s[4:7], s[0:1], 0"); e("s_load_dwordx4 s[8:11], s[0:1], 32")
e("s_load_dwordx4 s[12:15], s[0:1], 48"); e("s_load_dwordx2 s[16:17], s[0:1], 64")
T = VY
vN, vG, vL, vW0, vW1, vWN, vPF, vSM, vT0, vT1, vT2, vWV, vTR, vNA = T, T+1, T+2, T+3, T+4, T+5, T+6, T+7, T+8, T+9, T+10, T+11, T+12, T+20
vHA = VY + 24; vBA = VY + 28
vm = []; dsq = []
def vmem(s, tag): e(s); vm.append(tag)
def vwait(tag):
    last = max(i for i, t in enumerate(vm) if t == tag)
    e(f"s_waitcnt vmcnt({len(vm) - 1 - last})")
def ds(s, tag): e(s); dsq.append(tag)
def dwait(tag):
    last = max(i for i, t in enumerate(dsq) if t == tag)
    e(f"s_waitcnt lgkmcnt({min(15, len(dsq) - 1 - last)})")
def pf_addr():
    e("s_getpc_b64 s[32:33]")
    L.append("L_pfbase:")
    e(f"v_lshlrev_b32 v{vPF}, 7, v0")
    e(f"v_min_u32 v{vPF}, L_end-L_pfbase-4, v{vPF}")
def pf_load():
    vmem(f"global_load_dword v{PFR}, v{vPF}, s[32:33]", "pf")
    if EPB == 2:
        e(f"v_add_u32 v{vPF}, 0x8000, v{vPF}"); e(f"v_min_u32 v{vPF}, L_end-L_pfbase-4, v{vPF}")
        vmem(f"global_load_dword v{PFR+1}, v{vPF}, s[32:33]", "pf")
EARLY = int(opts.get("early", 1))
if PF == 3: pf_addr(); pf_load()
e(f"v_lshrrev_b32 v{vWV}, 6, v0")
e(f"v_and_b32 v{vN}, 15, v0")
e(f"v_readfirstlane_b32 s{S_WAVE}, v{vWV}")
if PF == 5:
    NL = int(opts.get("nl", 6)); CM = int(opts.get("cm", 15))
    e("s_getpc_b64 s[32:33]")
    L.append("L_pfbase:")
    e(f"s_bfe_u32 s3, s2, {3 | (CM.bit_length() << 16)}"); e("s_lshl_b32 s3, s3, 2"); e(f"s_add_u32 s3, s3, s{S_WAVE}"); e(f"s_mul_i32 s3, s3, {NL * 128}")
    e(f"v_min_u32 v{vPF}, {NL - 1}, v{vN}"); e(f"v_lshl_add_u32 v{vPF}, v{vPF}, 7, s3"); e(f"v_min_u32 v{vPF}, L_end-L_pfbase-4, v{vPF}")
    vmem(f"global_load_dword v{PFR}, v{vPF}, s[32:33]", "pf")
e(f"s_lshl_b32 s3, s2, 2"); e(f"s_add_u32 s3, s3, s{S_WAVE}")
e(f"s_mul_i32 s19, s3, 416")
e(f"v_lshl_add_u32 v{OX}, v{vN}, 2, s19")
e(f"v_bfe_u32 v{vG}, v0, 4, 2")
e(f"s_lshl_b32 s{S_T}, s{S_WAVE}, 13")
e(f"v_lshrrev_b32 v{vT2}, 1, v{vN}")
e(f"v_xor_b32 v{vT0}, v{vT2}, v{vG}")
e(f"v_lshlrev_b32 v{vT0}, 5, v{vT0}")
e(f"v_and_b32 v{vT1}, 1, v0")
e(f"v_lshl_add_u32 v{vT0}, v{vT1}, 4, v{vT0}")
e(f"v_lshl_add_u32 v{vT0}, v{vG}, 8, v{vT0}")
e(f"v_add_u32 v{vW0}, s{S_T}, v{vT0}")
e(f"v_xor_b32 v{vW1}, 0x80, v{vW0}")
e(f"s_add_u32 s{S_T+1}, s{S_T}, 0x1000")
e(f"s_mov_b32 m0, s{S_T}")
def part2():
    e(f"v_lshlrev_b32 v{GOFF}, 4, v{vG}")
    e(f"v_and_b32 v{vL}, 63, v0"); e(f"v_lshlrev_b32 v{vL}, 2, v{vL}")
    e(f"v_lshlrev_b32 v{vSM}, 2, v{vT1}")
    e(f"v_lshl_add_u32 v{vT0}, v{vT2}, 5, v{vSM}"); e(f"v_lshl_add_u32 v{vT0}, v{vG}, 3, v{vT0}")
    e(f"v_cmp_eq_u32 vcc, 0, v{vWV}")
    e(f"v_lshlrev_b32 v{vT1}, 5, v{vT1}"); e(f"v_and_b32 v{vT2}, 3, v{vT2}")
    e(f"v_cndmask_b32 v{vSM}, v{vL}, v{vT0}, vcc")
    e(f"v_lshl_add_u32 v{vT1}, v{vT2}, 3, v{vT1}"); e(f"v_bfe_u32 v{vT2}, v0, 3, 2"); e(f"v_lshl_add_u32 v{vT1}, v{vT2}, 6, v{vT1}")
    e(f"v_bfe_u32 v{vT2}, v0, 5, 1"); e(f"v_lshlrev_b32 v{vT2}, 2, v{vT2}")
    e(f"v_cmp_eq_u32 vcc, 3, v{vWV}")
    e(f"v_xor_b32 v{vT0}, 4, v{vT2}"); e(f"v_add_u32 v{vT1}, v{vT1}, v{vT0}")
    e(f"v_cndmask_b32 v{vSM}, v{vSM}, v{vT1}, vcc")
    e(f"v_cmp_eq_u32 vcc, 2, v{vWV}")
    e(f"v_and_b32 v{vT0}, 31, v0"); e(f"v_lshl_add_u32 v{vT0}, v{vT0}, 3, v{vT2}")
    e(f"v_cndmask_b32 v{vSM}, v{vSM}, v{vT0}, vcc")
    e(f"s_mov_b32 s{S_T+2}, {O_P}"); e(f"s_cmp_eq_u32 s{S_WAVE}, 1"); e(f"s_cselect_b32 s{S_T+2}, {O_H}, s{S_T+2}")
    e(f"s_cmp_eq_u32 s{S_WAVE}, 3"); e(f"s_cselect_b32 s{S_T+2}, {O_HH}, s{S_T+2}")
    e(f"s_cmp_eq_u32 s{S_WAVE}, 0"); e(f"s_cselect_b32 s{S_T+2}, {O_B}, s{S_T+2}")
def part3():
    def nib(tab): return sum(v << (4 * i) for i, v in enumerate(tab))
    e(f"s_mov_b32 s20, 0x{nib(YT) & 0xffffffff:08x}"); e(f"s_mov_b32 s21, 0x{nib(YT) >> 32:08x}")
    e(f"v_lshlrev_b32 v{OZ}, 2, v{vN}")
    e(f"v_lshrrev_b64 v[{vT0}:{vT0+1}], v{OZ}, s[20:21]")
    e(f"s_mov_b32 s22, 0x{nib(ZT) & 0xffffffff:08x}"); e(f"s_mov_b32 s23, 0x{nib(ZT) >> 32:08x}")
    e(f"v_and_b32 v{OY}, 15, v{vT0}")
    e(f"v_lshrrev_b64 v[{vT0}:{vT0+1}], v{OZ}, s[22:23]")
    e(f"v_and_b32 v{OZ}, 15, v{vT0}")
    e(f"v_lshl_add_u32 v{OY}, v{OY}, 2, s19")
    e(f"v_lshl_add_u32 v{OZ}, v{OZ}, 2, s19")
if PF in (1, 2): pf_addr()
if not EARLY: part2()
e("s_waitcnt lgkmcnt(0)")
stamp()
vmem(f"global_load_dword v{IDX}, v{OX}, s[{S_IDX}:{S_IDX+1}]", "idx0")
for half in range(2):
    for q in range(4):
        vmem(f"global_load_lds_dwordx4 v{vW1 if q & 2 else vW0}, s[{S_W}:{S_W+1}] offset:{1024*q}", "wdma")
    if half == 0:
        e(f"v_add_u32 v{vW0}, 0x1000, v{vW0}"); e(f"s_mov_b32 m0, s{S_T+1}"); e(f"v_add_u32 v{vW1}, 0x1000, v{vW1}")
if EARLY: part2()
e(f"s_cselect_b64 s[34:35], s[{S_B}:{S_B+1}], s[{S_H}:{S_H+1}]")
e(f"s_cmp_eq_u32 s{S_WAVE}, 2"); e(f"s_mov_b32 m0, s{S_T+2}"); e(f"s_cselect_b64 s[34:35], s[{S_P}:{S_P+1}], s[34:35]")
vmem(f"global_load_lds_dword v{vSM}, s[34:35]", "wdma")
part3()
TLB = int(opts.get("tlb", 0))
if TLB:
    e(f"v_min_u32 v{vT0}, {25600000 // (1 << TLB)}, v{vN if TLB >= 21 else 0}"); e(f"v_lshlrev_b32 v{vT0}, {TLB}, v{vT0}")
    vmem(f"global_load_dword v{PFR+1}, v{vT0}, s[{S_TAB}:{S_TAB+1}]", "pf")
if PF == 1: vmem(f"global_load_dword v{PFR}, v{vPF}, s[32:33]", "pf")
stamp()
vwait("idx0"); stamp()
e(f"v_lshl_add_u32 v{IDX}, v{IDX}, 8, v{GOFF}")
for q in range(4): vmem(f"global_load_dwordx4 {rng(VZ+16+4*q,4)}, v{IDX}, s[{S_TAB}:{S_TAB+1}] offset:{64*q}", "view0")
if PF == 2: pf_load()
for k in range(1, 3): vmem(f"global_load_dword v{IDX+k}, v{[OX,OY,OZ][k]}, s[{S_IDX}:{S_IDX+1}] offset:64", "idx1")
if PF == 4: pf_addr(); pf_load()
for r in range(4): e(f"v_mov_b32 v{MASKC+r}, 0")
e(f"v_lshrrev_b32 v{vL}, 1, v{vL}")
ds(f"ds_write_b16 v{vL}, v{MASKC+1} offset:{O_Z}", "z")
for r in range(4): e(f"v_accvgpr_write_b32 a{AZ+r}, 0")
e(f"v_and_b32 v{SIX}, 1, v{vN}"); e(f"v_mul_u32_u24 v{SIX}, 0xaaaa, v{SIX}"); e(f"v_add_u32 v{SIX}, 0x4444, v{SIX}")
if UM:
    e(f"v_lshrrev_b32 v{vT0}, 2, v{vN}"); e(f"v_cmp_eq_u32 vcc, v{vT0}, v{vG}")
    e(f"v_and_b32 v{vT0}, 1, v{vN}"); e(f"v_lshlrev_b32 v{vT0}, 4, v{vT0}"); e(f"v_mov_b32 v{vT1}, 0x3f80"); e(f"v_lshlrev_b32 v{vT1}, v{vT0}, v{vT1}")
    e(f"v_cndmask_b32 v{vT1}, 0, v{vT1}, vcc")
    e(f"v_and_b32 v{vT0}, 2, v{vN}"); e(f"v_cmp_eq_u32 vcc, 0, v{vT0}")
    for r in (2, 3, 4, 5): e(f"v_accvgpr_write_b32 a{ASEL+r}, 0")
    e(f"v_cndmask_b32 v{vT0}, 0, v{vT1}, vcc"); e(f"v_sub_u32 v{vT1}, v{vT1}, v{vT0}")
    e(f"v_accvgpr_write_b32 a{ASEL}, v{vT0}"); e(f"v_accvgpr_write_b32 a{ASEL+1}, v{vT1}")
    e(f"v_accvgpr_write_b32 a{ASEL+6}, v{vT0}"); e(f"v_accvgpr_write_b32 a{ASEL+7}, v{vT1}")
e(f"v_mov_b32 v{NEGINF}, 0xff800000")
e(f"v_mov_b32 v{VCS}, {f32(CSC)}")
e(f"s_mov_b32 s{S_MA}, 0x{inval & 0xffffffff:08x}"); e(f"s_mov_b32 s{S_MA+1}, 0x{inval >> 32:08x}")
e(f"v_cndmask_b32 v{MASKC}, v{MASKC}, v{NEGINF}, s[{S_MA}:{S_MA+1}]")
e(f"s_mov_b32 s{S_MA}, 0xff"); e(f"s_mov_b32 s{S_MA+1}, 0"); e(f"s_movk_i32 s{S_IT}, 104")
e(f"s_mov_b32 s{S_OM}, 0x00010001"); e(f"s_mov_b32 s{S_OM+1}, 0x00010001")
e(f"s_mov_b32 s{S_SRD}, s{S_IDX}"); e(f"s_mov_b32 s{S_SRD+1}, s{S_IDX+1}"); e(f"s_mov_b32 s{S_SRD+2}, {4096*104}"); e(f"s_mov_b32 s{S_SRD+3}, 0x00020000")
e(f"s_lshl_b32 s3, s3, 3"); e(f"v_lshl_add_u32 v{OOFF}, v{vG}, 1, s3")
e(f"v_lshrrev_b32 v{vT0}, 3, v{vN}"); e(f"v_and_b32 v{vT1}, 3, v{vN}"); e(f"v_lshl_or_b32 v{vT0}, v{vT0}, 2, v{vT1}")
e(f"v_lshrrev_b32 v{vT1}, 1, v{vG}"); e(f"v_xor_b32 v{vT0}, v{vT0}, v{vT1}"); e(f"v_lshlrev_b32 v{vT0}, 5, v{vT0}")
e(f"v_and_b32 v{vT1}, 1, v{vG}"); e(f"v_lshl_add_u32 v{vT0}, v{vT1}, 4, v{vT0}"); e(f"v_lshl_add_u32 v{vT0}, v{vN}, 8, v{vT0}")
e(f"v_add_u32 v{vWN}, s{S_T}, v{vT0}")
vWNk = [vWN, vW0, vW1, vSM]
for ks in range(1, 4): e(f"v_xor_b32 v{vWNk[ks]}, {ks << 6}, v{vWN}")
e(f"v_lshrrev_b32 v{vT0}, 2, v{vN}")
e(f"v_lshl_or_b32 v{vT1}, v{vT1}, 2, v{vT0}")
e(f"v_lshl_add_u32 v{vT0}, v{vG}, 3, v{vT0}"); e(f"v_lshlrev_b32 v{vT0}, 8, v{vT0}")
e(f"v_lshl_add_u32 v{vT0}, v{vT1}, 5, v{vT0}")
e(f"v_and_b32 v{vT1}, 3, v{vN}"); e(f"v_lshl_add_u32 v{vTR}, v{vT1}, 3, v{vT0}")
for t in range(1, 8): e(f"v_xor_b32 v{vTR+t}, {t << 5}, v{vTR}")
for var in range(4):
    e(f"v_subrev_u32 v{vT0}, {4*var}, v{vN}"); e(f"v_min_u32 v{vNA+var}, 4, v{vT0}")
    e(f"v_lshl_add_u32 v{vNA+var}, v{vNA+var}, 7, v{GOFF}")
    e(f"v_min_u32 v{vT0}, 2, v{vT0}"); e(f"v_sub_u32 v{vT0}, 2, v{vT0}"); e(f"v_lshl_add_u32 v{vHA+var}, v{vT0}, 7, v{GOFF}")
e(f"v_lshlrev_b32 v{vBA}, 6, v{vG}")
e(f"s_lshl_b32 s{S_T+1}, s{S_WAVE}, 5"); e(f"v_and_b32 v{vT0}, 12, v{vN}"); e(f"v_add_u32 v{vT2}, s{S_T+1}, v{vT0}")
e(f"v_bfe_u32 v{vT0}, v{vN}, 1, 1"); e(f"v_lshl_add_u32 v{vT2}, v{vT0}, 7, v{vT2}")
e(f"v_and_b32 v{vT0}, 1, v{vN}"); e(f"v_lshl_add_u32 v{vT2}, v{vT0}, 1, v{vT2}")
e(f"s_mov_b32 s{S_MB}, 0xff00"); e(f"s_mov_b32 s{S_MB+1}, 0")
vwait("wdma"); e("s_waitcnt lgkmcnt(0)")
stamp(); e("s_barrier"); stamp()
WN = F[0]; HB = ACC; WHA = RF
trs = [f"ds_read_b64_tr_b16 {rng(AW+(t*4+ks)*4+2*u,2,'a')}, v{vTR+t} offset:{8192*ks+1024*u}" for t in range(8) for ks in range(4) for u in range(2)]
def tr(n):
    for _ in range(n):
        if trs: ds(trs.pop(0), "tr")
for ks in range(4): ds(f"ds_read_b128 {rng(HB+4*ks,4)}, v{GOFF} offset:{O_H+64*ks}", "wn")
for uu in range(2):
    for ks in range(4): ds(f"ds_read_b128 {rng(WN+16*uu+4*ks,4)}, v{vWNk[ks]} offset:{4096*uu}", "wn")
for k in range(4): ds(f"ds_read_b128 {rng(BIAS+16+4*k,4)}, v{vBA} offset:{O_B+16*k}", "bb")
tr(6)
dwait("wn")
for ks in range(4):
    for uu in range(2):
        c = "0" if ks == 0 else rng(WHA+4*uu, 4)
        e(f"v_mfma_f32_16x16x32_bf16 {rng(WHA+4*uu,4)}, {rng(HB+4*ks,4)}, {rng(WN+16*uu+4*ks,4)}, {c}")
        tr(1)
tr(8)
for uu in range(2):
    a = WHA + 4 * uu
    e(f"v_cvt_pk_bf16_f32 v{a+1}, v{a}, v{a}")
    ds(f"ds_write_b16 v{vT2}, v{a+1} offset:{O_HI+16*uu}", "whw")
dwait("bb")
bu = []
for q in range(16):
    s_ = BIAS + 16 + q
    bu += [f"v_lshlrev_b32 v{BIAS+2*q}, 16, v{s_}", f"v_and_b32 v{BIAS+2*q+1}, 0xffff0000, v{s_}"]
while trs:
    tr(1)
    if bu: e(bu.pop(0))
assert not bu
for var in range(4):
    for u in range(2): ds(f"ds_read_b128 {rng(AH+8*var+4*u,4,'a')}, v{vHA+var} offset:{O_Z+64*u}", "ah")
dwait("whw")
e("s_barrier")
stamp()
vwait("idx1")
stamp()
for k in range(1, 3): e(f"v_lshl_add_u32 v{IDX+k}, v{IDX+k}, 8, v{GOFF}")
n9 = [f"ds_read_b128 {rng(AN9+8*var+4*u,4,'a')}, v{vNA+var} offset:{O_HI+64*u}" for var in range(4) for u in range(2)]
pre = [o for o in pre_ops if (o.kind in VALUK or o.kind == "mfma") and not o.text.startswith("v_lshl_add_u32")]
pre2 = []
for i, o in enumerate(sorted(pre, key=lambda o: o.seq)):
    if o.kind == "mfma": o2 = mfma(o.text, o.W, [r for r in o.R if r in o.AB], [], o.C); pre2.append(o2)
    else: pre2.append(Op(o.text, o.kind, o.R, o.W, prio=i * 0.01))
po, _ = schedule(pre2); assert verify(po) == 0
for i, s_ in enumerate(finalize(po)):
    e(s_)
    if i % 3 == 0 and n9: ds(n9.pop(0), "n9")
assert not n9
e("s_waitcnt lgkmcnt(0)")
e("s_nop 7")
if DBG == 4 and int(opts["sa"]) < 0:
    e("s_load_dwordx2 s[98:99], s[0:1], 72"); e("s_waitcnt lgkmcnt(0)"); e("s_not_b32 s34, s40"); e(f"v_mov_b32 v{PFR}, s34"); e(f"v_mov_b32 v{PFR+1}, 0")
    e("s_waitcnt vmcnt(0)"); e("s_mov_b64 exec, 1"); e(f"global_atomic_umax v{PFR+1}, v{PFR}, s[98:99]"); e("s_mov_b64 exec, -1")
if DBG: e("s_mov_b32 s34, 0")
L.append(".p2align 6"); L.append("L_loop:")
if DBG and not STEPST: e("s_mov_b32 m0, s34"); e("s_memrealtime s[32:33]"); e("s_waitcnt lgkmcnt(0)"); e(f"s_movreld_b32 s{40+2*NST[0]}, s32"); e("s_add_u32 s34, s34, 2"); NST[0] += 4
nm_ = 0
for s in body:
    if s.startswith("v_mfma") or s.startswith("v_smfmac"):
        if STEPST and nm_ in ST: stamp(True)
        nm_ += 1
    e(s)
if STEPST: stamp(True)
e("s_cbranch_scc1 L_loop")
stamp()
e("s_nop 7")
ops = []; IT[0] = 0; at(0, 1)
for o in sorted(post_ops, key=lambda o: o.seq):
    if getattr(o, "rot", False): continue
    if o.kind == "mfma":
        o2 = mfma(o.text, o.W, [r for r in o.R if r in o.AB], [], o.C); o2.free = o.free; push(o2)
    else: valu(o.text, o.R, o.W, o.kind, cost=o.cost)
add(NUM, NUM, DEN)
swap(16, TC, TB); add(TC, TC, TB); swap(16, TA, NUM); add(TA, TA, NUM)
for c in (8, 4, 2, 1):
    for r in (TC, TA): valu(f"v_add_f32_dpp v{r}, v{r}, v{r} row_ror:{c} {FULL}", [f"v{r}"], [f"v{r}"], "dpp")
swap(32, TC, TA)
valu(f"v_rcp_f32 v{TA}, v{TA}", [f"v{TA}"], [f"v{TA}"], "trans", cost=2)
valu(f"v_mul_f32 v{TC}, v{TC}, v{TA}", [f"v{TC}", f"v{TA}"], [f"v{TC}"])
valu(f"v_cvt_pk_bf16_f32 v{TC}, v{TC}, v{TC}", [f"v{TC}"], [f"v{TC}"])
to, _ = schedule(ops); assert verify(to) == 0
print("tail est", est_cycles(to), "pre est", est_cycles(po), file=sys.stderr)
for s in finalize(to): e(s)
stamp()
if DBG == 4:
    a_, b_, K_ = int(opts["sa"]), int(opts["sb"]), int(opts["sk"])
    if b_ < 0: b_ += NST[0]
    e("s_waitcnt lgkmcnt(0)")
    if a_ >= 0:
        e(f"s_sub_u32 s34, s{40+2*b_}, s{40+2*a_}")
    else:
        e("v_mov_b32 v1, 0"); e("global_load_dword v2, v1, s[98:99] sc1"); e("s_waitcnt vmcnt(0)"); e("v_readfirstlane_b32 s34, v2"); e("s_nop 3")
        e("s_not_b32 s34, s34"); e(f"s_sub_u32 s34, s{40+2*b_}, s34")
    e("s_min_u32 s34, s34, 10000"); e(f"s_mul_i32 s34, s34, {K_}"); e("s_min_u32 s34, s34, 20000")
    stamp(); e("s_waitcnt lgkmcnt(0)")
    L.append("L_spin:")
    e("s_memrealtime s[32:33]"); e("s_waitcnt lgkmcnt(0)")
    e(f"s_sub_u32 s35, s32, s{40+2*(NST[0]-1)}"); e("s_cmp_lt_u32 s35, s34"); e("s_cbranch_scc1 L_spin")
if DBG == 1:
    e("s_load_dwordx2 s[34:35], s[0:1], 80"); e("s_waitcnt lgkmcnt(0)")
    e("s_lshl_b32 s3, s3, 4"); e(f"v_mov_b32 v1, s3")
    for k in range(NST[0]):
        e(f"v_mov_b32 v2, s{40+2*k}"); e(f"global_store_dword v1, v2, s[34:35] offset:{4*k}")
    e(f"v_mov_b32 v2, {NST[0]}"); e(f"global_store_dword v1, v2, s[34:35] offset:124")
e(f"s_mov_b64 exec, s[{S_OM}:{S_OM+1}]")
e(f"global_store_short v{OOFF}, v{TC}, s[{S_OUT}:{S_OUT+1}]")
L.append("L_done:")
e("s_endpgm")
L.append("L_end:")
L += ['.section .rodata,"a"', ".p2align 6", ".amdhsa_kernel %s_kernel" % NAME,
      "  .amdhsa_next_free_vgpr 512", "  .amdhsa_next_free_sgpr %d" % (100 if DBG else 40), "  .amdhsa_accum_offset 256",
      "  .amdhsa_group_segment_fixed_size 0", "  .amdhsa_kernarg_size 88", "  .amdhsa_user_sgpr_count 2",
      "  .amdhsa_user_sgpr_kernarg_segment_ptr 1", "  .amdhsa_system_sgpr_workgroup_id_x 1",
      "  .amdhsa_float_denorm_mode_32 3",
      ".end_amdhsa_kernel"]
print("\n".join(L))
```

```python
import sys, math, struct
from sched import *
NAME = "standalone__factorization_afm__recsys"
opts = dict(z8="shl"); opts.update(dict(a.split("=") for a in sys.argv[1:] if "=" in a))
LAT_FAR = int(opts.get("latfar", 450)); LAT_NEAR = int(opts.get("latnear", 300))
DBG = int(opts.get("dbg", 0)); PF = int(opts.get("pf", 2))
TOUCH = int(opts.get('touch', 0))
LSP = float(opts.get('lsp', 9))
EPI = float(opts.get("epi", 3.1)); LOOK = int(opts.get("look", 30))
YT = [6,0,4,4,2,3,6,9,3,7,0,1,8,5,3,4]
ZT = [5,2,7,7,9,7,1,0,1,5,4,8,2,9,6,8]
K10 = [("", lambda n: n), ("quad_perm:[1,0,3,2]", lambda n: n ^ 1), ("quad_perm:[2,3,0,1]", lambda n: n ^ 2)]
seen = set(); inval = 0
for k, (_, pi) in enumerate(K10):
    for n in range(16):
        a, b = ZT[n], YT[pi(n)]; key = (min(a, b), max(a, b))
        if a == b or key in seen: inval |= 1 << (16 * k + n)
        else: seen.add(key)
assert len(seen) == 45
POS = [YT.index(c) for c in range(10)]
FULL = "row_mask:0xf bank_mask:0xf"
BIAS = 0; VX = 32; VY = 64; VZ = 96; F = [128, 144]; TMP = 160; ACC = 168; RF = 184; RF2 = 192; D9 = 200; ND9 = 3
MASKC = 212; ES = 216
EM = 226; EMB = 227; SM = 228
SIX = 232; NEGINF = 234; MX = 235; NUM = 236; DEN = 237; TA = 238; TB = 239; TC = 240
IDX = 245; OX = 248; OY = 249; OZ = 250; GOFF = 251; OOFF = 252; VCS = 253; PFR = 254
AW = 0; AN9 = 128; AH = 160; AZ = 192; ASEL = 196
EPB = int(opts.get("epb", 1)); UM = opts.get("um", "")
S_IDX = 4; S_TAB = 6; S_W = 8; S_B = 10; S_H = 12; S_P = 14; S_OUT = 16; S_WAVE = 18; S_MA = 20; S_MB = 40 if 0 else 28; S_MAX = 24; S_T = 26; S_OM = 30; S_IT = 22; S_INC = 23; S_SRD = 36
LN9 = 32768
O_HI = LN9; O_P = LN9 + 256; O_Z = LN9 + 512; O_HH = LN9 + 640; O_B = LN9 + 896; O_H = O_B + 256
CSC = 0.5 * math.log2(math.e)
def f32(x): return "0x%08x" % struct.unpack("<I", struct.pack("<f", x))[0]
L = []
def e(s): L.append("    " + s)
hdr = open("cdna_kernels/%s.s.ref" % NAME).read().split("\n")
for line in hdr:
    if line.startswith("; @launch"):
        L.append("; @launch grid=(256,1,1) block=(256,1,1) lds=34304"); break
    L.append(line)
L += ['.amdgcn_target "amdgcn-amd-amdhsa--gfx950"', ".text", ".globl %s_kernel" % NAME, ".p2align 8",
      ".type %s_kernel,@function" % NAME, "%s_kernel:" % NAME]
NST = [0]
STEPST = int(opts.get('stepst', 0))
def stamp(force=False):
    if DBG and (not STEPST or force): e(f"s_memrealtime s[{40+2*NST[0]}:{41+2*NST[0]}]"); NST[0] += 1
ops = []
TT = [0.0, 0.0]; IT = [0]; MC = [0]
def at(t, inc): TT[0] = t; TT[1] = inc
def push(o): o.it = IT[0]; ops.append(o); return o
def valu(text, R, W, kind="valu", **kw):
    if kind in ("perm", "vmem"): kw["cost"] = 2
    o = Op(text, kind, R, W, prio=round(TT[0] + 1e-4, 3), **kw); TT[0] += TT[1]; return push(o)
def view_load(raw, ireg):
    return [valu(f"global_load_dwordx4 {rng(raw+4*q,4)}, v{ireg}, s[{S_TAB}:{S_TAB+1}] offset:{64*q}", [f"v{ireg}"], vr(raw+4*q,4), "vmem") for q in range(4)]
def wait_for(regs, ls, lat):
    return push(Op("wait", "wait", R=regs, W=regs, covers=ls, lat=lat, prio=round(TT[0] + 1e-4, 3)))
def unpack(V, raw):
    for q in range(16):
        s = raw + q
        valu(f"v_lshlrev_b32 v{V+2*q}, 16, v{s}", [f"v{s}"], [f"v{V+2*q}"])
        valu(f"v_and_b32 v{V+2*q+1}, 0xffff0000, v{s}", [f"v{s}"], [f"v{V+2*q+1}"])
def form(fb, P, ctrl, Q, t0, t1, sfx=''):
    at(t0 + 0.2, (t1 - t0 - 2.5) / 48)
    for i in range(32):
        d = TMP + i % 8
        if ctrl: valu(f"v_mul_f32_dpp v{d}, v{P+i}, v{Q+i} {ctrl} {FULL}{sfx}", [f"v{P+i}", f"v{Q+i}"], [f"v{d}"], "dpp")
        else: valu(f"v_mul_f32 v{d}, v{P+i}, v{Q+i}", [f"v{P+i}", f"v{Q+i}"], [f"v{d}"])
        if i % 2: valu(f"v_cvt_pk_bf16_f32 v{fb+i//2}, v{d-1}, v{d}", [f"v{d-1}", f"v{d}"], [f"v{fb+i//2}"])
def unpack_chunk(V, raw, q):
    for j in range(4 * q, 4 * q + 4):
        s_ = raw + j
        valu(f"v_lshlrev_b32 v{V+2*j}, 16, v{s_}", [f"v{s_}"], [f"v{V+2*j}"])
        valu(f"v_and_b32 v{V+2*j+1}, 0xffff0000, v{s_}", [f"v{s_}"], [f"v{V+2*j+1}"])
def mm(D, A, B, ct, cr):
    MC[0] += 1
    push(mfma(f"v_mfma_f32_16x16x32_bf16 {rng(D,4)}, {rng(A,4,'a')}, {rng(B,4)}, {ct}", vr(D,4), vr(A,4,'a'), vr(B,4), cr))
deferred = []
def smf(D, A, B):
    MC[0] += 1
    o = mfma(f"v_smfmac_f32_16x16x64_bf16 {rng(D,4)}, {rng(A,4,'a')}, {rng(B,8)}, v{SIX}", vr(D,4), vr(A,4,'a') + [f"v{SIX}"], vr(B,8), vr(D,4)); o.free = 1
    push(o)
def step_mm(fb, d9, var, cinit, fin, extra):
    it0 = IT[0]
    for t in range(8):
        acc = ACC + 4 * (t % 4)
        for ks in range(4):
            c = BIAS + 4 * t if ks == 0 else acc
            mm(acc, AW + (t * 4 + ks) * 4, fb + 4 * ks, rng(c, 4), vr(c, 4))
        at(MC[0] - 1 + EPI, 1.0)
        rf = RF if t < 4 else RF2
        for c in range(2):
            d = rf + 2 * (t % 4) + c
            valu(f"v_cvt_pk_bf16_f32 v{d}, |v{acc+2*c}|, |v{acc+2*c+1}|", [f"v{acc+2*c}", f"v{acc+2*c+1}"], [f"v{d}"])
        if t == 1:
            for cb in deferred: cb()
            deferred.clear(); IT[0] = it0
        if t == 2 and cinit is not None:
            ct, cr = ("0", []) if cinit == 0 else (rng(cinit, 4), vr(cinit, 4))
            mm(d9, AZ, fb, ct, cr)
        if t == 3: smf(d9, AN9 + 8 * var, fb)
        if t == 5: smf(d9, AH + 8 * var, RF)
        if t == 6: smf(d9, AN9 + 8 * var + 4, fb + 8)
        for cb in extra.get(t, []): cb()
        IT[0] = it0
    def late():
        IT[0] = it0
        smf(d9, AH + 8 * var + 4, RF2)
        if fin: fin()
    deferred.append(late)
def swap(w, a, b): valu(f"v_permlane{w}_swap_b32 v{a}, v{b}", [f"v{a}", f"v{b}"], [f"v{a}", f"v{b}"], "perm")
def add(d, a, b): valu(f"v_add_f32 v{d}, v{a}, v{b}", [f"v{a}", f"v{b}"], [f"v{d}"])
def mov(d, a): valu(f"v_mov_b32 v{d}, v{a}", [f"v{a}"], [f"v{d}"])
def tred(r):
    swap(32, r, r+2); add(r, r, r+2); swap(32, r+1, r+3); add(r+1, r+1, r+3); swap(16, r, r+1); add(r, r, r+1)
def softmax(ES, odd, t0, t1, t2):
    E = [x[0] for x in ES]
    at(t0, (t1 - t0) / 11)
    valu(f"v_max3_f32 v{MX}, v{E[0]}, v{E[1]}, v{E[2]}", [f"v{x}" for x in E[:3]], [f"v{MX}"])
    valu(f"v_max3_f32 v{MX}, v{MX}, v{E[3]}, v{E[4]}", [f"v{MX}", f"v{E[3]}", f"v{E[4]}"], [f"v{MX}"])
    valu(f"v_max_f32 v{MX}, v{MX}, v{E[5]}", [f"v{MX}", f"v{E[5]}"], [f"v{MX}"])
    for c in ("row_ror:8 " + FULL, "row_ror:4 " + FULL, "row_ror:2 " + FULL, "row_ror:1 " + FULL, "row_bcast:15 row_mask:0xa bank_mask:0xf", "row_bcast:31 row_mask:0xc bank_mask:0xf"):
        valu(f"v_max_f32_dpp v{MX}, v{MX}, v{MX} {c}", [f"v{MX}"], [f"v{MX}"], "dpp")
    valu(f"v_mul_f32 v{MX}, v{VCS}, v{MX}", [f"v{MX}", f"v{VCS}"], [f"v{MX}"])
    valu(f"v_readlane_b32 s{S_MAX}, v{MX}, 63", [f"v{MX}"], [f"s{S_MAX}"], "readlane")
    at(t1, (t2 - t1) / 28)
    for i, (x, s) in enumerate(ES):
        valu(f"v_fma_f32 v{x}, v{x}, v{VCS}, -s{S_MAX}", [f"s{S_MAX}", f"v{x}", f"v{VCS}"], [f"v{x}"])
        valu(f"v_exp_f32 v{x}, v{x}", [f"v{x}"], [f"v{x}"], "trans", cost=2)
        if i == 0: valu(f"v_mul_f32 v{NUM}, v{x}, v{s}", [f"v{x}", f"v{s}"], [f"v{NUM}"])
        else: valu(f"v_fmac_f32 v{NUM}, v{x}, v{s}", [f"v{x}", f"v{s}", f"v{NUM}"], [f"v{NUM}"])
        if i == 1: add(DEN, ES[0][0], x)
        elif i > 1: add(DEN, DEN, x)
    swap(32, NUM, DEN)
    o1 = len(ops)
    if EPB == 1: mov(TC, TB); mov(TB, TA); add(TA, NUM, DEN)
    elif odd: add(TB, NUM, DEN)
    else: mov(TC, TA); add(TA, NUM, DEN)
    for o in ops[o1:]: o.rot = True
def salu(text, R, W): return valu(text, R, W, "salu")
BASE = [("ror", t) for t in range(1, 8)] + [("star", 0)] + [("k10", k) for k in range(3)] + [("star", c) for c in range(1, 10)]
def steps_of(el):
    if EPB == 1: return [("ror8", 8)] + BASE
    return BASE if el % 2 == 0 else [("mrg", 8)] + BASE
def fbuf(steps, si):
    off = len(steps) - 20
    return VZ if si == 0 else F[(si - off) % 2]
def do_form(steps, si, t0, t1):
    kind, a = steps[si]; fb = fbuf(steps, si)
    if kind == "star": form(fb, VY, f"row_newbcast:{POS[a]}", VX, t0, t1)
    elif kind == "k10": form(fb, VY, K10[a][0], VZ, t0, t1)
    elif kind == "ror8": form(fb, VX, "row_shl:8", VX, t0, t1, " bound_ctrl:0")
    else: form(fb, VX, f"row_ror:{a}", VX, t0, t1)
YT0, YT1, ZT0, ZT1 = [float(x) for x in opts.get("yz", "3,5.5,5.3,7.3").split(",")]
SM0, SM1, SM2 = [float(x) for x in opts.get("sm", "0.3,1.5,3.6").split(",")]
def um_slots(b0, b1):
    return [(int(b0 + (b1 - b0) * (j + 0.5) / 8), int(((b0 + (b1 - b0) * (j + 0.5) / 8) % 1) * 8)) for j in range(8)]
UMP = {"y": um_slots(YT0 + 0.3, YT1 + 0.3), "z": um_slots(ZT0, ZT1 - 0.4), "x": um_slots(float(opts.get("x0", 18.5)), float(opts.get("x1", 19.5)))}
def nm_of(steps):
    off = len(steps) - 20; r = []
    for si in range(len(steps)):
        n = 36 + (1 if si < off or (si - off) % 4 == 0 else 0)
        n += sum(1 for v in UM for (bs, t) in UMP[v] if bs == si - off)
        r.append(n)
    return r
NEL = 5 * EPB; CUT = []; STB = []
d9c = [0]
pend_softmax = None
for el in range(NEL):
    it = el // EPB; nit = (el + 1) // EPB
    steps = steps_of(el); nsteps = steps_of(el + 1); N = len(steps); off = N - 20
    IT[0] = it; B0 = MC[0]
    if el % EPB == 0: CUT.append(B0); d9c[0] = 0
    ST = [0]
    for m in nm_of(steps): ST.append(ST[-1] + m)
    if it == 2: STB += [B0 - CUT[2] + x for x in ST[:-1]]
    def S(x, B0=B0, ST=ST, off=off, N=N):
        x += off; i = int(math.floor(x))
        return B0 + ST[i] + ((x - i) * (ST[i + 1] - ST[i]) if i < N else 0)
    tiles = []
    o1 = len(ops)
    at(B0 + 1, LSP); ly = view_load(VY + 16, IDX + 1); lz = view_load(VZ + 16, IDX + 2)
    IT[0] = nit
    at(S(float(opts.get('ti', 7.5))), LSP)
    li = [valu(f"buffer_load_dword v{IDX+k}, v{[OX,OY,OZ][k]}, s[{S_SRD}:{S_SRD+3}], s{S_IT} offen offset:{(64 if k else 0) + 104 * (el % EPB)}", [f"v{[OX,OY,OZ][k]}", f"s{S_IT}"], [f"v{IDX+k}"], "vmem") for k in range(3)]
    if el % EPB == EPB - 1:
        salu(f"s_addk_i32 s{S_IT}, {104 * EPB}", [f"s{S_IT}"], [f"s{S_IT}", "scc"]); salu(f"s_cmp_lt_u32 s{S_IT}, {104 * (int(opts.get('iters', 4)) + 1)}", [f"s{S_IT}"], ["scc"])
    for o in ops[o1:]: o.nb = o.prio - 1
    IT[0] = it
    if el == 0: do_form(steps, 0, -40, 0) if steps[0][0] != "mrg" else None
    extra = {}
    def sched_unpack(v, V, raw, loads, t0, t1, itv, pre=None, post=None):
        if v in UM:
            for j, (bs, t) in enumerate(UMP[v]):
                def cb(j=j):
                    IT[0] = itv
                    if j == 0: at(MC[0] - 3, 0); wait_for(vr(raw,16), loads(), LAT_FAR)
                    if pre and j % 2 == 0: pre(j // 2)
                    mm(V + 4 * j, ASEL + 4 * (j % 2), raw + 4 * (j // 2), "0", [])
                    if post and j % 2 == 1: post(j // 2)
                extra.setdefault((bs + off, t), []).append(cb)
        else:
            def now():
                IT[0] = itv
                at(t0, 0); wait_for(vr(raw,16), loads(), LAT_FAR)
                for q in range(4):
                    if pre: pre(q)
                    at(t0 + (t1 - t0) * q / 4, (t1 - t0) / 32); unpack_chunk(V, raw, q)
                    if post: post(q)
            return now
    ny = sched_unpack("y", VY, VY + 16, lambda ly=ly: ly, S(YT0), S(YT1), it)
    nz = sched_unpack("z", VZ, VZ + 16, lambda lz=lz: lz, S(ZT0), S(ZT1), it)
    lxh = []
    nk, na = nsteps[0]; nfb = fbuf(nsteps, 0)
    XA, XB = S(float(opts.get("x0", 18.5))), S(float(opts.get("x1", 19.5)))
    def xpre(q):
        if nk != "mrg": return
        at(XA + (XB - XA) * q / 4 - 8, 0.7)
        for i in range(8 * q, 8 * q + 8):
            d = VY + i % 16
            valu(f"v_mul_f32_dpp v{d}, v{VX+i}, v{VX+i} row_shl:8 {FULL} bound_ctrl:0", [f"v{VX+i}"], [f"v{d}"], "dpp")
    def xpost(q, S=S):
        ta, tb = S(19.2), S(20) - 2.5
        at(ta + (tb - ta) * q / 4, (tb - ta) / 48)
        for i in range(8 * q, 8 * q + 8):
            if nk == "mrg":
                d = VY + i % 16
                valu(f"v_mul_f32_dpp v{d}, v{VX+i}, v{VX+i} row_shr:8 row_mask:0xf bank_mask:0xc", [f"v{VX+i}", f"v{d}"], [f"v{d}"], "dpp")
            else:
                d = TMP + i % 8
                ctl = f"row_shl:8 {FULL} bound_ctrl:0" if nk == "ror8" else f"row_ror:{na} {FULL}"
                valu(f"v_mul_f32_dpp v{d}, v{VX+i}, v{VX+i} {ctl}", [f"v{VX+i}"], [f"v{d}"], "dpp")
            if i % 2: valu(f"v_cvt_pk_bf16_f32 v{nfb+i//2}, v{d-1}, v{d}", [f"v{d-1}", f"v{d}"], [f"v{nfb+i//2}"])
    nx = sched_unpack("x", VX, VZ + 16, lambda lxh=lxh: lxh, XA, XB, nit, xpre, xpost)
    for si in range(N):
        kind, a = steps[si]; bs = si - off
        if bs == 6 and ny: ny(); IT[0] = it
        if bs == 7 and nz: nz(); IT[0] = it
        if si + 1 < N: do_form(steps, si + 1, S(bs), S(bs + 1))
        if bs == 9:
            IT[0] = nit
            at(S(float(opts.get('tx', 11.2))), 2.0); wait_for(vr(IDX,3), li, LAT_NEAR)
            for k in range(3): valu(f"v_lshl_add_u32 v{IDX+k}, v{IDX+k}, 8, v{GOFF}", [f"v{IDX+k}", f"v{GOFF}"], [f"v{IDX+k}"])
            TT[1] = LSP; o2 = len(ops)
            lxh += view_load(VZ + 16, IDX)
            for o in ops[o2:]: o.nb = o.prio - 1
            IT[0] = it
        if bs == 19 and nx: nx(); IT[0] = it
        fb = fbuf(steps, si)
        ex = {t: extra[(si, t)] for t in range(8) if (si, t) in extra}
        if bs < 0:
            d9 = D9 + 4 * (d9c[0] % ND9); d9c[0] += 1
            def fin(S=S, d9=d9, kind=kind, ps=pend_softmax):
                at(MC[0] + 4 if kind == "mrg" else S(SM1 + (SM2 - SM1) / 6 - 0.5), 2.0)
                add(d9, d9, d9 + 1)
                valu(f"v_cndmask_b32 v{EM}, v{NEGINF}, v{d9}, s[{S_MA}:{S_MA+1}]", [f"v{NEGINF}", f"v{d9}"], [f"v{EM}"])
                if kind == "mrg": valu(f"v_cndmask_b32 v{EMB}, v{NEGINF}, v{d9}, s[{S_MB}:{S_MB+1}]", [f"v{NEGINF}", f"v{d9}"], [f"v{EMB}"])
                add(SM, d9 + 2, d9 + 3)
                if kind == "mrg": ps(S(SM0 + 0.4), S(SM1 + 0.4), S(SM2 + 0.4))
            step_mm(fb, d9, 0, 0, fin, ex)
        else:
            var = bs % 4
            if var == 0: d9 = D9 + 4 * (d9c[0] % ND9); d9c[0] += 1
            fin = None
            if var == 3:
                de = ES + 2 * (bs // 4)
                tiles.append((de, de + 1))
                def fin(d9=d9, de=de, last=(bs == 19), tiles=tiles, el=el):
                    at(MC[0] + 4, 3.0)
                    add(de, d9, d9 + 1); add(de + 1, d9 + 2, d9 + 3)
                    if last and (EPB == 1 or el % 2 == 1):
                        b1 = MC[0] - 9
                        softmax([(EM if EPB == 1 else EMB, SM)] + tiles, True, b1 + 37 * SM0 + 9, b1 + 37 * SM1, b1 + 37 * SM2)
            step_mm(fb, d9, var, (MASKC if bs == 8 else 0) if var == 0 else None, fin, ex)
    pend_softmax = lambda t0, t1, t2, tiles=tiles: softmax(tiles + [(EM, SM)], False, t0, t1, t2)
for cb in deferred: cb()
ST = STB
out, st = schedule(ops, look=LOOK, late=float(opts.get('late', 4)))
bad = verify(out)
assert bad == 0
lines = finalize(out)
cuts = [i for i, o in enumerate(out) if o.kind == "mfma" and o.g in CUT]
s1 = lines[cuts[2]:cuts[3]]; s2 = lines[cuts[3]:cuts[4]]
if s1 != s2:
    for i, (a, b) in enumerate(zip(s1, s2)):
        if a != b: print("diff at", i, len(s1), len(s2), s1[i-3:i+3], s2[i-3:i+3], file=sys.stderr); break
    raise SystemExit("body not periodic")
body = s1; bops = out[cuts[2]:cuts[3]]
pre_ops = [o for o in out[:cuts[2]] if o.kind != "nop" and o.it >= 2]
post_ops = [o for o in bops if o.kind != "nop" and o.it == 1]
assert sum(1 for o in pre_ops if o.kind == 'vmem') == 7 and sum(1 for o in pre_ops if o.kind == 'salu') == 2
nm = sum(1 for o in bops if o.kind == "mfma"); nf = sum(o.cost for o in bops if o.kind not in ("mfma", "nop"))
print(st, "body len", len(body), "est cycles/iter", est_cycles(bops), "issue", sum(4 * (4 - o.free) for o in bops if o.kind == "mfma") + nf * 4, "pipe", nm * 16, "pre", len(pre_ops), "post", len(post_ops), "nops in body", sum(1 for o in bops if o.kind == "nop"), file=sys.stderr)
if int(opts.get("prof", 0)):
    seg = []; cur_ = []; nm_ = 0
    for o in bops:
        if o.kind == "mfma":
            if nm_ in ST and cur_: seg.append(cur_); cur_ = []
            nm_ += 1
        cur_.append(o)
    seg.append(cur_)
    from collections import Counter
    for i, sg in enumerate(seg): print(i, est_cycles(sg + [sg[0]]) - 8, dict(Counter(o.kind for o in sg)), file=sys.stderr)
e("s_cmp_ge_u32 s2, 256"); e("s_cbranch_scc1 L_done")
stamp()
e("s_load_dwordx4 s[4:7], s[0:1], 0"); e("s_load_dwordx4 s[8:11], s[0:1], 32")
e("s_load_dwordx4 s[12:15], s[0:1], 48"); e("s_load_dwordx2 s[16:17], s[0:1], 64")
T = VY
vN, vG, vL, vW0, vW1, vWN, vPF, vSM, vT0, vT1, vT2, vWV, vTR, vNA = T, T+1, T+2, T+3, T+4, T+5, T+6, T+7, T+8, T+9, T+10, T+11, T+12, T+20
vHA = VY + 24; vBA = VY + 28
vm = []; dsq = []
def vmem(s, tag): e(s); vm.append(tag)
def vwait(tag):
    last = max(i for i, t in enumerate(vm) if t == tag)
    e(f"s_waitcnt vmcnt({len(vm) - 1 - last})")
def ds(s, tag): e(s); dsq.append(tag)
def dwait(tag):
    last = max(i for i, t in enumerate(dsq) if t == tag)
    e(f"s_waitcnt lgkmcnt({min(15, len(dsq) - 1 - last)})")
def pf_addr():
    e("s_getpc_b64 s[32:33]")
    L.append("L_pfbase:")
    e(f"v_lshlrev_b32 v{vPF}, 7, v0")
    e(f"v_min_u32 v{vPF}, L_end-L_pfbase-4, v{vPF}")
def pf_load():
    vmem(f"global_load_dword v{PFR}, v{vPF}, s[32:33]", "pf")
    if EPB == 2:
        e(f"v_add_u32 v{vPF}, 0x8000, v{vPF}"); e(f"v_min_u32 v{vPF}, L_end-L_pfbase-4, v{vPF}")
        vmem(f"global_load_dword v{PFR+1}, v{vPF}, s[32:33]", "pf")
EARLY = int(opts.get("early", 1))
if PF == 3: pf_addr(); pf_load()
e(f"v_lshrrev_b32 v{vWV}, 6, v0")
e(f"v_and_b32 v{vN}, 15, v0")
e(f"v_readfirstlane_b32 s{S_WAVE}, v{vWV}")
if PF == 6:
    NL = int(opts.get("nl", 6 if EPB == 2 else 3))
    e("s_getpc_b64 s[32:33]")
    L.append("L_pfbase:")
    e("s_getreg_b32 s3, hwreg(HW_REG_HW_ID, 13, 2)"); e("s_getreg_b32 s19, hwreg(HW_REG_HW_ID, 8, 2)"); e("s_lshl2_add_u32 s3, s3, s19")
    e("s_getreg_b32 s19, hwreg(HW_REG_HW_ID, 4, 2)"); e("s_lshl2_add_u32 s3, s3, s19"); e(f"s_mul_i32 s3, s3, {NL * 128}")
    e(f"v_min_u32 v{vPF}, {NL - 1}, v{vN}"); e(f"v_lshl_add_u32 v{vPF}, v{vPF}, 7, s3"); e(f"v_min_u32 v{vPF}, L_end-L_pfbase-4, v{vPF}")
    vmem(f"global_load_dword v{PFR}, v{vPF}, s[32:33]", "pf")
    L.append(f".if (L_end-L_pfbase) > {64 * NL * 128}\n.error \"prefetch does not cover the code\"\n.endif") if 0 else None
if PF == 5:
    NL = int(opts.get("nl", 6)); CM = int(opts.get("cm", 15))
    e("s_getpc_b64 s[32:33]")
    L.append("L_pfbase:")
    e(f"s_bfe_u32 s3, s2, {3 | (CM.bit_length() << 16)}"); e("s_lshl_b32 s3, s3, 2"); e(f"s_add_u32 s3, s3, s{S_WAVE}"); e(f"s_mul_i32 s3, s3, {NL * 128}")
    e(f"v_min_u32 v{vPF}, {NL - 1}, v{vN}"); e(f"v_lshl_add_u32 v{vPF}, v{vPF}, 7, s3"); e(f"v_min_u32 v{vPF}, L_end-L_pfbase-4, v{vPF}")
    vmem(f"global_load_dword v{PFR}, v{vPF}, s[32:33]", "pf")
e(f"s_lshl_b32 s3, s2, 2"); e(f"s_add_u32 s3, s3, s{S_WAVE}")
e(f"s_mul_i32 s19, s3, 416")
e(f"v_lshl_add_u32 v{OX}, v{vN}, 2, s19")
e(f"v_bfe_u32 v{vG}, v0, 4, 2")
e(f"s_lshl_b32 s{S_T}, s{S_WAVE}, 13")
e(f"v_lshrrev_b32 v{vT2}, 1, v{vN}")
e(f"v_xor_b32 v{vT0}, v{vT2}, v{vG}")
e(f"v_lshlrev_b32 v{vT0}, 5, v{vT0}")
e(f"v_and_b32 v{vT1}, 1, v0")
e(f"v_lshl_add_u32 v{vT0}, v{vT1}, 4, v{vT0}")
e(f"v_lshl_add_u32 v{vT0}, v{vG}, 8, v{vT0}")
e(f"v_add_u32 v{vW0}, s{S_T}, v{vT0}")
e(f"v_xor_b32 v{vW1}, 0x80, v{vW0}")
e(f"s_add_u32 s{S_T+1}, s{S_T}, 0x1000")
e(f"s_mov_b32 m0, s{S_T}")
def part2():
    e(f"v_lshlrev_b32 v{GOFF}, 4, v{vG}")
    e(f"v_and_b32 v{vL}, 63, v0"); e(f"v_lshlrev_b32 v{vL}, 2, v{vL}")
    e(f"v_lshlrev_b32 v{vSM}, 2, v{vT1}")
    e(f"v_lshl_add_u32 v{vT0}, v{vT2}, 5, v{vSM}"); e(f"v_lshl_add_u32 v{vT0}, v{vG}, 3, v{vT0}")
    e(f"v_cmp_eq_u32 vcc, 0, v{vWV}")
    e(f"v_lshlrev_b32 v{vT1}, 5, v{vT1}"); e(f"v_and_b32 v{vT2}, 3, v{vT2}")
    e(f"v_cndmask_b32 v{vSM}, v{vL}, v{vT0}, vcc")
    e(f"v_lshl_add_u32 v{vT1}, v{vT2}, 3, v{vT1}"); e(f"v_bfe_u32 v{vT2}, v0, 3, 2"); e(f"v_lshl_add_u32 v{vT1}, v{vT2}, 6, v{vT1}")
    e(f"v_bfe_u32 v{vT2}, v0, 5, 1"); e(f"v_lshlrev_b32 v{vT2}, 2, v{vT2}")
    e(f"v_cmp_eq_u32 vcc, 3, v{vWV}")
    e(f"v_xor_b32 v{vT0}, 4, v{vT2}"); e(f"v_add_u32 v{vT1}, v{vT1}, v{vT0}")
    e(f"v_cndmask_b32 v{vSM}, v{vSM}, v{vT1}, vcc")
    e(f"v_cmp_eq_u32 vcc, 2, v{vWV}")
    e(f"v_and_b32 v{vT0}, 31, v0"); e(f"v_lshl_add_u32 v{vT0}, v{vT0}, 3, v{vT2}")
    e(f"v_cndmask_b32 v{vSM}, v{vSM}, v{vT0}, vcc")
    e(f"s_mov_b32 s{S_T+2}, {O_P}"); e(f"s_cmp_eq_u32 s{S_WAVE}, 1"); e(f"s_cselect_b32 s{S_T+2}, {O_H}, s{S_T+2}")
    e(f"s_cmp_eq_u32 s{S_WAVE}, 3"); e(f"s_cselect_b32 s{S_T+2}, {O_HH}, s{S_T+2}")
    e(f"s_cmp_eq_u32 s{S_WAVE}, 0"); e(f"s_cselect_b32 s{S_T+2}, {O_B}, s{S_T+2}")
def part3():
    def nib(tab): return sum(v << (4 * i) for i, v in enumerate(tab))
    e(f"s_mov_b32 s20, 0x{nib(YT) & 0xffffffff:08x}"); e(f"s_mov_b32 s21, 0x{nib(YT) >> 32:08x}")
    e(f"v_lshlrev_b32 v{OZ}, 2, v{vN}")
    e(f"v_lshrrev_b64 v[{vT0}:{vT0+1}], v{OZ}, s[20:21]")
    e(f"s_mov_b32 s22, 0x{nib(ZT) & 0xffffffff:08x}"); e(f"s_mov_b32 s23, 0x{nib(ZT) >> 32:08x}")
    e(f"v_and_b32 v{OY}, 15, v{vT0}")
    e(f"v_lshrrev_b64 v[{vT0}:{vT0+1}], v{OZ}, s[22:23]")
    e(f"v_and_b32 v{OZ}, 15, v{vT0}")
    e(f"v_lshl_add_u32 v{OY}, v{OY}, 2, s19")
    e(f"v_lshl_add_u32 v{OZ}, v{OZ}, 2, s19")
if PF in (1, 2): pf_addr()
if not EARLY: part2()
e("s_waitcnt lgkmcnt(0)")
stamp()
vmem(f"global_load_dword v{IDX}, v{OX}, s[{S_IDX}:{S_IDX+1}]", "idx0")
for half in range(2):
    for q in range(4):
        vmem(f"global_load_lds_dwordx4 v{vW1 if q & 2 else vW0}, s[{S_W}:{S_W+1}] offset:{1024*q}", "wdma")
    if half == 0:
        e(f"v_add_u32 v{vW0}, 0x1000, v{vW0}"); e(f"s_mov_b32 m0, s{S_T+1}"); e(f"v_add_u32 v{vW1}, 0x1000, v{vW1}")
if EARLY: part2()
e(f"s_cselect_b64 s[34:35], s[{S_B}:{S_B+1}], s[{S_H}:{S_H+1}]")
e(f"s_cmp_eq_u32 s{S_WAVE}, 2"); e(f"s_mov_b32 m0, s{S_T+2}"); e(f"s_cselect_b64 s[34:35], s[{S_P}:{S_P+1}], s[34:35]")
vmem(f"global_load_lds_dword v{vSM}, s[34:35]", "wdma")
part3()
TLB = int(opts.get("tlb", 0))
if TLB:
    e(f"v_min_u32 v{vT0}, {25600000 // (1 << TLB)}, v{vN if TLB >= 21 else 0}"); e(f"v_lshlrev_b32 v{vT0}, {TLB}, v{vT0}")
    vmem(f"global_load_dword v{PFR+1}, v{vT0}, s[{S_TAB}:{S_TAB+1}]", "pf")
if PF == 1: vmem(f"global_load_dword v{PFR}, v{vPF}, s[32:33]", "pf")
stamp()
vwait("idx0"); stamp()
e(f"v_lshl_add_u32 v{IDX}, v{IDX}, 8, v{GOFF}")
for q in range(4): vmem(f"global_load_dwordx4 {rng(VZ+16+4*q,4)}, v{IDX}, s[{S_TAB}:{S_TAB+1}] offset:{64*q}", "view0")
if PF == 2: pf_load()
for k in range(1, 3): vmem(f"global_load_dword v{IDX+k}, v{[OX,OY,OZ][k]}, s[{S_IDX}:{S_IDX+1}] offset:64", "idx1")
if PF == 4: pf_addr(); pf_load()
for r in range(4): e(f"v_mov_b32 v{MASKC+r}, 0")
e(f"v_lshrrev_b32 v{vL}, 1, v{vL}")
ds(f"ds_write_b16 v{vL}, v{MASKC+1} offset:{O_Z}", "z")
for r in range(4): e(f"v_accvgpr_write_b32 a{AZ+r}, 0")
e(f"v_and_b32 v{SIX}, 1, v{vN}"); e(f"v_mul_u32_u24 v{SIX}, 0xaaaa, v{SIX}"); e(f"v_add_u32 v{SIX}, 0x4444, v{SIX}")
if UM:
    e(f"v_lshrrev_b32 v{vT0}, 2, v{vN}"); e(f"v_cmp_eq_u32 vcc, v{vT0}, v{vG}")
    e(f"v_and_b32 v{vT0}, 1, v{vN}"); e(f"v_lshlrev_b32 v{vT0}, 4, v{vT0}"); e(f"v_mov_b32 v{vT1}, 0x3f80"); e(f"v_lshlrev_b32 v{vT1}, v{vT0}, v{vT1}")
    e(f"v_cndmask_b32 v{vT1}, 0, v{vT1}, vcc")
    e(f"v_and_b32 v{vT0}, 2, v{vN}"); e(f"v_cmp_eq_u32 vcc, 0, v{vT0}")
    for r in (2, 3, 4, 5): e(f"v_accvgpr_write_b32 a{ASEL+r}, 0")
    e(f"v_cndmask_b32 v{vT0}, 0, v{vT1}, vcc"); e(f"v_sub_u32 v{vT1}, v{vT1}, v{vT0}")
    e(f"v_accvgpr_write_b32 a{ASEL}, v{vT0}"); e(f"v_accvgpr_write_b32 a{ASEL+1}, v{vT1}")
    e(f"v_accvgpr_write_b32 a{ASEL+6}, v{vT0}"); e(f"v_accvgpr_write_b32 a{ASEL+7}, v{vT1}")
e(f"v_mov_b32 v{NEGINF}, 0xff800000")
e(f"v_mov_b32 v{VCS}, {f32(CSC)}")
e(f"s_mov_b32 s{S_MA}, 0x{inval & 0xffffffff:08x}"); e(f"s_mov_b32 s{S_MA+1}, 0x{inval >> 32:08x}")
e(f"v_cndmask_b32 v{MASKC}, v{MASKC}, v{NEGINF}, s[{S_MA}:{S_MA+1}]")
e(f"s_mov_b32 s{S_MA}, 0xff"); e(f"s_mov_b32 s{S_MA+1}, 0"); e(f"s_movk_i32 s{S_IT}, 104")
e(f"s_mov_b32 s{S_OM}, 0x00010001"); e(f"s_mov_b32 s{S_OM+1}, 0x00010001")
e(f"s_mov_b32 s{S_SRD}, s{S_IDX}"); e(f"s_mov_b32 s{S_SRD+1}, s{S_IDX+1}"); e(f"s_mov_b32 s{S_SRD+2}, {4096*104}"); e(f"s_mov_b32 s{S_SRD+3}, 0x00020000")
e(f"s_lshl_b32 s3, s3, 3"); e(f"v_lshl_add_u32 v{OOFF}, v{vG}, 1, s3")
e(f"v_lshrrev_b32 v{vT0}, 3, v{vN}"); e(f"v_and_b32 v{vT1}, 3, v{vN}"); e(f"v_lshl_or_b32 v{vT0}, v{vT0}, 2, v{vT1}")
e(f"v_lshrrev_b32 v{vT1}, 1, v{vG}"); e(f"v_xor_b32 v{vT0}, v{vT0}, v{vT1}"); e(f"v_lshlrev_b32 v{vT0}, 5, v{vT0}")
e(f"v_and_b32 v{vT1}, 1, v{vG}"); e(f"v_lshl_add_u32 v{vT0}, v{vT1}, 4, v{vT0}"); e(f"v_lshl_add_u32 v{vT0}, v{vN}, 8, v{vT0}")
e(f"v_add_u32 v{vWN}, s{S_T}, v{vT0}")
vWNk = [vWN, vW0, vW1, vSM]
for ks in range(1, 4): e(f"v_xor_b32 v{vWNk[ks]}, {ks << 6}, v{vWN}")
e(f"v_lshrrev_b32 v{vT0}, 2, v{vN}")
e(f"v_lshl_or_b32 v{vT1}, v{vT1}, 2, v{vT0}")
e(f"v_lshl_add_u32 v{vT0}, v{vG}, 3, v{vT0}"); e(f"v_lshlrev_b32 v{vT0}, 8, v{vT0}")
e(f"v_lshl_add_u32 v{vT0}, v{vT1}, 5, v{vT0}")
e(f"v_and_b32 v{vT1}, 3, v{vN}"); e(f"v_lshl_add_u32 v{vTR}, v{vT1}, 3, v{vT0}")
for t in range(1, 8): e(f"v_xor_b32 v{vTR+t}, {t << 5}, v{vTR}")
for var in range(4):
    e(f"v_subrev_u32 v{vT0}, {4*var}, v{vN}"); e(f"v_min_u32 v{vNA+var}, 4, v{vT0}")
    e(f"v_lshl_add_u32 v{vNA+var}, v{vNA+var}, 7, v{GOFF}")
    e(f"v_min_u32 v{vT0}, 2, v{vT0}"); e(f"v_sub_u32 v{vT0}, 2, v{vT0}"); e(f"v_lshl_add_u32 v{vHA+var}, v{vT0}, 7, v{GOFF}")
e(f"v_lshlrev_b32 v{vBA}, 6, v{vG}")
e(f"s_lshl_b32 s{S_T+1}, s{S_WAVE}, 5"); e(f"v_and_b32 v{vT0}, 12, v{vN}"); e(f"v_add_u32 v{vT2}, s{S_T+1}, v{vT0}")
e(f"v_bfe_u32 v{vT0}, v{vN}, 1, 1"); e(f"v_lshl_add_u32 v{vT2}, v{vT0}, 7, v{vT2}")
e(f"v_and_b32 v{vT0}, 1, v{vN}"); e(f"v_lshl_add_u32 v{vT2}, v{vT0}, 1, v{vT2}")
e(f"s_mov_b32 s{S_MB}, 0xff00"); e(f"s_mov_b32 s{S_MB+1}, 0")
vwait("wdma"); e("s_waitcnt lgkmcnt(0)")
stamp(); e("s_barrier"); stamp()
WN = F[0]; HB = ACC; WHA = RF
trs = [f"ds_read_b64_tr_b16 {rng(AW+(t*4+ks)*4+2*u,2,'a')}, v{vTR+t} offset:{8192*ks+1024*u}" for t in range(8) for ks in range(4) for u in range(2)]
def tr(n):
    for _ in range(n):
        if trs: ds(trs.pop(0), "tr")
for ks in range(4): ds(f"ds_read_b128 {rng(HB+4*ks,4)}, v{GOFF} offset:{O_H+64*ks}", "wn")
for uu in range(2):
    for ks in range(4): ds(f"ds_read_b128 {rng(WN+16*uu+4*ks,4)}, v{vWNk[ks]} offset:{4096*uu}", "wn")
for k in range(4): ds(f"ds_read_b128 {rng(BIAS+16+4*k,4)}, v{vBA} offset:{O_B+16*k}", "bb")
tr(6)
dwait("wn")
for ks in range(4):
    for uu in range(2):
        c = "0" if ks == 0 else rng(WHA+4*uu, 4)
        e(f"v_mfma_f32_16x16x32_bf16 {rng(WHA+4*uu,4)}, {rng(HB+4*ks,4)}, {rng(WN+16*uu+4*ks,4)}, {c}")
        tr(1)
tr(8)
for uu in range(2):
    a = WHA + 4 * uu
    e(f"v_cvt_pk_bf16_f32 v{a+1}, v{a}, v{a}")
    ds(f"ds_write_b16 v{vT2}, v{a+1} offset:{O_HI+16*uu}", "whw")
dwait("bb")
bu = []
for q in range(16):
    s_ = BIAS + 16 + q
    bu += [f"v_lshlrev_b32 v{BIAS+2*q}, 16, v{s_}", f"v_and_b32 v{BIAS+2*q+1}, 0xffff0000, v{s_}"]
while trs:
    tr(1)
    if bu: e(bu.pop(0))
assert not bu
for var in range(4):
    for u in range(2): ds(f"ds_read_b128 {rng(AH+8*var+4*u,4,'a')}, v{vHA+var} offset:{O_Z+64*u}", "ah")
dwait("whw")
e("s_barrier")
stamp()
vwait("idx1")
stamp()
for k in range(1, 3): e(f"v_lshl_add_u32 v{IDX+k}, v{IDX+k}, 8, v{GOFF}")
n9 = [f"ds_read_b128 {rng(AN9+8*var+4*u,4,'a')}, v{vNA+var} offset:{O_HI+64*u}" for var in range(4) for u in range(2)]
pre = [o for o in pre_ops if (o.kind in VALUK or o.kind == "mfma") and not o.text.startswith("v_lshl_add_u32")]
pre2 = []
for i, o in enumerate(sorted(pre, key=lambda o: o.seq)):
    if o.kind == "mfma": o2 = mfma(o.text, o.W, [r for r in o.R if r in o.AB], [], o.C); pre2.append(o2)
    else: pre2.append(Op(o.text, o.kind, o.R, o.W, prio=i * 0.01))
po, _ = schedule(pre2); assert verify(po) == 0
for i, s_ in enumerate(finalize(po)):
    e(s_)
    if i % 3 == 0 and n9: ds(n9.pop(0), "n9")
assert not n9
e("s_waitcnt lgkmcnt(0)")
e("s_nop 7")
if DBG == 4 and int(opts["sa"]) < 0:
    e("s_load_dwordx2 s[98:99], s[0:1], 72"); e("s_waitcnt lgkmcnt(0)"); e("s_not_b32 s34, s40"); e(f"v_mov_b32 v{PFR}, s34"); e(f"v_mov_b32 v{PFR+1}, 0")
    e("s_waitcnt vmcnt(0)"); e("s_mov_b64 exec, 1"); e(f"global_atomic_umax v{PFR+1}, v{PFR}, s[98:99]"); e("s_mov_b64 exec, -1")
if DBG: e("s_mov_b32 s34, 0")
L.append(".p2align 6"); L.append("L_loop:")
if DBG and not STEPST: e("s_mov_b32 m0, s34"); e("s_memrealtime s[32:33]"); e("s_waitcnt lgkmcnt(0)"); e(f"s_movreld_b32 s{40+2*NST[0]}, s32"); e("s_add_u32 s34, s34, 2"); NST[0] += 4
nm_ = 0
for s in body:
    if s.startswith("v_mfma") or s.startswith("v_smfmac"):
        if STEPST and nm_ in ST: stamp(True)
        nm_ += 1
    e(s)
if STEPST: stamp(True)
e("s_cbranch_scc1 L_loop")
stamp()
e("s_nop 7")
ops = []; IT[0] = 0; at(0, 1)
for o in sorted(post_ops, key=lambda o: o.seq):
    if getattr(o, "rot", False): continue
    if o.kind == "mfma":
        o2 = mfma(o.text, o.W, [r for r in o.R if r in o.AB], [], o.C); o2.free = o.free; push(o2)
    else: valu(o.text, o.R, o.W, o.kind, cost=o.cost)
add(NUM, NUM, DEN)
swap(16, TC, TB); add(TC, TC, TB); swap(16, TA, NUM); add(TA, TA, NUM)
for c in (8, 4, 2, 1):
    for r in (TC, TA): valu(f"v_add_f32_dpp v{r}, v{r}, v{r} row_ror:{c} {FULL}", [f"v{r}"], [f"v{r}"], "dpp")
swap(32, TC, TA)
valu(f"v_rcp_f32 v{TA}, v{TA}", [f"v{TA}"], [f"v{TA}"], "trans", cost=2)
valu(f"v_mul_f32 v{TC}, v{TC}, v{TA}", [f"v{TC}", f"v{TA}"], [f"v{TC}"])
valu(f"v_cvt_pk_bf16_f32 v{TC}, v{TC}, v{TC}", [f"v{TC}"], [f"v{TC}"])
to, _ = schedule(ops); assert verify(to) == 0
print("tail est", est_cycles(to), "pre est", est_cycles(po), file=sys.stderr)
for s in finalize(to): e(s)
stamp()
if DBG == 4:
    a_, b_, K_ = int(opts["sa"]), int(opts["sb"]), int(opts["sk"])
    if b_ < 0: b_ += NST[0]
    e("s_waitcnt lgkmcnt(0)")
    if a_ >= 0:
        e(f"s_sub_u32 s34, s{40+2*b_}, s{40+2*a_}")
    else:
        e("v_mov_b32 v1, 0"); e("global_load_dword v2, v1, s[98:99] sc1"); e("s_waitcnt vmcnt(0)"); e("v_readfirstlane_b32 s34, v2"); e("s_nop 3")
        e("s_not_b32 s34, s34"); e(f"s_sub_u32 s34, s{40+2*b_}, s34")
    e("s_min_u32 s34, s34, 10000"); e(f"s_mul_i32 s34, s34, {K_}"); e("s_min_u32 s34, s34, 20000")
    stamp(); e("s_waitcnt lgkmcnt(0)")
    L.append("L_spin:")
    e("s_memrealtime s[32:33]"); e("s_waitcnt lgkmcnt(0)")
    e(f"s_sub_u32 s35, s32, s{40+2*(NST[0]-1)}"); e("s_cmp_lt_u32 s35, s34"); e("s_cbranch_scc1 L_spin")
if DBG == 1:
    e("s_load_dwordx2 s[34:35], s[0:1], 80"); e("s_waitcnt lgkmcnt(0)")
    e("s_lshl_b32 s3, s3, 4"); e(f"v_mov_b32 v1, s3")
    for k in range(NST[0]):
        e(f"v_mov_b32 v2, s{40+2*k}"); e(f"global_store_dword v1, v2, s[34:35] offset:{4*k}")
    e(f"v_mov_b32 v2, {NST[0]}"); e(f"global_store_dword v1, v2, s[34:35] offset:124")
e(f"s_mov_b64 exec, s[{S_OM}:{S_OM+1}]")
e(f"global_store_short v{OOFF}, v{TC}, s[{S_OUT}:{S_OUT+1}]")
L.append("L_done:")
e("s_endpgm")
L.append("L_end:")
L += ['.section .rodata,"a"', ".p2align 6", ".amdhsa_kernel %s_kernel" % NAME,
      "  .amdhsa_next_free_vgpr 512", "  .amdhsa_next_free_sgpr %d" % (100 if DBG else 40), "  .amdhsa_accum_offset 256",
      "  .amdhsa_group_segment_fixed_size 0", "  .amdhsa_kernarg_size 88", "  .amdhsa_user_sgpr_count 2",
      "  .amdhsa_user_sgpr_kernarg_segment_ptr 1", "  .amdhsa_system_sgpr_workgroup_id_x 1",
      "  .amdhsa_float_denorm_mode_32 3",
      ".end_amdhsa_kernel"]
print("\n".join(L))
```

```python
import re, heapq
def vr(b, n=1, p='v'):
    return [f"{p}{b+i}" for i in range(n)]
def rng(b, n, p='v'):
    return f"{p}{b}" if n == 1 else f"{p}[{b}:{b+n-1}]"
class Op:
    def __init__(s, text, kind, R=(), W=(), C=(), covers=None, lat=0, prio=None, cost=1, passes=4):
        s.text = text; s.kind = kind; s.R = list(R); s.W = list(W); s.C = list(C)
        s.covers = covers; s.lat = lat; s.prio = prio; s.cost = cost; s.passes = passes
        s.preds = {}; s.succs = {}; s.pos = None; s.gap = None; s.dl = 1e18; s.nb = -1e18
VALUK = ("valu", "dpp", "trans", "perm", "readlane")
MF_RAW = {2: 5, 4: 8, 8: 12, 16: 20}; MF_COV = {2: 4, 4: 6, 8: 10, 16: 18}; MF_WAR = {2: 1, 4: 3, 8: 7, 16: 15}
def hazard(p, c, typ, reg):
    if typ == "RAW":
        if p.kind in VALUK:
            if reg[0] == 's' or reg == 'vcc':
                if c.kind in VALUK: return 2
                if c.kind in ("vmem",): return 5
                return 1
            if c.kind == "mfma": return 2
            if c.kind in ("dpp", "perm"): return 2
            if c.kind == "readlane": return 1
            if p.kind == "trans" and c.kind in VALUK: return 1
            return 0
        if p.kind == "mfma":
            if c.kind == "mfma":
                if reg in c.C and reg not in c.AB:
                    if c.C == p.W and c.passes == p.passes: return 2 if p.passes == 2 else 0
                    return MF_COV[p.passes]
                return MF_RAW[p.passes]
            return MF_RAW[p.passes]
        return 0
    if typ == "WAW":
        if p.kind == "mfma":
            if c.kind == "mfma":
                return 0 if (c.W == p.W and c.passes == p.passes) else MF_COV[p.passes]
            return MF_RAW[p.passes]
        return 0
    if typ == "WAR":
        if p.kind == "mfma" and reg in p.C and c.kind in VALUK: return MF_WAR[p.passes]
        if p.kind == "vmem" and getattr(p, "wide_store", False) and c.kind in VALUK: return 2
        return 0
def mfma(text, D, A, B, C, passes=4):
    o = Op(text, "mfma", R=list(A) + list(B) + list(C), W=D, C=C, passes=passes); o.AB = set(A) | set(B); o.free = 2; return o
def build_deps(ops):
    lw = {}; rd = {}
    def edge(p, c, h):
        if p is c: return
        if c.preds.get(p, -1) < h: c.preds[p] = h; p.succs[c] = h
    for o in ops:
        for r in o.R:
            if r in lw: edge(lw[r], o, hazard(lw[r], o, "RAW", r))
        for r in o.W:
            if r in lw: edge(lw[r], o, hazard(lw[r], o, "WAW", r))
            for q in rd.get(r, ()): edge(q, o, hazard(q, o, "WAR", r))
        for r in o.R: rd.setdefault(r, []).append(o)
        for r in o.W: lw[r] = o; rd[r] = []
        if o.covers:
            for l in o.covers: edge(l, o, max(o.lat, 0))
def schedule(ops, min_fill=2, max_fill=4, look=12, late=0, fixed=0):
    build_deps(ops)
    M = [o for o in ops if o.kind == "mfma"]; F = [o for o in ops if o.kind != "mfma"]
    for i, o in enumerate(ops): o.seq = i
    for g, o in enumerate(M): o.g = g
    n = len(M)
    for o in ops:
        if o.kind == "mfma": o.dl = o.g
        else:
            assert o.prio is not None, o.text
            o.dl = o.prio
    out = []; cur = [0]; curg = [-1]
    remaining = {o: len(o.preds) for o in ops}
    ready = [(o.dl, o.seq, o) for o in F if remaining[o] == 0]; heapq.heapify(ready)
    tot = sum(o.cost for o in F); done = [0]; nops = [0]
    def ok_at(o):
        return max([p.pos + 1 + h for p, h in o.preds.items()] + [0])
    def emit(o):
        o.pos = cur[0]; out.append(o); cur[0] += 1
        if o.kind != "mfma": done[0] += o.cost
        for s in o.succs:
            remaining[s] -= 1
            if remaining[s] == 0 and s.kind != "mfma": heapq.heappush(ready, (s.dl, s.seq, s))
    def nop(k):
        while k > 0:
            q = min(k, 16); x = Op(f"s_nop {q-1}", "nop"); x.pos = cur[0]; out.append(x); cur[0] += q; k -= q; nops[0] += q
    def pick(maxdl=None, maxcost=9, due=-1e18):
        tmp = []; res = None
        while ready:
            it = heapq.heappop(ready)
            if maxdl is not None and it[0] > maxdl: tmp.append(it); break
            if ok_at(it[2]) <= cur[0] and it[2].nb <= curg[0] and (it[2].cost <= maxcost or it[0] <= due): res = it[2]; break
            tmp.append(it)
        for it in tmp: heapq.heappush(ready, it)
        return res
    def force(o):
        for p in sorted(o.preds, key=lambda x: x.seq):
            if p.pos is None:
                assert p.kind != "mfma", ("mfma order violated", p.text, o.text)
                force(p); settle(p)
                for i, it in enumerate(ready):
                    if it[2] is p: ready.pop(i); heapq.heapify(ready); break
                if p.pos is None: emit(p)
    def settle(o):
        while o.pos is None and ok_at(o) > cur[0]:
            need = ok_at(o) - cur[0]
            x = pick()
            if x is not None: emit(x)
            elif o.kind == "wait": break
            else: nop(need)
    starved = 0
    for o in ops[:fixed]:
        for i, it in enumerate(ready):
            if it[2] is o: ready.pop(i); heapq.heapify(ready); break
        emit(o)
    for g, m in enumerate(M):
        if m.pos is not None: continue
        force(m); settle(m); emit(m); curg[0] = g
        k = 0; min_fill = m.free
        while True:
            x = pick(maxdl=g + 1 - late) if k >= min_fill else pick(maxdl=g + look, maxcost=min_fill - k, due=g + 1 - late)
            if x is None: break
            emit(x); k += x.cost
            if k >= max_fill: break
        if k < min_fill: starved += min_fill - k
    curg[0] = 1e18
    while ready:
        x = pick()
        if x is None:
            it = min(ready, key=lambda t: ok_at(t[2])); ready.remove(it); heapq.heapify(ready)
            x = it[2]
            if x.kind != "wait": nop(ok_at(x) - cur[0])
        emit(x)
    assert all(o.pos is not None for o in ops)
    stats = dict(n_mfma=n, n_fill=len(F), fill_cost=tot, nops=nops[0], starved=starved)
    return out, stats
def finalize(out, vm_before=0):
    lines = []; vm = []
    for o in out:
        if o.kind == "vmem": vm.append(o)
        if o.kind == "wait" and getattr(o, "lg", False): lines.append("s_waitcnt lgkmcnt(0)")
        elif o.kind == "wait":
            last = max((vm.index(l) for l in o.covers if l in vm), default=-1)
            ncnt = len(vm) - 1 - last
            if getattr(o, "extra_after", None) is not None and last < 0: ncnt += o.extra_after
            assert ncnt <= 63
            lines.append(f"s_waitcnt vmcnt({ncnt})")
        else: lines.append(o.text)
    return lines
def verify(out):
    lw = {}; rd = {}; bad = 0; pos = 0
    for o in out:
        if o.kind == "nop": pos += int(o.text.split()[1]) + 1; continue
        o.vp = pos
        def chk(p, typ, r):
            nonlocal bad
            h = hazard(p, o, typ, r)
            if o.vp - p.vp - 1 < h: bad += 1; print("HAZARD", typ, r, "|", p.text, "->", o.text, o.vp - p.vp - 1, h)
            if p.seq > o.seq: bad += 1; print("ORDER", typ, r, p.text, "->", o.text)
        for r in o.R:
            if r in lw: chk(lw[r], "RAW", r)
        for r in o.W:
            if r in lw and lw[r] is not o: chk(lw[r], "WAW", r)
            for q in rd.get(r, ()):
                if q is not o: chk(q, "WAR", r)
        for r in o.R: rd.setdefault(r, []).append(o)
        for r in o.W: lw[r] = o; rd[r] = []
        pos += 1
    return bad
def est_cycles(out):
    t = 0; pipe = 0
    for o in out:
        if o.kind == "mfma":
            occ = getattr(o, 'occ', o.passes); t = max(t, pipe); pipe = t + 4 * occ; t += 4 * (occ - o.free)
        elif o.kind == "nop": t += 4 * (int(o.text.split()[1]) + 1)
        else: t += 4 * o.cost
    return t
```

```python
import sys, math, struct
from sched import *
NAME = "standalone__factorization_afm__recsys"
opts = dict(z8="shl", epb="2", um="xz", sm="2,5,17", late="8", ye="36", pf="6", nt="xyzi"); opts.update(dict(a.split("=") for a in sys.argv[1:] if "=" in a))
LAT_FAR = int(opts.get("latfar", 450)); LAT_NEAR = int(opts.get("latnear", 300))
DBG = int(opts.get("dbg", 0)); PF = int(opts.get("pf", 2))
TOUCH = int(opts.get('touch', 0))
LSP = float(opts.get('lsp', 9))
YE = int(opts.get('ye', 0))
LGB = int(opts.get("lgb", 0))
EPI = float(opts.get("epi", 3.1)); LOOK = int(opts.get("look", 30))
YT = [6,0,4,4,2,3,6,9,3,7,0,1,8,5,3,4]
ZT = [5,2,7,7,9,7,1,0,1,5,4,8,2,9,6,8]
K10 = [("", lambda n: n), ("quad_perm:[1,0,3,2]", lambda n: n ^ 1), ("quad_perm:[2,3,0,1]", lambda n: n ^ 2)]
seen = set(); inval = 0
for k, (_, pi) in enumerate(K10):
    for n in range(16):
        a, b = ZT[n], YT[pi(n)]; key = (min(a, b), max(a, b))
        if a == b or key in seen: inval |= 1 << (16 * k + n)
        else: seen.add(key)
assert len(seen) == 45
POS = [YT.index(c) for c in range(10)]
FULL = "row_mask:0xf bank_mask:0xf"
BIAS = 0; VX = 32; VY = 64; VZ = 96; F = [128, 144]; TMP = 160; ACC = 168; RF = 184; RF2 = 192; D9 = 200; ND9 = 3
MASKC = 212; ES = 216
EM = 226; EMB = 227; SM = 228
SIX = 232; NEGINF = 234; MX = 235; NUM = 236; DEN = 237; TA = 238; TB = 239; TC = 240
IDX = 245; OX = 248; OY = 249; OZ = 250; GOFF = 251; OOFF = 252; VCS = 253; PFR = 254
AW = 0; AN9 = 128; AH = 160; ASEL = 192; AZ = 194
EPB = int(opts.get("epb", 1)); UMS = (opts.get("um", "") + "/" + opts.get("um", "")).split("/")[:2]; UM = UMS[0] + UMS[1]
S_IDX = 4; S_TAB = 6; S_W = 8; S_B = 10; S_H = 12; S_P = 14; S_OUT = 16; S_WAVE = 18; S_MA = 20; S_MB = 40 if 0 else 28; S_MAX = 24; S_T = 26; S_OM = 30; S_IT = 22; S_INC = 23; S_SRD = 36
LN9 = 32768
O_HI = LN9; O_P = LN9 + 320; O_Z = LN9 + 640; O_HH = LN9 + 768; O_B = LN9 + 1024; O_H = LN9 + 1280
CSC = 0.5 * math.log2(math.e)
def f32(x): return "0x%08x" % struct.unpack("<I", struct.pack("<f", x))[0]
L = []
def e(s): L.append("    " + s)
hdr = open("cdna_kernels/%s.s.ref" % NAME).read().split("\n")
for line in hdr:
    if line.startswith("; @launch"):
        L.append("; @launch grid=(256,1,1) block=(256,1,1) lds=34304"); break
    L.append(line)
L += ['.amdgcn_target "amdgcn-amd-amdhsa--gfx950"', ".text", ".globl %s_kernel" % NAME] + ([".p2align 12"] if int(opts.get("pads", 1)) else []) + [".p2align 8",
      ".type %s_kernel,@function" % NAME, "%s_kernel:" % NAME]
NST = [0]
STEPST = int(opts.get('stepst', 0))
def stamp(force=False):
    if DBG and (not STEPST or force): e(f"s_memrealtime s[{40+2*NST[0]}:{41+2*NST[0]}]"); NST[0] += 1
ops = []
TT = [0.0, 0.0]; IT = [0]; MC = [0]
def at(t, inc): TT[0] = t; TT[1] = inc
def push(o): o.it = IT[0]; ops.append(o); return o
def valu(text, R, W, kind="valu", **kw):
    if kind in ("perm", "vmem"): kw["cost"] = 2
    o = Op(text, kind, R, W, prio=round(TT[0] + 1e-4, 3), **kw); TT[0] += TT[1]; return push(o)
def view_load(raw, ireg):
    return [valu(f"global_load_dwordx4 {rng(raw+4*q,4)}, v{ireg}, s[{S_TAB}:{S_TAB+1}] offset:{64*q}", [f"v{ireg}"], vr(raw+4*q,4), "vmem") for q in range(4)]
def wait_for(regs, ls, lat):
    return push(Op("wait", "wait", R=regs, W=regs, covers=ls, lat=lat, prio=round(TT[0] + 1e-4, 3)))
def unpack(V, raw):
    for q in range(16):
        s = raw + q
        valu(f"v_lshlrev_b32 v{V+2*q}, 16, v{s}", [f"v{s}"], [f"v{V+2*q}"])
        valu(f"v_and_b32 v{V+2*q+1}, 0xffff0000, v{s}", [f"v{s}"], [f"v{V+2*q+1}"])
def form(fb, P, ctrl, Q, t0, t1, sfx=''):
    at(t0 + 0.2, (t1 - t0 - 2.5) / 48)
    for i in range(32):
        d = TMP + i % 8
        if ctrl: valu(f"v_mul_f32_dpp v{d}, v{P+i}, v{Q+i} {ctrl} {FULL}{sfx}", [f"v{P+i}", f"v{Q+i}"], [f"v{d}"], "dpp")
        else: valu(f"v_mul_f32 v{d}, v{P+i}, v{Q+i}", [f"v{P+i}", f"v{Q+i}"], [f"v{d}"])
        if i % 2: valu(f"v_cvt_pk_bf16_f32 v{fb+i//2}, v{d-1}, v{d}", [f"v{d-1}", f"v{d}"], [f"v{fb+i//2}"])
def unpack_chunk(V, raw, q):
    for j in range(4 * q, 4 * q + 4):
        s_ = raw + j
        valu(f"v_lshlrev_b32 v{V+2*j}, 16, v{s_}", [f"v{s_}"], [f"v{V+2*j}"])
        valu(f"v_and_b32 v{V+2*j+1}, 0xffff0000, v{s_}", [f"v{s_}"], [f"v{V+2*j+1}"])
def mm(D, A, B, ct, cr):
    MC[0] += 1
    push(mfma(f"v_mfma_f32_16x16x32_bf16 {rng(D,4)}, {rng(A,4,'a')}, {rng(B,4)}, {ct}", vr(D,4), vr(A,4,'a'), vr(B,4), cr))
deferred = []
def smf(D, A, B):
    MC[0] += 1
    o = mfma(f"v_smfmac_f32_16x16x64_bf16 {rng(D,4)}, {rng(A,4,'a')}, {rng(B,8)}, v{SIX}", vr(D,4), vr(A,4,'a') + [f"v{SIX}"], vr(B,8), vr(D,4)); o.free = 1
    push(o)
def step_mm(fb, d9, var, cinit, fin, extra):
    it0 = IT[0]
    for t in range(8):
        acc = ACC + 4 * (t % 4)
        for ks in range(4):
            c = BIAS + 4 * t if ks == 0 else acc
            mm(acc, AW + (t * 4 + ks) * 4, fb + 4 * ks, rng(c, 4), vr(c, 4))
        at(MC[0] - 1 + EPI, 1.0)
        rf = RF if t < 4 else RF2
        for c in range(2):
            d = rf + 2 * (t % 4) + c
            valu(f"v_cvt_pk_bf16_f32 v{d}, |v{acc+2*c}|, |v{acc+2*c+1}|", [f"v{acc+2*c}", f"v{acc+2*c+1}"], [f"v{d}"])
        if t == 1:
            for cb in deferred: cb()
            deferred.clear(); IT[0] = it0
        if t == 2 and cinit is not None:
            ct, cr = ("0", []) if cinit == 0 else (rng(cinit, 4), vr(cinit, 4))
            mm(d9, AZ, fb, ct, cr)
        if t == 3: smf(d9, AN9 + 8 * var, fb)
        if t == 5: smf(d9, AH + 8 * var, RF)
        if t == 6: smf(d9, AN9 + 8 * var + 4, fb + 8)
        for cb in extra.get(t, []): cb()
        IT[0] = it0
    def late():
        IT[0] = it0
        smf(d9, AH + 8 * var + 4, RF2)
        if fin: fin()
    deferred.append(late)
def swap(w, a, b): valu(f"v_permlane{w}_swap_b32 v{a}, v{b}", [f"v{a}", f"v{b}"], [f"v{a}", f"v{b}"], "perm")
def add(d, a, b): valu(f"v_add_f32 v{d}, v{a}, v{b}", [f"v{a}", f"v{b}"], [f"v{d}"])
def mov(d, a): valu(f"v_mov_b32 v{d}, v{a}", [f"v{a}"], [f"v{d}"])
def tred(r):
    swap(32, r, r+2); add(r, r, r+2); swap(32, r+1, r+3); add(r+1, r+1, r+3); swap(16, r, r+1); add(r, r, r+1)
def softmax(ES, odd, t0, t1, t2):
    E = [x[0] for x in ES]
    osm = len(ops)
    at(t0, (t1 - t0) / 11)
    valu(f"v_max3_f32 v{MX}, v{E[0]}, v{E[1]}, v{E[2]}", [f"v{x}" for x in E[:3]], [f"v{MX}"])
    valu(f"v_max3_f32 v{MX}, v{MX}, v{E[3]}, v{E[4]}", [f"v{MX}", f"v{E[3]}", f"v{E[4]}"], [f"v{MX}"])
    valu(f"v_max_f32 v{MX}, v{MX}, v{E[5]}", [f"v{MX}", f"v{E[5]}"], [f"v{MX}"])
    for c in ("row_ror:8 " + FULL, "row_ror:4 " + FULL, "row_ror:2 " + FULL, "row_ror:1 " + FULL, "row_bcast:15 row_mask:0xa bank_mask:0xf", "row_bcast:31 row_mask:0xc bank_mask:0xf"):
        valu(f"v_max_f32_dpp v{MX}, v{MX}, v{MX} {c}", [f"v{MX}"], [f"v{MX}"], "dpp")
    valu(f"v_mul_f32 v{MX}, v{VCS}, v{MX}", [f"v{MX}", f"v{VCS}"], [f"v{MX}"])
    valu(f"v_readlane_b32 s{S_MAX}, v{MX}, 63", [f"v{MX}"], [f"s{S_MAX}"], "readlane")
    at(t1, (t2 - t1) / 28)
    for i, (x, s) in enumerate(ES):
        valu(f"v_fma_f32 v{x}, v{x}, v{VCS}, -s{S_MAX}", [f"s{S_MAX}", f"v{x}", f"v{VCS}"], [f"v{x}"])
        valu(f"v_exp_f32 v{x}, v{x}", [f"v{x}"], [f"v{x}"], "trans", cost=2)
        if i == 0: valu(f"v_mul_f32 v{NUM}, v{x}, v{s}", [f"v{x}", f"v{s}"], [f"v{NUM}"])
        else: valu(f"v_fmac_f32 v{NUM}, v{x}, v{s}", [f"v{x}", f"v{s}", f"v{NUM}"], [f"v{NUM}"])
        if i == 1: add(DEN, ES[0][0], x)
        elif i > 1: add(DEN, DEN, x)
    swap(32, NUM, DEN)
    o1 = len(ops)
    if EPB == 1: mov(TC, TB); mov(TB, TA); add(TA, NUM, DEN)
    elif odd: add(TB, NUM, DEN)
    else: mov(TC, TA); add(TA, NUM, DEN)
    for o in ops[o1:]: o.rot = True
    for o in ops[osm:]: o.sm = True
def salu(text, R, W): return valu(text, R, W, "salu")
BASE = [("ror", t) for t in range(1, 8)] + [("star", 0)] + [("k10", k) for k in range(3)] + [("star", c) for c in range(1, 10)]
def steps_of(el):
    if EPB == 1: return [("ror8", 8)] + BASE
    return BASE if el % 2 == 0 else [("mrg", 8)] + BASE
def fbuf(steps, si):
    off = len(steps) - 20
    return VZ if si == 0 else F[(si - off) % 2]
def do_form(steps, si, t0, t1):
    kind, a = steps[si]; fb = fbuf(steps, si)
    if kind == "star": form(fb, VY, f"row_newbcast:{POS[a]}", VX, t0, t1)
    elif kind == "k10": form(fb, VY, K10[a][0], VZ, t0, t1)
    elif kind == "ror8": form(fb, VX, "row_shl:8", VX, t0, t1, " bound_ctrl:0")
    else: form(fb, VX, f"row_ror:{a}", VX, t0, t1)
YT0, YT1, ZT0, ZT1 = [float(x) for x in opts.get("yz", "3,5.5,5.3,7.3").split(",")]
SM0, SM1, SM2 = [float(x) for x in opts.get("sm", "0.3,1.5,3.6").split(",")]
def um_slots(b0, b1):
    return [(int(b0 + (b1 - b0) * (j + 0.5) / 8), int(((b0 + (b1 - b0) * (j + 0.5) / 8) % 1) * 8)) for j in range(8)]
UMP = {"y": um_slots(YT0 + 0.3, YT1 + 0.3), "z": um_slots(ZT0, ZT1 - 0.4), "x": um_slots(float(opts.get("x0", 18.5)), float(opts.get("x1", 19.5)))}
def nm_of(steps, UM):
    off = len(steps) - 20; r = []
    for si in range(len(steps)):
        n = 36 + (1 if si < off or (si - off) % 4 == 0 else 0)
        n += sum(1 for v in UM for (bs, t) in UMP[v] if bs == si - off)
        r.append(n)
    return r
NEL = 5 * EPB; CUT = []; STB = []
d9c = [0]
pend_softmax = None
for el in range(NEL):
    it = el // EPB; nit = (el + 1) // EPB
    steps = steps_of(el); nsteps = steps_of(el + 1); N = len(steps); off = N - 20
    IT[0] = it; B0 = MC[0]
    if el % EPB == 0: CUT.append(B0); d9c[0] = 0
    ST = [0]
    for m in nm_of(steps, UMS[el % 2 if EPB == 2 else 0]): ST.append(ST[-1] + m)
    if it == 2: STB += [B0 - CUT[2] + x for x in ST[:-1]]
    def S(x, B0=B0, ST=ST, off=off, N=N):
        x += off; i = int(math.floor(x))
        return B0 + ST[i] + ((x - i) * (ST[i + 1] - ST[i]) if i < N else 0)
    tiles = []
    if LGB and el % EPB == 0:
        at(B0 + 24, 0); o_ = salu("s_waitcnt lgkmcnt(0)", [], vr(AN9 + 8, 24, 'a') + vr(AH + 8, 24, 'a')); o_.kind = "lgw"; o_.nb = B0 + 20
    o1 = len(ops)
    at(B0 + 1 - YE, LSP); ly = view_load(VY + 16, IDX + 1); TT[0] = max(TT[0], B0 + 1); lz = view_load(VZ + 16, IDX + 2)
    IT[0] = nit
    at(S(float(opts.get('ti', 7.5))), LSP)
    li = [valu(f"buffer_load_dword v{IDX+k}, v{[OX,OY,OZ][k]}, s[{S_SRD}:{S_SRD+3}], s{S_IT} offen offset:{(64 if k else 0) + 104 * (el % EPB)}", [f"v{[OX,OY,OZ][k]}", f"s{S_IT}"], [f"v{IDX+k}"], "vmem") for k in range(3)]
    if el % EPB == EPB - 1:
        salu(f"s_addk_i32 s{S_IT}, {104 * EPB}", [f"s{S_IT}"], [f"s{S_IT}", "scc"]); salu(f"s_cmp_lt_u32 s{S_IT}, {104 * (int(opts.get('iters', 4)) + 1)}", [f"s{S_IT}"], ["scc"])
    for o in ops[o1:]: o.nb = o.prio - 1
    IT[0] = it
    if el == 0: do_form(steps, 0, -40, 0) if steps[0][0] != "mrg" else None
    extra = {}
    def sched_unpack(v, V, raw, loads, t0, t1, itv, pre=None, post=None):
        if v in UMS[el % 2 if EPB == 2 else 0]:
            for j, (bs, t) in enumerate(UMP[v]):
                def cb(j=j):
                    IT[0] = itv
                    if j == 0: at(MC[0] - 3, 0); wait_for(vr(raw,16), loads(), LAT_FAR)
                    if pre and j % 2 == 0: pre(j // 2)
                    mm(V + 4 * j, ASEL + 4 * (j % 2), raw + 4 * (j // 2), "0", [])
                    if post and j % 2 == 1: post(j // 2)
                extra.setdefault((bs + off, t), []).append(cb)
        else:
            def now():
                IT[0] = itv
                at(t0, 0); wait_for(vr(raw,16), loads(), LAT_FAR)
                for q in range(4):
                    if pre: pre(q)
                    at(t0 + (t1 - t0) * q / 4, (t1 - t0) / 32); unpack_chunk(V, raw, q)
                    if post: post(q)
            return now
    ny = sched_unpack("y", VY, VY + 16, lambda ly=ly: ly, S(YT0), S(YT1), it)
    nz = sched_unpack("z", VZ, VZ + 16, lambda lz=lz: lz, S(ZT0), S(ZT1), it)
    lxh = []
    nk, na = nsteps[0]; nfb = fbuf(nsteps, 0)
    XA, XB = S(float(opts.get("x0", 18.5))), S(float(opts.get("x1", 19.5)))
    def xpre(q):
        if nk != "mrg": return
        at(XA + (XB - XA) * q / 4 - 8, 0.7)
        for i in range(8 * q, 8 * q + 8):
            d = VY + i % 16
            valu(f"v_mul_f32_dpp v{d}, v{VX+i}, v{VX+i} row_shl:8 {FULL} bound_ctrl:0", [f"v{VX+i}"], [f"v{d}"], "dpp")
    def xpost(q, S=S):
        ta, tb = S(19.2), S(20) - 2.5
        at(ta + (tb - ta) * q / 4, (tb - ta) / 48)
        for i in range(8 * q, 8 * q + 8):
            if nk == "mrg":
                d = VY + i % 16
                valu(f"v_mul_f32_dpp v{d}, v{VX+i}, v{VX+i} row_shr:8 row_mask:0xf bank_mask:0xc", [f"v{VX+i}", f"v{d}"], [f"v{d}"], "dpp")
            else:
                d = TMP + i % 8
                ctl = f"row_shl:8 {FULL} bound_ctrl:0" if nk == "ror8" else f"row_ror:{na} {FULL}"
                valu(f"v_mul_f32_dpp v{d}, v{VX+i}, v{VX+i} {ctl}", [f"v{VX+i}"], [f"v{d}"], "dpp")
            if i % 2: valu(f"v_cvt_pk_bf16_f32 v{nfb+i//2}, v{d-1}, v{d}", [f"v{d-1}", f"v{d}"], [f"v{nfb+i//2}"])
    nx = sched_unpack("x", VX, VZ + 16, lambda lxh=lxh: lxh, XA, XB, nit, xpre, xpost)
    for si in range(N):
        kind, a = steps[si]; bs = si - off
        if bs == 6 and ny: ny(); IT[0] = it
        if bs == (11 if YE else 7) and nz: nz(); IT[0] = it
        if si + 1 < N: do_form(steps, si + 1, S(bs), S(bs + 1))
        if bs == 9:
            IT[0] = nit
            at(S(float(opts.get('tx', 11.2))), 2.0); wait_for(vr(IDX,3), li, LAT_NEAR)
            for k in range(3): valu(f"v_lshl_add_u32 v{IDX+k}, v{IDX+k}, 8, v{GOFF}", [f"v{IDX+k}", f"v{GOFF}"], [f"v{IDX+k}"])
            TT[1] = LSP; o2 = len(ops)
            lxh += view_load(VZ + 16, IDX)
            for o in ops[o2:]: o.nb = o.prio - 1
            IT[0] = it
        if bs == 19 and nx: nx(); IT[0] = it
        fb = fbuf(steps, si)
        ex = {t: extra[(si, t)] for t in range(8) if (si, t) in extra}
        if bs < 0:
            d9 = D9 + 4 * (d9c[0] % ND9); d9c[0] += 1
            def fin(S=S, d9=d9, kind=kind, ps=pend_softmax):
                at(MC[0] + 4 if kind == "mrg" else S(SM1 + (SM2 - SM1) / 6 - 0.5), 2.0)
                add(d9, d9, d9 + 1)
                valu(f"v_cndmask_b32 v{EM}, v{NEGINF}, v{d9}, s[{S_MA}:{S_MA+1}]", [f"v{NEGINF}", f"v{d9}"], [f"v{EM}"])
                if kind == "mrg": valu(f"v_cndmask_b32 v{EMB}, v{NEGINF}, v{d9}, s[{S_MB}:{S_MB+1}]", [f"v{NEGINF}", f"v{d9}"], [f"v{EMB}"])
                add(SM, d9 + 2, d9 + 3)
                if kind == "mrg": ps(S(SM0 + 0.4), S(SM1 + 0.4), S(SM2 + 0.4))
            step_mm(fb, d9, 0, 0, fin, ex)
        else:
            var = bs % 4
            if var == 0: d9 = D9 + 4 * (d9c[0] % ND9); d9c[0] += 1
            fin = None
            if var == 3:
                de = ES + 2 * (bs // 4)
                tiles.append((de, de + 1))
                def fin(d9=d9, de=de, last=(bs == 19), tiles=tiles, el=el):
                    at(MC[0] + 4, 3.0)
                    add(de, d9, d9 + 1); add(de + 1, d9 + 2, d9 + 3)
                    if last and (EPB == 1 or el % 2 == 1):
                        b1 = MC[0] - 9
                        softmax([(EM if EPB == 1 else EMB, SM)] + tiles, True, b1 + 37 * SM0 + 9, b1 + 37 * SM1, b1 + 37 * SM2)
            step_mm(fb, d9, var, (MASKC if bs == 8 else 0) if var == 0 else None, fin, ex)
    pend_softmax = lambda t0, t1, t2, tiles=tiles: softmax(tiles + [(EM, SM)], False, t0, t1, t2)
for cb in deferred: cb()
ST = STB
out, st = schedule(ops, look=LOOK, late=float(opts.get('late', 4)))
bad = verify(out)
assert bad == 0
lines = finalize(out)
cuts = [i for i, o in enumerate(out) if o.kind == "mfma" and o.g in CUT]
s1 = lines[cuts[2]:cuts[3]]; s2 = lines[cuts[3]:cuts[4]]
if s1 != s2:
    for i, (a, b) in enumerate(zip(s1, s2)):
        if a != b: print("diff at", i, len(s1), len(s2), s1[i-3:i+3], s2[i-3:i+3], file=sys.stderr); break
    raise SystemExit("body not periodic")
body = s1; bops = out[cuts[2]:cuts[3]]
pre_ops = [o for o in out[:cuts[2]] if o.kind != "nop" and o.it >= 2]
post_ops = [o for o in bops if o.kind != "nop" and o.it == 1]
assert sum(1 for o in pre_ops if o.kind == 'vmem') == (11 if YE else 7) and sum(1 for o in pre_ops if o.kind == 'salu') == 2
nm = sum(1 for o in bops if o.kind == "mfma"); nf = sum(o.cost for o in bops if o.kind not in ("mfma", "nop"))
print(st, "body len", len(body), "est cycles/iter", est_cycles(bops), "issue", sum(4 * (4 - o.free) for o in bops if o.kind == "mfma") + nf * 4, "pipe", nm * 16, "pre", len(pre_ops), "post", len(post_ops), "nops in body", sum(1 for o in bops if o.kind == "nop"), file=sys.stderr)
if int(opts.get("prof", 0)):
    seg = []; cur_ = []; nm_ = 0
    for o in bops:
        if o.kind == "mfma":
            if nm_ in ST and cur_: seg.append(cur_); cur_ = []
            nm_ += 1
        cur_.append(o)
    seg.append(cur_)
    from collections import Counter
    for i, sg in enumerate(seg): print(i, est_cycles(sg + [sg[0]]) - 8, dict(Counter(o.kind for o in sg)), file=sys.stderr)
e("s_cmp_ge_u32 s2, 256"); e("s_cbranch_scc1 L_done")
stamp()
e("s_load_dwordx4 s[4:7], s[0:1], 0"); e("s_load_dwordx4 s[8:11], s[0:1], 32")
e("s_load_dwordx4 s[12:15], s[0:1], 48"); e("s_load_dwordx2 s[16:17], s[0:1], 64")
T = VY
vN, vG, vL, vW0, vW1, vWN, vPF, vSM, vT0, vT1, vT2, vWV, vTR, vNA = T, T+1, T+2, T+3, T+4, T+5, T+6, T+7, T+8, T+9, T+10, T+11, T+12, T+20
vHA = VY + 24; vBA = VY + 28
vm = []; dsq = []
def vmem(s, tag): e(s); vm.append(tag)
def vwait(tag):
    last = max(i for i, t in enumerate(vm) if t == tag)
    e(f"s_waitcnt vmcnt({len(vm) - 1 - last})")
def ds(s, tag): e(s); dsq.append(tag)
def dwait(tag):
    last = max(i for i, t in enumerate(dsq) if t == tag)
    e(f"s_waitcnt lgkmcnt({min(15, len(dsq) - 1 - last)})")
def pf_addr():
    e("s_getpc_b64 s[32:33]")
    L.append("L_pfbase:")
    e(f"v_lshlrev_b32 v{vPF}, 7, v0")
    e(f"v_min_u32 v{vPF}, L_end-L_pfbase-4, v{vPF}")
def pf_load():
    vmem(f"global_load_dword v{PFR}, v{vPF}, s[32:33]", "pf")
    if EPB == 2:
        e(f"v_add_u32 v{vPF}, 0x8000, v{vPF}"); e(f"v_min_u32 v{vPF}, L_end-L_pfbase-4, v{vPF}")
        vmem(f"global_load_dword v{PFR+1}, v{vPF}, s[32:33]", "pf")
EARLY = int(opts.get("early", 1))
if PF == 3: pf_addr(); pf_load()
e(f"v_lshrrev_b32 v{vWV}, 6, v0")
e(f"v_and_b32 v{vN}, 15, v0")
e(f"v_readfirstlane_b32 s{S_WAVE}, v{vWV}")
if PF == 6:
    NL = int(opts.get("nl", 6 if EPB == 2 else 3))
    e("s_getpc_b64 s[32:33]")
    L.append("L_pfbase:")
    e("s_getreg_b32 s3, hwreg(HW_REG_HW_ID, 13, 2)"); e("s_getreg_b32 s19, hwreg(HW_REG_HW_ID, 8, 2)"); e("s_lshl2_add_u32 s3, s3, s19")
    e("s_getreg_b32 s19, hwreg(HW_REG_HW_ID, 4, 2)"); e("s_lshl2_add_u32 s3, s3, s19"); e(f"s_mul_i32 s3, s3, {NL * 128}")
    e(f"v_min_u32 v{vPF}, {NL - 1}, v{vN}"); e(f"v_lshl_add_u32 v{vPF}, v{vPF}, 7, s3"); e(f"v_min_u32 v{vPF}, L_end-L_pfbase-4, v{vPF}")
    vmem(f"global_load_dword v{PFR}, v{vPF}, s[32:33]", "pf")
    L.append(f".if (L_end-L_pfbase) > {64 * NL * 128}\n.error \"prefetch does not cover the code\"\n.endif") if 0 else None
if PF == 5:
    NL = int(opts.get("nl", 6)); CM = int(opts.get("cm", 15))
    e("s_getpc_b64 s[32:33]")
    L.append("L_pfbase:")
    e(f"s_bfe_u32 s3, s2, {3 | (CM.bit_length() << 16)}"); e("s_lshl_b32 s3, s3, 2"); e(f"s_add_u32 s3, s3, s{S_WAVE}"); e(f"s_mul_i32 s3, s3, {NL * 128}")
    e(f"v_min_u32 v{vPF}, {NL - 1}, v{vN}"); e(f"v_lshl_add_u32 v{vPF}, v{vPF}, 7, s3"); e(f"v_min_u32 v{vPF}, L_end-L_pfbase-4, v{vPF}")
    vmem(f"global_load_dword v{PFR}, v{vPF}, s[32:33]", "pf")
e(f"s_lshl_b32 s3, s2, 2"); e(f"s_add_u32 s3, s3, s{S_WAVE}")
e(f"s_mul_i32 s19, s3, 416")
e(f"v_lshl_add_u32 v{OX}, v{vN}, 2, s19")
e(f"v_bfe_u32 v{vG}, v0, 4, 2")
e(f"s_lshl_b32 s{S_T}, s{S_WAVE}, 13")
e(f"v_lshrrev_b32 v{vT2}, 1, v{vN}")
e(f"v_xor_b32 v{vT0}, v{vT2}, v{vG}")
e(f"v_lshlrev_b32 v{vT0}, 5, v{vT0}")
e(f"v_and_b32 v{vT1}, 1, v0")
e(f"v_lshl_add_u32 v{vT0}, v{vT1}, 4, v{vT0}")
e(f"v_lshl_add_u32 v{vT0}, v{vG}, 8, v{vT0}")
e(f"v_add_u32 v{vW0}, s{S_T}, v{vT0}")
e(f"v_xor_b32 v{vW1}, 0x80, v{vW0}")
e(f"s_add_u32 s{S_T+1}, s{S_T}, 0x1000")
e(f"s_mov_b32 m0, s{S_T}")
def part2():
    e(f"v_lshlrev_b32 v{GOFF}, 4, v{vG}")
    e(f"v_and_b32 v{vL}, 63, v0"); e(f"v_lshlrev_b32 v{vL}, 2, v{vL}")
    e(f"v_lshlrev_b32 v{vSM}, 2, v{vT1}")
    e(f"v_lshl_add_u32 v{vT0}, v{vT2}, 5, v{vSM}"); e(f"v_lshl_add_u32 v{vT0}, v{vG}, 3, v{vT0}")
    e(f"v_cmp_eq_u32 vcc, 0, v{vWV}")
    e(f"v_lshlrev_b32 v{vT1}, 5, v{vT1}"); e(f"v_and_b32 v{vT2}, 3, v{vT2}")
    e(f"v_cndmask_b32 v{vSM}, v{vL}, v{vT0}, vcc")
    e(f"v_lshl_add_u32 v{vT1}, v{vT2}, 3, v{vT1}"); e(f"v_bfe_u32 v{vT2}, v0, 3, 2"); e(f"v_lshl_add_u32 v{vT1}, v{vT2}, 6, v{vT1}")
    e(f"v_bfe_u32 v{vT2}, v0, 5, 1"); e(f"v_lshlrev_b32 v{vT2}, 2, v{vT2}")
    e(f"v_cmp_eq_u32 vcc, 3, v{vWV}")
    e(f"v_add_u32 v{vT1}, v{vT1}, v{vT2}"); e(f"v_and_b32 v{vT0}, 31, v0")
    e(f"v_cndmask_b32 v{vSM}, v{vSM}, v{vT1}, vcc")
    e(f"v_cmp_eq_u32 vcc, 2, v{vWV}")
    e(f"v_lshl_add_u32 v{vT0}, v{vT0}, 3, v{vT2}"); e(f"s_mov_b32 s{S_T+2}, {O_P}")
    e(f"v_cndmask_b32 v{vSM}, v{vSM}, v{vT0}, vcc")
    e(f"s_cmp_eq_u32 s{S_WAVE}, 1"); e(f"s_cselect_b32 s{S_T+2}, {O_H}, s{S_T+2}")
    e(f"s_cmp_eq_u32 s{S_WAVE}, 3"); e(f"s_cselect_b32 s{S_T+2}, {O_HH}, s{S_T+2}")
    e(f"s_cmp_eq_u32 s{S_WAVE}, 0"); e(f"s_cselect_b32 s{S_T+2}, {O_B}, s{S_T+2}")
def part3():
    def nib(tab): return sum(v << (4 * i) for i, v in enumerate(tab))
    e(f"s_mov_b32 s20, 0x{nib(YT) & 0xffffffff:08x}"); e(f"s_mov_b32 s21, 0x{nib(YT) >> 32:08x}")
    e(f"v_lshlrev_b32 v{OZ}, 2, v{vN}")
    e(f"v_lshrrev_b64 v[{vT0}:{vT0+1}], v{OZ}, s[20:21]")
    e(f"s_mov_b32 s22, 0x{nib(ZT) & 0xffffffff:08x}"); e(f"s_mov_b32 s23, 0x{nib(ZT) >> 32:08x}")
    e(f"v_and_b32 v{OY}, 15, v{vT0}")
    e(f"v_lshrrev_b64 v[{vT0}:{vT0+1}], v{OZ}, s[22:23]")
    e(f"v_and_b32 v{OZ}, 15, v{vT0}")
    e(f"v_lshl_add_u32 v{OY}, v{OY}, 2, s19")
    e(f"v_lshl_add_u32 v{OZ}, v{OZ}, 2, s19")
if PF in (1, 2): pf_addr()
if not EARLY: part2()
e("s_waitcnt lgkmcnt(0)")
stamp()
vmem(f"global_load_dword v{IDX}, v{OX}, s[{S_IDX}:{S_IDX+1}]", "idx0")
for half in range(2):
    for q in range(4):
        vmem(f"global_load_lds_dwordx4 v{vW1 if q & 2 else vW0}, s[{S_W}:{S_W+1}] offset:{1024*q}", "wdma")
    if half == 0:
        e(f"v_add_u32 v{vW0}, 0x1000, v{vW0}"); e(f"s_mov_b32 m0, s{S_T+1}"); e(f"v_add_u32 v{vW1}, 0x1000, v{vW1}")
if EARLY: part2()
e(f"s_cselect_b64 s[34:35], s[{S_B}:{S_B+1}], s[{S_H}:{S_H+1}]")
e(f"s_cmp_eq_u32 s{S_WAVE}, 2"); e(f"s_mov_b32 m0, s{S_T+2}"); e(f"s_cselect_b64 s[34:35], s[{S_P}:{S_P+1}], s[34:35]")
vmem(f"global_load_lds_dword v{vSM}, s[34:35]", "wdma")
e(f"v_mov_b32 v{MASKC+1}, 0")
e(f"v_lshrrev_b32 v{vL}, 1, v{vL}")
ds(f"ds_write_b16 v{vL}, v{MASKC+1} offset:{O_Z}", "z")
e(f"v_lshrrev_b32 v{vT0}, 3, v{vN}"); e(f"v_and_b32 v{vT1}, 3, v{vN}"); e(f"v_lshl_or_b32 v{vT0}, v{vT0}, 2, v{vT1}")
e(f"v_lshrrev_b32 v{vT1}, 1, v{vG}"); e(f"v_xor_b32 v{vT0}, v{vT0}, v{vT1}"); e(f"v_lshlrev_b32 v{vT0}, 5, v{vT0}")
e(f"v_and_b32 v{vT1}, 1, v{vG}"); e(f"v_lshl_add_u32 v{vT0}, v{vT1}, 4, v{vT0}"); e(f"v_lshl_add_u32 v{vT0}, v{vN}, 8, v{vT0}")
e(f"v_add_u32 v{vWN}, s{S_T}, v{vT0}")
vWNk = [vWN, vW0, vW1, vSM]
for ks in range(1, 4): e(f"v_xor_b32 v{vWNk[ks]}, {ks << 6}, v{vWN}")
e(f"v_lshrrev_b32 v{vT0}, 2, v{vN}")
e(f"v_lshl_or_b32 v{vT1}, v{vT1}, 2, v{vT0}")
e(f"v_lshl_add_u32 v{vT0}, v{vG}, 3, v{vT0}"); e(f"v_lshlrev_b32 v{vT0}, 8, v{vT0}")
e(f"v_lshl_add_u32 v{vT0}, v{vT1}, 5, v{vT0}")
e(f"v_and_b32 v{vT1}, 3, v{vN}"); e(f"v_lshl_add_u32 v{vTR}, v{vT1}, 3, v{vT0}")
for t in range(1, 8): e(f"v_xor_b32 v{vTR+t}, {t << 5}, v{vTR}")
e(f"v_lshlrev_b32 v{vBA}, 6, v{vG}")
e(f"s_mov_b32 s{S_SRD}, s{S_IDX}"); e(f"s_mov_b32 s{S_SRD+1}, s{S_IDX+1}"); e(f"s_mov_b32 s{S_SRD+2}, {4096*104}"); e(f"s_mov_b32 s{S_SRD+3}, 0x00020000")
part3()
stamp()
vwait("idx0"); stamp()
e(f"v_lshl_add_u32 v{IDX}, v{IDX}, 8, v{GOFF}")
for q in range(4): vmem(f"global_load_dwordx4 {rng(VZ+16+4*q,4)}, v{IDX}, s[{S_TAB}:{S_TAB+1}] offset:{64*q}", "view0")
for k in range(1, 3): vmem(f"global_load_dword v{IDX+k}, v{[OX,OY,OZ][k]}, s[{S_IDX}:{S_IDX+1}] offset:64", "idx1")
e(f"s_lshl_b32 s3, s3, 3"); e(f"v_lshl_add_u32 v{OOFF}, v{vG}, 1, s3")
PADS = int(opts.get("pads", 1))
def warm():
    e("s_mov_b64 vcc, -1")
    for w in range(3): e(f"s_cmp_eq_u32 s{S_WAVE}, {w}"); e(f"s_cbranch_scc1 L_pad{w}")
    e("s_branch L_pad3")
    L.append("L_resume:")
    e("s_mov_b64 vcc, 0")
if PADS: warm()
vwait("wdma"); e("s_waitcnt lgkmcnt(0)")
stamp(); e("s_barrier"); stamp()
WN = F[0]; HB = ACC; WHA = RF
trs = [f"ds_read_b64_tr_b16 {rng(AW+(t*4+ks)*4+2*u,2,'a')}, v{vTR+t} offset:{8192*ks+1024*u}" for t in range(8) for ks in range(4) for u in range(2)]
fill = []
def f(s_): fill.append(s_)
def smask(r, v): f(f"s_mov_b32 s{r}, 0x{v & 0xffffffff:08x}"); f(f"s_mov_b32 s{r+1}, 0x{v >> 32:08x}")
f(f"s_lshl_b32 s{S_T+1}, s{S_WAVE}, 5"); f(f"v_and_b32 v{vT0}, 12, v{vN}"); f(f"v_add_u32 v{vT2}, s{S_T+1}, v{vT0}")
f(f"v_bfe_u32 v{vT0}, v{vN}, 1, 1"); f(f"v_lshl_add_u32 v{vT2}, v{vT0}, 7, v{vT2}")
f(f"v_and_b32 v{vT1}, 1, v{vN}"); f(f"v_lshl_add_u32 v{vT2}, v{vT1}, 1, v{vT2}")
f(f"v_mul_u32_u24 v{SIX}, 0xaaaa, v{vT1}"); f(f"v_add_u32 v{SIX}, 0x4444, v{SIX}")
vZ, vS9, vSH = vL, vPF, vWV
f(f"v_xor_b32 v{vZ}, 32, v{GOFF}"); f(f"v_add_u32 v{vZ}, {O_Z}, v{vZ}")
f(f"v_lshl_add_u32 v{vSH}, v{vT1}, 7, v{GOFF}"); f(f"v_mul_u32_u24 v{vT0}, 320, v{vT0}"); f(f"v_add3_u32 v{vS9}, v{vSH}, v{vT0}, s{S_OM}")
f(f"v_add_u32 v{vSH}, {O_HH}, v{vSH}")
smask(S_MA, 0x3333333333333333)
f(f"v_cndmask_b32 v{vSH}, v{vZ}, v{vSH}, s[{S_MA}:{S_MA+1}]")
if UM:
    f(f"v_lshlrev_b32 v{vT0}, 4, v{vT1}"); f(f"v_mov_b32 v{vT1}, 0x3f80"); f(f"v_lshlrev_b32 v{vT1}, v{vT0}, v{vT1}")
    smask(S_MB, 0xF0000F0000F0000F)
    f(f"v_cndmask_b32 v{vT1}, 0, v{vT1}, s[{S_MB}:{S_MB+1}]")
    f(f"v_cndmask_b32 v{vT0}, 0, v{vT1}, s[{S_MA}:{S_MA+1}]"); f(f"v_sub_u32 v{vT1}, v{vT1}, v{vT0}")
    f(f"v_accvgpr_write_b32 a{ASEL}, v{vT0}"); f(f"v_accvgpr_write_b32 a{ASEL+1}, v{vT1}")
    f(f"v_accvgpr_write_b32 a{ASEL+6}, v{vT0}"); f(f"v_accvgpr_write_b32 a{ASEL+7}, v{vT1}")
for r in range(4): f(f"v_accvgpr_write_b32 a{AZ+r}, 0")
for var in range(4):
    smask(S_MA, 0x000F000F000F000F << (4 * var))
    f(f"v_cndmask_b32 v{vNA+var}, v{vZ}, v{vS9}, s[{S_MA}:{S_MA+1}]"); f(f"v_cndmask_b32 v{vHA+var}, v{vZ}, v{vSH}, s[{S_MA}:{S_MA+1}]")
f(f"v_mov_b32 v{NEGINF}, 0xff800000"); f(f"v_mov_b32 v{VCS}, {f32(CSC)}")
f(f"v_mov_b32 v{MASKC+2}, 0"); f(f"v_mov_b32 v{MASKC+3}, 0")
smask(S_MA, inval)
f(f"v_cndmask_b32 v{MASKC}, v{MASKC+1}, v{NEGINF}, s[{S_MA}:{S_MA+1}]")
smask(S_MA, 0xff); smask(S_MB, 0xff00); smask(S_OM, 0x0001000100010001); f(f"s_movk_i32 s{S_IT}, 104")
e(f"s_mov_b32 s{S_OM}, {O_HI}")
def tr(n, nf=1):
    for _ in range(n):
        if trs: ds(trs.pop(0), "tr")
        for _ in range(nf):
            if fill: e(fill.pop(0))
for ks in range(4): ds(f"ds_read_b128 {rng(HB+4*ks,4)}, v{GOFF} offset:{O_H+64*ks}", "wn")
for uu in range(2):
    for ks in range(4): ds(f"ds_read_b128 {rng(WN+16*uu+4*ks,4)}, v{vWNk[ks]} offset:{4096*uu}", "wn")
for k in range(4): ds(f"ds_read_b128 {rng(BIAS+16+4*k,4)}, v{vBA} offset:{O_B+16*k}", "bb")
tr(8, 2)
dwait("wn")
for ks in range(4):
    for uu in range(2):
        c = "0" if ks == 0 else rng(WHA+4*uu, 4)
        e(f"v_mfma_f32_16x16x32_bf16 {rng(WHA+4*uu,4)}, {rng(HB+4*ks,4)}, {rng(WN+16*uu+4*ks,4)}, {c}")
        tr(1)
tr(4, 2)
for uu in range(2):
    a = WHA + 4 * uu
    e(f"v_cvt_pk_bf16_f32 v{a+1}, v{a}, v{a}")
    ds(f"ds_write_b16 v{vT2}, v{a+1} offset:{O_HI+16*uu}", "whw")
dwait("bb")
for q in range(16):
    s_ = BIAS + 16 + q
    f(f"v_lshlrev_b32 v{BIAS+2*q}, 16, v{s_}"); f(f"v_and_b32 v{BIAS+2*q+1}, 0xffff0000, v{s_}")
tr(15, 2)
dwait("whw")
e("s_barrier")
for var in range(4):
    for u in range(2):
        trs.append(f"ds_read_b128 {rng(AH+8*var+4*u,4,'a')}, v{vHA+var} offset:{64*u}")
        trs.append(f"ds_read_b128 {rng(AN9+8*var+4*u,4,'a')}, v{vNA+var} offset:{64*u}")
NI = int(opts.get("ni", 0))
tr(len(trs) - max(NI, 16), 2)
while fill: e(fill.pop(0))
tr(len(trs) - NI)
stamp()
assert vm[-6:] == ["view0"] * 4 + ["idx1"] * 2
pre = [o for o in pre_ops if (o.kind in VALUK or o.kind == "mfma") and not o.text.startswith("v_lshl_add_u32")]
pre2 = []
for q in range(4):
    w = Op("wait", "wait", R=vr(VZ+16+4*q,4), W=vr(VZ+16+4*q,4) + ["order"], covers=[], prio=1e5); w.extra_after = 5 - q; pre2.append(w)
for i, o in enumerate(sorted(pre, key=lambda o: o.seq)):
    if o.kind == "mfma": o2 = mfma(o.text, o.W, [r for r in o.R if r in o.AB], [], o.C); pre2.append(o2)
    else: pre2.append(Op(o.text, o.kind, o.R, o.W, prio=i))
w = Op("wait", "wait", R=vr(IDX+1,2), W=vr(IDX+1,2) + ["order"], covers=[], prio=12); w.extra_after = 0; pre2.append(w)
for k in range(1, 3): pre2.append(Op(f"v_lshl_add_u32 v{IDX+k}, v{IDX+k}, 8, v{GOFF}", "valu", [f"v{IDX+k}"], [f"v{IDX+k}"], prio=12))
if YE:
    for q in range(4): pre2.append(Op(f"global_load_dwordx4 {rng(VY+16+4*q,4)}, v{IDX+1}, s[{S_TAB}:{S_TAB+1}] offset:{64*q}", "vmem", [f"v{IDX+1}"], vr(VY+16+4*q,4) + ["order"], prio=int(opts.get("y0", 20)) + 8 * q, cost=2))
po, _ = schedule(pre2, look=1e3); assert verify(po) == 0
pl = finalize(po)
w0 = [i for i, s_ in enumerate(pl) if "vmcnt(2)" in s_][0]
yl = [i for i, s_ in enumerate(pl) if s_.startswith("global_load")]
for i, s_ in enumerate(pl):
    if yl and i == yl[0]: tr(len(trs))
    e(s_)
    if i >= w0 and (i - w0) % int(opts.get("nis", 2)) == 0: tr(1)
tr(len(trs))
e(f"s_waitcnt lgkmcnt({12 if LGB else 0})")
def clone(o, seq):
    if o.kind == "nop": return o
    if o.kind == "mfma": o2 = mfma(o.text, o.W, [r for r in o.R if r in o.AB], [], o.C)
    else: o2 = Op(o.text, o.kind, o.R, o.W)
    o2.seq = seq; return o2
import io, contextlib
for k in range(9):
    chk = [clone(o, i) for i, o in enumerate(po)] + [Op(f"s_nop {k}", "nop")] + [clone(o, 10000 + i) for i, o in enumerate(bops[:40])]
    with contextlib.redirect_stdout(io.StringIO()): nb_ = verify(chk)
    if nb_ == 0: break
assert nb_ == 0
if k: e(f"s_nop {k - 1}")
print("entry nops", k, file=sys.stderr)
if DBG == 4 and int(opts["sa"]) < 0:
    e("s_load_dwordx2 s[98:99], s[0:1], 72"); e("s_waitcnt lgkmcnt(0)"); e("s_not_b32 s34, s40"); e(f"v_mov_b32 v{PFR}, s34"); e(f"v_mov_b32 v{PFR+1}, 0")
    e("s_waitcnt vmcnt(0)"); e("s_mov_b64 exec, 1"); e(f"global_atomic_umax v{PFR+1}, v{PFR}, s[98:99]"); e("s_mov_b64 exec, -1")
if DBG: e("s_mov_b32 s34, 0")
L.append(".p2align 3"); L.append("L_loop:")
if DBG and not STEPST: e("s_mov_b32 m0, s34"); e("s_memrealtime s[32:33]"); e("s_waitcnt lgkmcnt(0)"); e(f"s_movreld_b32 s{40+2*NST[0]}, s32"); e("s_add_u32 s34, s34, 2"); NST[0] += 4
PEEL = int(opts.get("peel", 2))
mi = [i for i, o in enumerate(bops) if o.kind == "mfma"]
xi = mi[ST[-PEEL]] if PEEL else len(bops)
nm_ = 0
for i, s in enumerate(body):
    if i == xi: e("s_cbranch_scc0 L_tail")
    if s.startswith("v_mfma") or s.startswith("v_smfmac"):
        if STEPST and nm_ in ST[::STEPST]: stamp(True)
        nm_ += 1
    e(s)
if STEPST: stamp(True)
if PEEL: e("s_branch L_loop"); L.append(".p2align 6"); L.append("L_tail:")
else: e("s_cbranch_scc1 L_loop")
stamp()
assert not any(o.kind != "nop" and o.it == 1 for o in bops[xi:])
assert not any(o.kind == "salu" for o in bops[xi:])
rest = [o for o in bops[xi:] + out[cuts[3]:cuts[4]] if o.kind != "nop" and o.it == 2 and not getattr(o, "sm", False)]
assert not any(o.kind in ("vmem", "wait") for o in rest)
ops = []; IT[0] = 0; at(1e6, 1)
def dmax():
    for c in ("row_ror:8 " + FULL, "row_ror:4 " + FULL, "row_ror:2 " + FULL, "row_ror:1 " + FULL, "row_bcast:15 row_mask:0xa bank_mask:0xf", "row_bcast:31 row_mask:0xc bank_mask:0xf"):
        valu(f"v_max_f32_dpp v{MX}, v{MX}, v{MX} {c}", [f"v{MX}"], [f"v{MX}"], "dpp")
for o in sorted(rest, key=lambda o: o.seq):
    if o.kind == "mfma":
        o2 = mfma(o.text, o.W, [r for r in o.R if r in o.AB], [], o.C); o2.free = o.free; push(o2)
    else: valu(o.text, o.R, o.W, o.kind, cost=o.cost).prio = 1e5 + o.prio
TL = [(EM if EPB == 1 else EMB, SM)] + [(ES + 2 * q, ES + 2 * q + 1) for q in range(5)]
M1 = 229; FS = 230; S_M2 = S_MAX + 1
valu(f"v_max3_f32 v{MX}, v{TL[0][0]}, v{TL[1][0]}, v{TL[2][0]}", [f"v{x[0]}" for x in TL[:3]], [f"v{MX}"])
valu(f"v_max3_f32 v{MX}, v{MX}, v{TL[3][0]}, v{TL[4][0]}", [f"v{MX}", f"v{TL[3][0]}", f"v{TL[4][0]}"], [f"v{MX}"])
dmax()
valu(f"v_mul_f32 v{M1}, v{VCS}, v{MX}", [f"v{MX}", f"v{VCS}"], [f"v{M1}"])
valu(f"v_readlane_b32 s{S_MAX}, v{M1}, 63", [f"v{M1}"], [f"s{S_MAX}"], "readlane")
valu(f"v_mov_b32 v{M1}, s{S_MAX}", [f"s{S_MAX}"], [f"v{M1}"])
for i, (x, s_) in enumerate(TL[:5]):
    valu(f"v_fma_f32 v{x}, v{x}, v{VCS}, -s{S_MAX}", [f"s{S_MAX}", f"v{x}", f"v{VCS}"], [f"v{x}"])
    valu(f"v_exp_f32 v{x}, v{x}", [f"v{x}"], [f"v{x}"], "trans", cost=2)
    if i == 0: valu(f"v_mul_f32 v{NUM}, v{x}, v{s_}", [f"v{x}", f"v{s_}"], [f"v{NUM}"])
    else: valu(f"v_fmac_f32 v{NUM}, v{x}, v{s_}", [f"v{x}", f"v{s_}", f"v{NUM}"], [f"v{NUM}"])
    if i == 1: add(DEN, TL[0][0], x)
    elif i > 1: add(DEN, DEN, x)
swap(16, TC, TB); add(TC, TC, TB)
for c in (8, 4, 2, 1): valu(f"v_add_f32_dpp v{TC}, v{TC}, v{TC} row_ror:{c} {FULL}", [f"v{TC}"], [f"v{TC}"], "dpp")
x, s_ = TL[5]
valu(f"v_max_f32 v{MX}, v{MX}, v{x}", [f"v{MX}", f"v{x}"], [f"v{MX}"])
dmax()
valu(f"v_mul_f32 v{MX}, v{VCS}, v{MX}", [f"v{MX}", f"v{VCS}"], [f"v{MX}"])
valu(f"v_readlane_b32 s{S_M2}, v{MX}, 63", [f"v{MX}"], [f"s{S_M2}"], "readlane")
valu(f"v_fma_f32 v{x}, v{x}, v{VCS}, -s{S_M2}", [f"s{S_M2}", f"v{x}", f"v{VCS}"], [f"v{x}"])
valu(f"v_subrev_f32 v{FS}, s{S_M2}, v{M1}", [f"s{S_M2}", f"v{M1}"], [f"v{FS}"])
valu(f"v_exp_f32 v{x}, v{x}", [f"v{x}"], [f"v{x}"], "trans", cost=2)
valu(f"v_exp_f32 v{FS}, v{FS}", [f"v{FS}"], [f"v{FS}"], "trans", cost=2)
valu(f"v_mul_f32 v{s_}, v{x}, v{s_}", [f"v{x}", f"v{s_}"], [f"v{s_}"])
valu(f"v_fma_f32 v{DEN}, v{DEN}, v{FS}, v{x}", [f"v{DEN}", f"v{FS}", f"v{x}"], [f"v{DEN}"])
valu(f"v_fma_f32 v{NUM}, v{NUM}, v{FS}, v{s_}", [f"v{NUM}", f"v{FS}", f"v{s_}"], [f"v{NUM}"])
swap(32, NUM, DEN); add(NUM, NUM, DEN)
swap(16, TA, NUM); add(TA, TA, NUM)
for c in (8, 4, 2, 1): valu(f"v_add_f32_dpp v{TA}, v{TA}, v{TA} row_ror:{c} {FULL}", [f"v{TA}"], [f"v{TA}"], "dpp")
swap(32, TC, TA)
valu(f"v_rcp_f32 v{TA}, v{TA}", [f"v{TA}"], [f"v{TA}"], "trans", cost=2)
valu(f"v_mul_f32 v{TC}, v{TC}, v{TA}", [f"v{TC}", f"v{TA}"], [f"v{TC}"])
valu(f"v_cvt_pk_bf16_f32 v{TC}, v{TC}, v{TC}", [f"v{TC}"], [f"v{TC}"])
NP = 24
pref = []
for o in [o for o in bops[:xi] if o.kind != "nop"][-NP:]:
    if o.kind == "mfma": o2 = mfma(o.text, o.W, [r for r in o.R if r in o.AB], [], o.C); o2.free = o.free
    else: o2 = Op(o.text, "salu" if o.kind in ("wait", "vmem") else o.kind, o.R, o.W, prio=0, cost=o.cost)
    pref.append(o2)
assert not any(o.kind == "nop" for o in bops[xi - NP:xi])
to, _ = schedule(pref + ops, look=1e9, fixed=NP); assert verify(to) == 0
to = to[NP:]
print("peeled part est", est_cycles(bops[xi:]), file=sys.stderr)
print("tail est", est_cycles(to), "pre est", est_cycles(po), file=sys.stderr)
for s in finalize(to): e(s)
stamp()
if DBG == 4:
    a_, b_, K_ = int(opts["sa"]), int(opts["sb"]), int(opts["sk"])
    if b_ < 0: b_ += NST[0]
    e("s_waitcnt lgkmcnt(0)")
    if a_ >= 0:
        e(f"s_sub_u32 s34, s{40+2*b_}, s{40+2*a_}")
    else:
        e("v_mov_b32 v1, 0"); e("global_load_dword v2, v1, s[98:99] sc1"); e("s_waitcnt vmcnt(0)"); e("v_readfirstlane_b32 s34, v2"); e("s_nop 3")
        e("s_not_b32 s34, s34"); e(f"s_sub_u32 s34, s{40+2*b_}, s34")
    if int(opts.get("sc", 0)):
        for i, l in enumerate(L): L[i] = l.replace("s_memrealtime", "s_memtime")
        e("s_lshr_b32 s34, s34, 4")
    e("s_min_u32 s34, s34, 10000"); e(f"s_mul_i32 s34, s34, {K_}"); e("s_min_u32 s34, s34, 20000")
    stamp(); e("s_waitcnt lgkmcnt(0)")
    L.append("L_spin:")
    e("s_memrealtime s[32:33]"); e("s_waitcnt lgkmcnt(0)")
    e(f"s_sub_u32 s35, s32, s{40+2*(NST[0]-1)}"); e("s_cmp_lt_u32 s35, s34"); e("s_cbranch_scc1 L_spin")
if DBG == 1:
    e("s_load_dwordx2 s[34:35], s[0:1], 80"); e("s_waitcnt lgkmcnt(0)")
    e("s_lshl_b32 s3, s3, 4"); e(f"v_mov_b32 v1, s3")
    for k in range(NST[0]):
        e(f"v_mov_b32 v2, s{40+2*k}"); e(f"global_store_dword v1, v2, s[34:35] offset:{4*k}")
    e(f"v_mov_b32 v2, {NST[0]}"); e(f"global_store_dword v1, v2, s[34:35] offset:124")
e(f"s_mov_b64 exec, s[{S_OM}:{S_OM+1}]")
e(f"global_store_short v{OOFF}, v{TC}, s[{S_OUT}:{S_OUT+1}]")
L.append("L_done:")
e("s_endpgm")
L.append("L_end:")
L += ['.section .rodata,"a"', ".p2align 6", ".amdhsa_kernel %s_kernel" % NAME,
      "  .amdhsa_next_free_vgpr 512", "  .amdhsa_next_free_sgpr %d" % (100 if DBG else 40), "  .amdhsa_accum_offset 256",
      "  .amdhsa_group_segment_fixed_size 0", "  .amdhsa_kernarg_size 88", "  .amdhsa_user_sgpr_count 2",
      "  .amdhsa_user_sgpr_kernarg_segment_ptr 1", "  .amdhsa_system_sgpr_workgroup_id_x 1",
      "  .amdhsa_float_denorm_mode_32 3",
      ".end_amdhsa_kernel"]
NT = opts.get("nt", "")
import re
for i, l in enumerate(L):
    m = re.match(r"\s+global_load_dwordx4 v\[\d+:\d+\], v(\d+), s\[6:7\]", l)
    if m and "xyz"[int(m.group(1)) - IDX] in NT: L[i] = l + " nt"
    if "i" in NT and (re.match(r"\s+global_load_dword v\d+, v\d+, s\[4:5\]", l) or "buffer_load_dword" in l): L[i] = l + " nt"
    if "w" in NT and "global_load_lds" in l: L[i] = l + " nt"
    if "p" in NT and "s[32:33]" in l and "global_load" in l: L[i] = l + " nt"
if PADS:
    import subprocess, tempfile, os
    def sizes(lines):
        txt = "\n".join(lines)
        for w in range(4): txt = txt.replace(f"L_pad{w}", "L_resume")
        with tempfile.TemporaryDirectory() as d:
            open(d + "/a.s", "w").write(txt)
            subprocess.run(["clang", "-x", "assembler", "-target", "amdgcn-amd-amdhsa", "-mcpu=gfx950", "-c", d + "/a.s", "-o", d + "/a.o"], check=True)
            dis = subprocess.run(["llvm-objdump", "-d", "--mcpu=gfx950", d + "/a.o"], capture_output=True, text=True).stdout
        return [(int(m.group(1), 16), len(m.group(2).split()) * 4) for m in re.finditer(r"// ([0-9A-F]{12}): ((?:[0-9A-F]{8} ?)+)", dis)]
    k0 = L.index("%s_kernel:" % NAME); k1 = L.index("L_end:")
    L[k0:k1] = [l for l in L[k0:k1] if not l.startswith(".p2align")]
    k1 = L.index("L_end:")
    sz = sizes(L)
    ins = [i for i in range(k0, k1) if L[i].startswith("    ")]
    assert len(ins) == len(sz), (len(ins), len(sz))
    lo = L.index("L_loop:")
    POFF = int(opts.get("poff", 0))
    newL = L[:k0]; addr = 0; nextp = None; npad = 0; j = 0
    for i in range(k0, k1):
        if i == lo: nextp = (addr // 4096 + 1) * 4096 + POFF
        if L[i - 1] == "L_tail:":
            newL.append(f"L_pad{npad}:"); newL.append(f"    s_cbranch_vccnz PADT{npad}"); npad += 1; addr += 4
        if L[i].startswith("    "):
            if nextp is not None and addr >= nextp and "s_endpgm" not in L[i]:
                newL.append(f"L_pad{npad}:"); newL.append(f"    s_cbranch_vccnz PADT{npad}"); npad += 1; addr += 4; nextp += 4096
            addr += sz[j][1]; j += 1
        newL.append(L[i])
    newL += L[k1:]
    L = [re.sub(r"PADT(\d+)", lambda m: f"L_pad{int(m.group(1)) + 4}" if int(m.group(1)) + 4 < npad else "L_resume", l) for l in newL]
    print("pads", npad, "code bytes", addr, file=sys.stderr)
print("\n".join(L))
```

```python
import sys, math, struct
from sched import *
NAME = "standalone__factorization_afm__recsys"
opts = dict(z8="shl", epb="2", um="xz", sm="2,5,17", late="8", ye="36", pf="6", nt="xyzi"); opts.update(dict(a.split("=") for a in sys.argv[1:] if "=" in a))
LAT_FAR = int(opts.get("latfar", 450)); LAT_NEAR = int(opts.get("latnear", 300))
DBG = int(opts.get("dbg", 0)); PF = int(opts.get("pf", 2))
TOUCH = int(opts.get('touch', 0))
LSP = float(opts.get('lsp', 9))
YE = int(opts.get('ye', 0))
LGB = int(opts.get("lgb", 0))
EPI = float(opts.get("epi", 3.1)); LOOK = int(opts.get("look", 30))
YT = [6,0,4,4,2,3,6,9,3,7,0,1,8,5,3,4]
ZT = [5,2,7,7,9,7,1,0,1,5,4,8,2,9,6,8]
K10 = [("", lambda n: n), ("quad_perm:[1,0,3,2]", lambda n: n ^ 1), ("quad_perm:[2,3,0,1]", lambda n: n ^ 2)]
seen = set(); inval = 0
for k, (_, pi) in enumerate(K10):
    for n in range(16):
        a, b = ZT[n], YT[pi(n)]; key = (min(a, b), max(a, b))
        if a == b or key in seen: inval |= 1 << (16 * k + n)
        else: seen.add(key)
assert len(seen) == 45
POS = [YT.index(c) for c in range(10)]
FULL = "row_mask:0xf bank_mask:0xf"
BIAS = 0; VX = 32; VY = 64; VZ = 96; F = [128, 144]; TMP = 160; ACC = 168; RF = 184; RF2 = 192; D9 = 200; ND9 = 3
MASKC = 212; ES = 216
EM = 226; EMB = 227; SM = 228
SIX = 232; NEGINF = 234; MX = 235; NUM = 236; DEN = 237; TA = 238; TB = 239; TC = 240
IDX = 245; OX = 248; OY = 249; OZ = 250; GOFF = 251; OOFF = 252; VCS = 253; PFR = 254
AW = 0; AN9 = 128; AH = 160; ASEL = 192; AZ = 194
EPB = int(opts.get("epb", 1)); UMS = (opts.get("um", "") + "/" + opts.get("um", "")).split("/")[:2]; UM = UMS[0] + UMS[1]
S_IDX = 4; S_TAB = 6; S_W = 8; S_B = 10; S_H = 12; S_P = 14; S_OUT = 16; S_WAVE = 18; S_MA = 20; S_MB = 40 if 0 else 28; S_MAX = 24; S_T = 26; S_OM = 30; S_IT = 22; S_INC = 23; S_SRD = 36
LN9 = 32768
O_HI = LN9; O_P = LN9 + 320; O_Z = LN9 + 640; O_HH = LN9 + 768; O_B = LN9 + 1024; O_H = LN9 + 1280
CSC = 0.5 * math.log2(math.e)
def f32(x): return "0x%08x" % struct.unpack("<I", struct.pack("<f", x))[0]
L = []
def e(s): L.append("    " + s)
hdr = open("cdna_kernels/%s.s.ref" % NAME).read().split("\n")
for line in hdr:
    if line.startswith("; @launch"):
        L.append("; @launch grid=(256,1,1) block=(256,1,1) lds=34304"); break
    L.append(line)
L += ['.amdgcn_target "amdgcn-amd-amdhsa--gfx950"', ".text", ".globl %s_kernel" % NAME] + ([".p2align 12"] if int(opts.get("pads", 1)) else []) + [".p2align 8",
      ".type %s_kernel,@function" % NAME, "%s_kernel:" % NAME]
NST = [0]
STEPST = int(opts.get('stepst', 0))
def stamp(force=False):
    if DBG and (not STEPST or force): e(f"s_memrealtime s[{40+2*NST[0]}:{41+2*NST[0]}]"); NST[0] += 1
ops = []
TT = [0.0, 0.0]; IT = [0]; MC = [0]
def at(t, inc): TT[0] = t; TT[1] = inc
def push(o): o.it = IT[0]; ops.append(o); return o
def valu(text, R, W, kind="valu", **kw):
    if kind in ("perm", "vmem"): kw["cost"] = 2
    o = Op(text, kind, R, W, prio=round(TT[0] + 1e-4, 3), **kw); TT[0] += TT[1]; return push(o)
def view_load(raw, ireg):
    return [valu(f"global_load_dwordx4 {rng(raw+4*q,4)}, v{ireg}, s[{S_TAB}:{S_TAB+1}] offset:{64*q}", [f"v{ireg}"], vr(raw+4*q,4), "vmem") for q in range(4)]
def wait_for(regs, ls, lat):
    return push(Op("wait", "wait", R=regs, W=regs, covers=ls, lat=lat, prio=round(TT[0] + 1e-4, 3)))
def unpack(V, raw):
    for q in range(16):
        s = raw + q
        valu(f"v_lshlrev_b32 v{V+2*q}, 16, v{s}", [f"v{s}"], [f"v{V+2*q}"])
        valu(f"v_and_b32 v{V+2*q+1}, 0xffff0000, v{s}", [f"v{s}"], [f"v{V+2*q+1}"])
def form(fb, P, ctrl, Q, t0, t1, sfx=''):
    at(t0 + 0.2, (t1 - t0 - 2.5) / 48)
    for i in range(32):
        d = TMP + i % 8
        if ctrl: valu(f"v_mul_f32_dpp v{d}, v{P+i}, v{Q+i} {ctrl} {FULL}{sfx}", [f"v{P+i}", f"v{Q+i}"], [f"v{d}"], "dpp")
        else: valu(f"v_mul_f32 v{d}, v{P+i}, v{Q+i}", [f"v{P+i}", f"v{Q+i}"], [f"v{d}"])
        if i % 2: valu(f"v_cvt_pk_bf16_f32 v{fb+i//2}, v{d-1}, v{d}", [f"v{d-1}", f"v{d}"], [f"v{fb+i//2}"])
def unpack_chunk(V, raw, q):
    for j in range(4 * q, 4 * q + 4):
        s_ = raw + j
        valu(f"v_lshlrev_b32 v{V+2*j}, 16, v{s_}", [f"v{s_}"], [f"v{V+2*j}"])
        valu(f"v_and_b32 v{V+2*j+1}, 0xffff0000, v{s_}", [f"v{s_}"], [f"v{V+2*j+1}"])
def mm(D, A, B, ct, cr):
    MC[0] += 1
    push(mfma(f"v_mfma_f32_16x16x32_bf16 {rng(D,4)}, {rng(A,4,'a')}, {rng(B,4)}, {ct}", vr(D,4), vr(A,4,'a'), vr(B,4), cr))
deferred = []
def smf(D, A, B):
    MC[0] += 1
    o = mfma(f"v_smfmac_f32_16x16x64_bf16 {rng(D,4)}, {rng(A,4,'a')}, {rng(B,8)}, v{SIX}", vr(D,4), vr(A,4,'a') + [f"v{SIX}"], vr(B,8), vr(D,4)); o.free = 1
    push(o)
def step_mm(fb, d9, var, cinit, fin, extra):
    it0 = IT[0]
    for t in range(8):
        acc = ACC + 4 * (t % 4)
        for ks in range(4):
            c = BIAS + 4 * t if ks == 0 else acc
            mm(acc, AW + (t * 4 + ks) * 4, fb + 4 * ks, rng(c, 4), vr(c, 4))
        at(MC[0] - 1 + EPI, 1.0)
        rf = RF if t < 4 else RF2
        for c in range(2):
            d = rf + 2 * (t % 4) + c
            valu(f"v_cvt_pk_bf16_f32 v{d}, |v{acc+2*c}|, |v{acc+2*c+1}|", [f"v{acc+2*c}", f"v{acc+2*c+1}"], [f"v{d}"])
        if t == 1:
            for cb in deferred: cb()
            deferred.clear(); IT[0] = it0
        if t == 2 and cinit is not None:
            ct, cr = ("0", []) if cinit == 0 else (rng(cinit, 4), vr(cinit, 4))
            mm(d9, AZ, fb, ct, cr)
        if t == 3: smf(d9, AN9 + 8 * var, fb)
        if t == 5: smf(d9, AH + 8 * var, RF)
        if t == 6: smf(d9, AN9 + 8 * var + 4, fb + 8)
        for cb in extra.get(t, []): cb()
        IT[0] = it0
    def late():
        IT[0] = it0
        smf(d9, AH + 8 * var + 4, RF2)
        if fin: fin()
    deferred.append(late)
def swap(w, a, b): valu(f"v_permlane{w}_swap_b32 v{a}, v{b}", [f"v{a}", f"v{b}"], [f"v{a}", f"v{b}"], "perm")
def add(d, a, b): valu(f"v_add_f32 v{d}, v{a}, v{b}", [f"v{a}", f"v{b}"], [f"v{d}"])
def mov(d, a): valu(f"v_mov_b32 v{d}, v{a}", [f"v{a}"], [f"v{d}"])
def tred(r):
    swap(32, r, r+2); add(r, r, r+2); swap(32, r+1, r+3); add(r+1, r+1, r+3); swap(16, r, r+1); add(r, r, r+1)
def softmax(ES, odd, t0, t1, t2):
    E = [x[0] for x in ES]
    osm = len(ops)
    at(t0, (t1 - t0) / 11)
    valu(f"v_max3_f32 v{MX}, v{E[0]}, v{E[1]}, v{E[2]}", [f"v{x}" for x in E[:3]], [f"v{MX}"])
    valu(f"v_max3_f32 v{MX}, v{MX}, v{E[3]}, v{E[4]}", [f"v{MX}", f"v{E[3]}", f"v{E[4]}"], [f"v{MX}"])
    valu(f"v_max_f32 v{MX}, v{MX}, v{E[5]}", [f"v{MX}", f"v{E[5]}"], [f"v{MX}"])
    for c in ("row_ror:8 " + FULL, "row_ror:4 " + FULL, "row_ror:2 " + FULL, "row_ror:1 " + FULL, "row_bcast:15 row_mask:0xa bank_mask:0xf", "row_bcast:31 row_mask:0xc bank_mask:0xf"):
        valu(f"v_max_f32_dpp v{MX}, v{MX}, v{MX} {c}", [f"v{MX}"], [f"v{MX}"], "dpp")
    valu(f"v_mul_f32 v{MX}, v{VCS}, v{MX}", [f"v{MX}", f"v{VCS}"], [f"v{MX}"])
    valu(f"v_readlane_b32 s{S_MAX}, v{MX}, 63", [f"v{MX}"], [f"s{S_MAX}"], "readlane")
    at(t1, (t2 - t1) / 28)
    for i, (x, s) in enumerate(ES):
        valu(f"v_fma_f32 v{x}, v{x}, v{VCS}, -s{S_MAX}", [f"s{S_MAX}", f"v{x}", f"v{VCS}"], [f"v{x}"])
        valu(f"v_exp_f32 v{x}, v{x}", [f"v{x}"], [f"v{x}"], "trans", cost=2)
        if i == 0: valu(f"v_mul_f32 v{NUM}, v{x}, v{s}", [f"v{x}", f"v{s}"], [f"v{NUM}"])
        else: valu(f"v_fmac_f32 v{NUM}, v{x}, v{s}", [f"v{x}", f"v{s}", f"v{NUM}"], [f"v{NUM}"])
        if i == 1: add(DEN, ES[0][0], x)
        elif i > 1: add(DEN, DEN, x)
    swap(32, NUM, DEN)
    o1 = len(ops)
    if EPB == 1: mov(TC, TB); mov(TB, TA); add(TA, NUM, DEN)
    elif odd: add(TB, NUM, DEN)
    else: mov(TC, TA); add(TA, NUM, DEN)
    for o in ops[o1:]: o.rot = True
    for o in ops[osm:]: o.sm = True
def salu(text, R, W): return valu(text, R, W, "salu")
BASE = [("ror", t) for t in range(1, 8)] + [("star", 0)] + [("k10", k) for k in range(3)] + [("star", c) for c in range(1, 10)]
def steps_of(el):
    if EPB == 1: return [("ror8", 8)] + BASE
    return BASE if el % 2 == 0 else [("mrg", 8)] + BASE
def fbuf(steps, si):
    off = len(steps) - 20
    return VZ if si == 0 else F[(si - off) % 2]
def do_form(steps, si, t0, t1):
    kind, a = steps[si]; fb = fbuf(steps, si)
    if kind == "star": form(fb, VY, f"row_newbcast:{POS[a]}", VX, t0, t1)
    elif kind == "k10": form(fb, VY, K10[a][0], VZ, t0, t1)
    elif kind == "ror8": form(fb, VX, "row_shl:8", VX, t0, t1, " bound_ctrl:0")
    else: form(fb, VX, f"row_ror:{a}", VX, t0, t1)
YT0, YT1, ZT0, ZT1 = [float(x) for x in opts.get("yz", "3,5.5,5.3,7.3").split(",")]
SM0, SM1, SM2 = [float(x) for x in opts.get("sm", "0.3,1.5,3.6").split(",")]
def um_slots(b0, b1):
    return [(int(b0 + (b1 - b0) * (j + 0.5) / 8), int(((b0 + (b1 - b0) * (j + 0.5) / 8) % 1) * 8)) for j in range(8)]
UMP = {"y": um_slots(YT0 + 0.3, YT1 + 0.3), "z": um_slots(ZT0, ZT1 - 0.4), "x": um_slots(float(opts.get("x0", 18.5)), float(opts.get("x1", 19.5)))}
def nm_of(steps, UM):
    off = len(steps) - 20; r = []
    for si in range(len(steps)):
        n = 36 + (1 if si < off or (si - off) % 4 == 0 else 0)
        n += sum(1 for v in UM for (bs, t) in UMP[v] if bs == si - off)
        r.append(n)
    return r
NEL = 5 * EPB; CUT = []; STB = []
d9c = [0]
pend_softmax = None
for el in range(NEL):
    it = el // EPB; nit = (el + 1) // EPB
    steps = steps_of(el); nsteps = steps_of(el + 1); N = len(steps); off = N - 20
    IT[0] = it; B0 = MC[0]
    if el % EPB == 0: CUT.append(B0); d9c[0] = 0
    ST = [0]
    for m in nm_of(steps, UMS[el % 2 if EPB == 2 else 0]): ST.append(ST[-1] + m)
    if it == 2: STB += [B0 - CUT[2] + x for x in ST[:-1]]
    def S(x, B0=B0, ST=ST, off=off, N=N):
        x += off; i = int(math.floor(x))
        return B0 + ST[i] + ((x - i) * (ST[i + 1] - ST[i]) if i < N else 0)
    tiles = []
    if LGB and el % EPB == 0:
        at(B0 + 24, 0); o_ = salu("s_waitcnt lgkmcnt(0)", [], vr(AN9 + 8, 24, 'a') + vr(AH + 8, 24, 'a')); o_.kind = "lgw"; o_.nb = B0 + 20
    o1 = len(ops)
    at(B0 + 1 - YE, LSP); ly = view_load(VY + 16, IDX + 1); TT[0] = max(TT[0], B0 + 1); lz = view_load(VZ + 16, IDX + 2)
    IT[0] = nit
    at(S(float(opts.get('ti', 7.5))), LSP)
    li = [valu(f"buffer_load_dword v{IDX+k}, v{[OX,OY,OZ][k]}, s[{S_SRD}:{S_SRD+3}], s{S_IT} offen offset:{(64 if k else 0) + 104 * (el % EPB)}", [f"v{[OX,OY,OZ][k]}", f"s{S_IT}"], [f"v{IDX+k}"], "vmem") for k in range(3)]
    if el % EPB == EPB - 1:
        salu(f"s_addk_i32 s{S_IT}, {104 * EPB}", [f"s{S_IT}"], [f"s{S_IT}", "scc"]); salu(f"s_cmp_lt_u32 s{S_IT}, {104 * (int(opts.get('iters', 4)) + 1)}", [f"s{S_IT}"], ["scc"])
    for o in ops[o1:]: o.nb = o.prio - 1
    IT[0] = it
    if el == 0: do_form(steps, 0, -40, 0) if steps[0][0] != "mrg" else None
    extra = {}
    def sched_unpack(v, V, raw, loads, t0, t1, itv, pre=None, post=None):
        if v in UMS[el % 2 if EPB == 2 else 0]:
            for j, (bs, t) in enumerate(UMP[v]):
                def cb(j=j):
                    IT[0] = itv
                    if j == 0: at(MC[0] - 3, 0); wait_for(vr(raw,16), loads(), LAT_FAR)
                    if pre and j % 2 == 0: pre(j // 2)
                    mm(V + 4 * j, ASEL + 4 * (j % 2), raw + 4 * (j // 2), "0", [])
                    if post and j % 2 == 1: post(j // 2)
                extra.setdefault((bs + off, t), []).append(cb)
        else:
            def now():
                IT[0] = itv
                at(t0, 0); wait_for(vr(raw,16), loads(), LAT_FAR)
                for q in range(4):
                    if pre: pre(q)
                    at(t0 + (t1 - t0) * q / 4, (t1 - t0) / 32); unpack_chunk(V, raw, q)
                    if post: post(q)
            return now
    ny = sched_unpack("y", VY, VY + 16, lambda ly=ly: ly, S(YT0), S(YT1), it)
    nz = sched_unpack("z", VZ, VZ + 16, lambda lz=lz: lz, S(ZT0), S(ZT1), it)
    lxh = []
    nk, na = nsteps[0]; nfb = fbuf(nsteps, 0)
    XA, XB = S(float(opts.get("x0", 18.5))), S(float(opts.get("x1", 19.5)))
    def xpre(q):
        if nk != "mrg": return
        at(XA + (XB - XA) * q / 4 - 8, 0.7)
        for i in range(8 * q, 8 * q + 8):
            d = VY + i % 16
            valu(f"v_mul_f32_dpp v{d}, v{VX+i}, v{VX+i} row_shl:8 {FULL} bound_ctrl:0", [f"v{VX+i}"], [f"v{d}"], "dpp")
    def xpost(q, S=S):
        ta, tb = S(19.2), S(20) - 2.5
        at(ta + (tb - ta) * q / 4, (tb - ta) / 48)
        for i in range(8 * q, 8 * q + 8):
            if nk == "mrg":
                d = VY + i % 16
                valu(f"v_mul_f32_dpp v{d}, v{VX+i}, v{VX+i} row_shr:8 row_mask:0xf bank_mask:0xc", [f"v{VX+i}", f"v{d}"], [f"v{d}"], "dpp")
            else:
                d = TMP + i % 8
                ctl = f"row_shl:8 {FULL} bound_ctrl:0" if nk == "ror8" else f"row_ror:{na} {FULL}"
                valu(f"v_mul_f32_dpp v{d}, v{VX+i}, v{VX+i} {ctl}", [f"v{VX+i}"], [f"v{d}"], "dpp")
            if i % 2: valu(f"v_cvt_pk_bf16_f32 v{nfb+i//2}, v{d-1}, v{d}", [f"v{d-1}", f"v{d}"], [f"v{nfb+i//2}"])
    nx = sched_unpack("x", VX, VZ + 16, lambda lxh=lxh: lxh, XA, XB, nit, xpre, xpost)
    for si in range(N):
        kind, a = steps[si]; bs = si - off
        if bs == 6 and ny: ny(); IT[0] = it
        if bs == (11 if YE else 7) and nz: nz(); IT[0] = it
        if si + 1 < N: do_form(steps, si + 1, S(bs), S(bs + 1))
        if bs == 9:
            IT[0] = nit
            at(S(float(opts.get('tx', 11.2))), 2.0); wait_for(vr(IDX,3), li, LAT_NEAR)
            for k in range(3): valu(f"v_lshl_add_u32 v{IDX+k}, v{IDX+k}, 8, v{GOFF}", [f"v{IDX+k}", f"v{GOFF}"], [f"v{IDX+k}"])
            TT[1] = LSP; o2 = len(ops)
            lxh += view_load(VZ + 16, IDX)
            for o in ops[o2:]: o.nb = o.prio - 1
            IT[0] = it
        if bs == 19 and nx: nx(); IT[0] = it
        fb = fbuf(steps, si)
        ex = {t: extra[(si, t)] for t in range(8) if (si, t) in extra}
        if bs < 0:
            d9 = D9 + 4 * (d9c[0] % ND9); d9c[0] += 1
            def fin(S=S, d9=d9, kind=kind, ps=pend_softmax):
                at(MC[0] + 4 if kind == "mrg" else S(SM1 + (SM2 - SM1) / 6 - 0.5), 2.0)
                add(d9, d9, d9 + 1)
                valu(f"v_cndmask_b32 v{EM}, v{NEGINF}, v{d9}, s[{S_MA}:{S_MA+1}]", [f"v{NEGINF}", f"v{d9}"], [f"v{EM}"])
                if kind == "mrg": valu(f"v_cndmask_b32 v{EMB}, v{NEGINF}, v{d9}, s[{S_MB}:{S_MB+1}]", [f"v{NEGINF}", f"v{d9}"], [f"v{EMB}"])
                add(SM, d9 + 2, d9 + 3)
                if kind == "mrg": ps(S(SM0 + 0.4), S(SM1 + 0.4), S(SM2 + 0.4))
            step_mm(fb, d9, 0, 0, fin, ex)
        else:
            var = bs % 4
            if var == 0: d9 = D9 + 4 * (d9c[0] % ND9); d9c[0] += 1
            fin = None
            if var == 3:
                de = ES + 2 * (bs // 4)
                tiles.append((de, de + 1))
                def fin(d9=d9, de=de, last=(bs == 19), tiles=tiles, el=el):
                    at(MC[0] + 4, 3.0)
                    add(de, d9, d9 + 1); add(de + 1, d9 + 2, d9 + 3)
                    if last and (EPB == 1 or el % 2 == 1):
                        b1 = MC[0] - 9
                        softmax([(EM if EPB == 1 else EMB, SM)] + tiles, True, b1 + 37 * SM0 + 9, b1 + 37 * SM1, b1 + 37 * SM2)
            step_mm(fb, d9, var, (MASKC if bs == 8 else 0) if var == 0 else None, fin, ex)
    pend_softmax = lambda t0, t1, t2, tiles=tiles: softmax(tiles + [(EM, SM)], False, t0, t1, t2)
for cb in deferred: cb()
ST = STB
out, st = schedule(ops, look=LOOK, late=float(opts.get('late', 4)))
bad = verify(out)
assert bad == 0
lines = finalize(out)
cuts = [i for i, o in enumerate(out) if o.kind == "mfma" and o.g in CUT]
s1 = lines[cuts[2]:cuts[3]]; s2 = lines[cuts[3]:cuts[4]]
if s1 != s2:
    for i, (a, b) in enumerate(zip(s1, s2)):
        if a != b: print("diff at", i, len(s1), len(s2), s1[i-3:i+3], s2[i-3:i+3], file=sys.stderr); break
    raise SystemExit("body not periodic")
body = s1; bops = out[cuts[2]:cuts[3]]
pre_ops = [o for o in out[:cuts[2]] if o.kind != "nop" and o.it >= 2]
post_ops = [o for o in bops if o.kind != "nop" and o.it == 1]
assert sum(1 for o in pre_ops if o.kind == 'vmem') == (11 if YE else 7) and sum(1 for o in pre_ops if o.kind == 'salu') == 2
nm = sum(1 for o in bops if o.kind == "mfma"); nf = sum(o.cost for o in bops if o.kind not in ("mfma", "nop"))
print(st, "body len", len(body), "est cycles/iter", est_cycles(bops), "issue", sum(4 * (4 - o.free) for o in bops if o.kind == "mfma") + nf * 4, "pipe", nm * 16, "pre", len(pre_ops), "post", len(post_ops), "nops in body", sum(1 for o in bops if o.kind == "nop"), file=sys.stderr)
if int(opts.get("prof", 0)):
    seg = []; cur_ = []; nm_ = 0
    for o in bops:
        if o.kind == "mfma":
            if nm_ in ST and cur_: seg.append(cur_); cur_ = []
            nm_ += 1
        cur_.append(o)
    seg.append(cur_)
    from collections import Counter
    for i, sg in enumerate(seg): print(i, est_cycles(sg + [sg[0]]) - 8, dict(Counter(o.kind for o in sg)), file=sys.stderr)
e("s_cmp_ge_u32 s2, 256"); e("s_cbranch_scc1 L_done")
stamp()
e("s_load_dwordx4 s[4:7], s[0:1], 0"); e("s_load_dwordx4 s[8:11], s[0:1], 32")
e("s_load_dwordx4 s[12:15], s[0:1], 48"); e("s_load_dwordx2 s[16:17], s[0:1], 64")
T = VY
vN, vG, vL, vW0, vW1, vWN, vPF, vSM, vT0, vT1, vT2, vWV, vTR, vNA = T, T+1, T+2, T+3, T+4, T+5, T+6, T+7, T+8, T+9, T+10, T+11, T+12, T+20
vHA = VY + 24; vBA = VY + 28
vm = []; dsq = []
def vmem(s, tag): e(s); vm.append(tag)
def vwait(tag):
    last = max(i for i, t in enumerate(vm) if t == tag)
    e(f"s_waitcnt vmcnt({len(vm) - 1 - last})")
def ds(s, tag): e(s); dsq.append(tag)
def dwait(tag):
    last = max(i for i, t in enumerate(dsq) if t == tag)
    e(f"s_waitcnt lgkmcnt({min(15, len(dsq) - 1 - last)})")
def pf_addr():
    e("s_getpc_b64 s[32:33]")
    L.append("L_pfbase:")
    e(f"v_lshlrev_b32 v{vPF}, 7, v0")
    e(f"v_min_u32 v{vPF}, L_end-L_pfbase-4, v{vPF}")
def pf_load():
    vmem(f"global_load_dword v{PFR}, v{vPF}, s[32:33]", "pf")
    if EPB == 2:
        e(f"v_add_u32 v{vPF}, 0x8000, v{vPF}"); e(f"v_min_u32 v{vPF}, L_end-L_pfbase-4, v{vPF}")
        vmem(f"global_load_dword v{PFR+1}, v{vPF}, s[32:33]", "pf")
EARLY = int(opts.get("early", 1))
if PF == 3: pf_addr(); pf_load()
e(f"v_lshrrev_b32 v{vWV}, 6, v0")
e(f"v_and_b32 v{vN}, 15, v0")
e(f"v_readfirstlane_b32 s{S_WAVE}, v{vWV}")
if PF == 6:
    NL = int(opts.get("nl", 6 if EPB == 2 else 3))
    e("s_getpc_b64 s[32:33]")
    L.append("L_pfbase:")
    e("s_getreg_b32 s3, hwreg(HW_REG_HW_ID, 13, 2)"); e("s_getreg_b32 s19, hwreg(HW_REG_HW_ID, 8, 2)"); e("s_lshl2_add_u32 s3, s3, s19")
    e("s_getreg_b32 s19, hwreg(HW_REG_HW_ID, 4, 2)"); e("s_lshl2_add_u32 s3, s3, s19"); e(f"s_mul_i32 s3, s3, {NL * 128}")
    e(f"v_min_u32 v{vPF}, {NL - 1}, v{vN}"); e(f"v_lshl_add_u32 v{vPF}, v{vPF}, 7, s3"); e(f"v_min_u32 v{vPF}, L_end-L_pfbase-4, v{vPF}")
    vmem(f"global_load_dword v{PFR}, v{vPF}, s[32:33]", "pf")
    L.append(f".if (L_end-L_pfbase) > {64 * NL * 128}\n.error \"prefetch does not cover the code\"\n.endif") if 0 else None
if PF == 5:
    NL = int(opts.get("nl", 6)); CM = int(opts.get("cm", 15))
    e("s_getpc_b64 s[32:33]")
    L.append("L_pfbase:")
    e(f"s_bfe_u32 s3, s2, {3 | (CM.bit_length() << 16)}"); e("s_lshl_b32 s3, s3, 2"); e(f"s_add_u32 s3, s3, s{S_WAVE}"); e(f"s_mul_i32 s3, s3, {NL * 128}")
    e(f"v_min_u32 v{vPF}, {NL - 1}, v{vN}"); e(f"v_lshl_add_u32 v{vPF}, v{vPF}, 7, s3"); e(f"v_min_u32 v{vPF}, L_end-L_pfbase-4, v{vPF}")
    vmem(f"global_load_dword v{PFR}, v{vPF}, s[32:33]", "pf")
e(f"s_lshl_b32 s3, s2, 2"); e(f"s_add_u32 s3, s3, s{S_WAVE}")
e(f"s_mul_i32 s19, s3, 416")
e(f"v_lshl_add_u32 v{OX}, v{vN}, 2, s19")
e(f"v_bfe_u32 v{vG}, v0, 4, 2")
e(f"s_lshl_b32 s{S_T}, s{S_WAVE}, 13")
e(f"v_lshrrev_b32 v{vT2}, 1, v{vN}")
e(f"v_xor_b32 v{vT0}, v{vT2}, v{vG}")
e(f"v_lshlrev_b32 v{vT0}, 5, v{vT0}")
e(f"v_and_b32 v{vT1}, 1, v0")
e(f"v_lshl_add_u32 v{vT0}, v{vT1}, 4, v{vT0}")
e(f"v_lshl_add_u32 v{vT0}, v{vG}, 8, v{vT0}")
e(f"v_add_u32 v{vW0}, s{S_T}, v{vT0}")
e(f"v_xor_b32 v{vW1}, 0x80, v{vW0}")
e(f"s_add_u32 s{S_T+1}, s{S_T}, 0x1000")
e(f"s_mov_b32 m0, s{S_T}")
def part2():
    e(f"v_lshlrev_b32 v{GOFF}, 4, v{vG}")
    e(f"v_and_b32 v{vL}, 63, v0"); e(f"v_lshlrev_b32 v{vL}, 2, v{vL}")
    e(f"v_lshlrev_b32 v{vSM}, 2, v{vT1}")
    e(f"v_lshl_add_u32 v{vT0}, v{vT2}, 5, v{vSM}"); e(f"v_lshl_add_u32 v{vT0}, v{vG}, 3, v{vT0}")
    e(f"v_cmp_eq_u32 vcc, 0, v{vWV}")
    e(f"v_lshlrev_b32 v{vT1}, 5, v{vT1}"); e(f"v_and_b32 v{vT2}, 3, v{vT2}")
    e(f"v_cndmask_b32 v{vSM}, v{vL}, v{vT0}, vcc")
    e(f"v_lshl_add_u32 v{vT1}, v{vT2}, 3, v{vT1}"); e(f"v_bfe_u32 v{vT2}, v0, 3, 2"); e(f"v_lshl_add_u32 v{vT1}, v{vT2}, 6, v{vT1}")
    e(f"v_bfe_u32 v{vT2}, v0, 5, 1"); e(f"v_lshlrev_b32 v{vT2}, 2, v{vT2}")
    e(f"v_cmp_eq_u32 vcc, 3, v{vWV}")
    e(f"v_add_u32 v{vT1}, v{vT1}, v{vT2}"); e(f"v_and_b32 v{vT0}, 31, v0")
    e(f"v_cndmask_b32 v{vSM}, v{vSM}, v{vT1}, vcc")
    e(f"v_cmp_eq_u32 vcc, 2, v{vWV}")
    e(f"v_lshl_add_u32 v{vT0}, v{vT0}, 3, v{vT2}"); e(f"s_mov_b32 s{S_T+2}, {O_P}")
    e(f"v_cndmask_b32 v{vSM}, v{vSM}, v{vT0}, vcc")
    e(f"s_cmp_eq_u32 s{S_WAVE}, 1"); e(f"s_cselect_b32 s{S_T+2}, {O_H}, s{S_T+2}")
    e(f"s_cmp_eq_u32 s{S_WAVE}, 3"); e(f"s_cselect_b32 s{S_T+2}, {O_HH}, s{S_T+2}")
    e(f"s_cmp_eq_u32 s{S_WAVE}, 0"); e(f"s_cselect_b32 s{S_T+2}, {O_B}, s{S_T+2}")
def part3():
    def nib(tab): return sum(v << (4 * i) for i, v in enumerate(tab))
    e(f"s_mov_b32 s20, 0x{nib(YT) & 0xffffffff:08x}"); e(f"s_mov_b32 s21, 0x{nib(YT) >> 32:08x}")
    e(f"v_lshlrev_b32 v{OZ}, 2, v{vN}")
    e(f"v_lshrrev_b64 v[{vT0}:{vT0+1}], v{OZ}, s[20:21]")
    e(f"s_mov_b32 s22, 0x{nib(ZT) & 0xffffffff:08x}"); e(f"s_mov_b32 s23, 0x{nib(ZT) >> 32:08x}")
    e(f"v_and_b32 v{OY}, 15, v{vT0}")
    e(f"v_lshrrev_b64 v[{vT0}:{vT0+1}], v{OZ}, s[22:23]")
    e(f"v_and_b32 v{OZ}, 15, v{vT0}")
    e(f"v_lshl_add_u32 v{OY}, v{OY}, 2, s19")
    e(f"v_lshl_add_u32 v{OZ}, v{OZ}, 2, s19")
if PF in (1, 2): pf_addr()
if not EARLY: part2()
e("s_waitcnt lgkmcnt(0)")
stamp()
vmem(f"global_load_dword v{IDX}, v{OX}, s[{S_IDX}:{S_IDX+1}]", "idx0")
for half in range(2):
    for q in range(4):
        vmem(f"global_load_lds_dwordx4 v{vW1 if q & 2 else vW0}, s[{S_W}:{S_W+1}] offset:{1024*q}", "wdma")
    if half == 0:
        e(f"v_add_u32 v{vW0}, 0x1000, v{vW0}"); e(f"s_mov_b32 m0, s{S_T+1}"); e(f"v_add_u32 v{vW1}, 0x1000, v{vW1}")
if EARLY: part2()
e(f"s_cselect_b64 s[34:35], s[{S_B}:{S_B+1}], s[{S_H}:{S_H+1}]")
e(f"s_cmp_eq_u32 s{S_WAVE}, 2"); e(f"s_mov_b32 m0, s{S_T+2}"); e(f"s_cselect_b64 s[34:35], s[{S_P}:{S_P+1}], s[34:35]")
vmem(f"global_load_lds_dword v{vSM}, s[34:35]", "wdma")
e(f"v_mov_b32 v{MASKC+1}, 0")
e(f"v_lshrrev_b32 v{vL}, 1, v{vL}")
ds(f"ds_write_b16 v{vL}, v{MASKC+1} offset:{O_Z}", "z")
e(f"v_lshrrev_b32 v{vT0}, 3, v{vN}"); e(f"v_and_b32 v{vT1}, 3, v{vN}"); e(f"v_lshl_or_b32 v{vT0}, v{vT0}, 2, v{vT1}")
e(f"v_lshrrev_b32 v{vT1}, 1, v{vG}"); e(f"v_xor_b32 v{vT0}, v{vT0}, v{vT1}"); e(f"v_lshlrev_b32 v{vT0}, 5, v{vT0}")
e(f"v_and_b32 v{vT1}, 1, v{vG}"); e(f"v_lshl_add_u32 v{vT0}, v{vT1}, 4, v{vT0}"); e(f"v_lshl_add_u32 v{vT0}, v{vN}, 8, v{vT0}")
e(f"v_add_u32 v{vWN}, s{S_T}, v{vT0}")
vWNk = [vWN, vW0, vW1, vSM]
for ks in range(1, 4): e(f"v_xor_b32 v{vWNk[ks]}, {ks << 6}, v{vWN}")
e(f"v_lshrrev_b32 v{vT0}, 2, v{vN}")
e(f"v_lshl_or_b32 v{vT1}, v{vT1}, 2, v{vT0}")
e(f"v_lshl_add_u32 v{vT0}, v{vG}, 3, v{vT0}"); e(f"v_lshlrev_b32 v{vT0}, 8, v{vT0}")
e(f"v_lshl_add_u32 v{vT0}, v{vT1}, 5, v{vT0}")
e(f"v_and_b32 v{vT1}, 3, v{vN}"); e(f"v_lshl_add_u32 v{vTR}, v{vT1}, 3, v{vT0}")
for t in range(1, 8): e(f"v_xor_b32 v{vTR+t}, {t << 5}, v{vTR}")
e(f"v_lshlrev_b32 v{vBA}, 6, v{vG}")
e(f"s_mov_b32 s{S_SRD}, s{S_IDX}"); e(f"s_mov_b32 s{S_SRD+1}, s{S_IDX+1}"); e(f"s_mov_b32 s{S_SRD+2}, {4096*104}"); e(f"s_mov_b32 s{S_SRD+3}, 0x00020000")
part3()
stamp()
vwait("idx0"); stamp()
e(f"v_lshl_add_u32 v{IDX}, v{IDX}, 8, v{GOFF}")
for q in range(4): vmem(f"global_load_dwordx4 {rng(VZ+16+4*q,4)}, v{IDX}, s[{S_TAB}:{S_TAB+1}] offset:{64*q}", "view0")
for k in range(1, 3): vmem(f"global_load_dword v{IDX+k}, v{[OX,OY,OZ][k]}, s[{S_IDX}:{S_IDX+1}] offset:64", "idx1")
e(f"s_lshl_b32 s3, s3, 3"); e(f"v_lshl_add_u32 v{OOFF}, v{vG}, 1, s3")
PADS = int(opts.get("pads", 1))
def warm():
    e("s_mov_b64 vcc, -1")
    for w in range(3): e(f"s_cmp_eq_u32 s{S_WAVE}, {w}"); e(f"s_cbranch_scc1 L_pad{w}")
    e("s_branch L_pad3")
    L.append("L_resume:")
    e("s_mov_b64 vcc, 0")
if PADS: warm()
vwait("wdma"); e("s_waitcnt lgkmcnt(0)")
stamp(); e("s_barrier"); stamp()
WN = F[0]; HB = ACC; WHA = RF
trs = [f"ds_read_b64_tr_b16 {rng(AW+(t*4+ks)*4+2*u,2,'a')}, v{vTR+t} offset:{8192*ks+1024*u}" for t in range(8) for ks in range(4) for u in range(2)]
fill = []
def f(s_): fill.append(s_)
def smask(r, v): f(f"s_mov_b32 s{r}, 0x{v & 0xffffffff:08x}"); f(f"s_mov_b32 s{r+1}, 0x{v >> 32:08x}")
f(f"s_lshl_b32 s{S_T+1}, s{S_WAVE}, 5"); f(f"v_and_b32 v{vT0}, 12, v{vN}"); f(f"v_add_u32 v{vT2}, s{S_T+1}, v{vT0}")
f(f"v_bfe_u32 v{vT0}, v{vN}, 1, 1"); f(f"v_lshl_add_u32 v{vT2}, v{vT0}, 7, v{vT2}")
f(f"v_and_b32 v{vT1}, 1, v{vN}"); f(f"v_lshl_add_u32 v{vT2}, v{vT1}, 1, v{vT2}")
f(f"v_mul_u32_u24 v{SIX}, 0xaaaa, v{vT1}"); f(f"v_add_u32 v{SIX}, 0x4444, v{SIX}")
vZ, vS9, vSH = vL, vPF, vWV
f(f"v_xor_b32 v{vZ}, 32, v{GOFF}"); f(f"v_add_u32 v{vZ}, {O_Z}, v{vZ}")
f(f"v_lshl_add_u32 v{vSH}, v{vT1}, 7, v{GOFF}"); f(f"v_mul_u32_u24 v{vT0}, 320, v{vT0}"); f(f"v_add3_u32 v{vS9}, v{vSH}, v{vT0}, s{S_OM}")
f(f"v_add_u32 v{vSH}, {O_HH}, v{vSH}")
smask(S_MA, 0x3333333333333333)
f(f"v_cndmask_b32 v{vSH}, v{vZ}, v{vSH}, s[{S_MA}:{S_MA+1}]")
if UM:
    f(f"v_lshlrev_b32 v{vT0}, 4, v{vT1}"); f(f"v_mov_b32 v{vT1}, 0x3f80"); f(f"v_lshlrev_b32 v{vT1}, v{vT0}, v{vT1}")
    smask(S_MB, 0xF0000F0000F0000F)
    f(f"v_cndmask_b32 v{vT1}, 0, v{vT1}, s[{S_MB}:{S_MB+1}]")
    f(f"v_cndmask_b32 v{vT0}, 0, v{vT1}, s[{S_MA}:{S_MA+1}]"); f(f"v_sub_u32 v{vT1}, v{vT1}, v{vT0}")
    f(f"v_accvgpr_write_b32 a{ASEL}, v{vT0}"); f(f"v_accvgpr_write_b32 a{ASEL+1}, v{vT1}")
    f(f"v_accvgpr_write_b32 a{ASEL+6}, v{vT0}"); f(f"v_accvgpr_write_b32 a{ASEL+7}, v{vT1}")
for r in range(4): f(f"v_accvgpr_write_b32 a{AZ+r}, 0")
for var in range(4):
    smask(S_MA, 0x000F000F000F000F << (4 * var))
    f(f"v_cndmask_b32 v{vNA+var}, v{vZ}, v{vS9}, s[{S_MA}:{S_MA+1}]"); f(f"v_cndmask_b32 v{vHA+var}, v{vZ}, v{vSH}, s[{S_MA}:{S_MA+1}]")
f(f"v_mov_b32 v{NEGINF}, 0xff800000"); f(f"v_mov_b32 v{VCS}, {f32(CSC)}")
f(f"v_mov_b32 v{MASKC+2}, 0"); f(f"v_mov_b32 v{MASKC+3}, 0")
smask(S_MA, inval)
f(f"v_cndmask_b32 v{MASKC}, v{MASKC+1}, v{NEGINF}, s[{S_MA}:{S_MA+1}]")
smask(S_MA, 0xff); smask(S_MB, 0xff00); smask(S_OM, 0x0001000100010001); f(f"s_movk_i32 s{S_IT}, 104")
e(f"s_mov_b32 s{S_OM}, {O_HI}")
def tr(n, nf=1):
    for _ in range(n):
        if trs: ds(trs.pop(0), "tr")
        for _ in range(nf):
            if fill: e(fill.pop(0))
for ks in range(4): ds(f"ds_read_b128 {rng(HB+4*ks,4)}, v{GOFF} offset:{O_H+64*ks}", "wn")
for uu in range(2):
    for ks in range(4): ds(f"ds_read_b128 {rng(WN+16*uu+4*ks,4)}, v{vWNk[ks]} offset:{4096*uu}", "wn")
for k in range(4): ds(f"ds_read_b128 {rng(BIAS+16+4*k,4)}, v{vBA} offset:{O_B+16*k}", "bb")
tr(8, 2)
dwait("wn")
for ks in range(4):
    for uu in range(2):
        c = "0" if ks == 0 else rng(WHA+4*uu, 4)
        e(f"v_mfma_f32_16x16x32_bf16 {rng(WHA+4*uu,4)}, {rng(HB+4*ks,4)}, {rng(WN+16*uu+4*ks,4)}, {c}")
        tr(1)
tr(4, 2)
for uu in range(2):
    a = WHA + 4 * uu
    e(f"v_cvt_pk_bf16_f32 v{a+1}, v{a}, v{a}")
    ds(f"ds_write_b16 v{vT2}, v{a+1} offset:{O_HI+16*uu}", "whw")
dwait("bb")
for q in range(16):
    s_ = BIAS + 16 + q
    f(f"v_lshlrev_b32 v{BIAS+2*q}, 16, v{s_}"); f(f"v_and_b32 v{BIAS+2*q+1}, 0xffff0000, v{s_}")
tr(15, 2)
dwait("whw")
e("s_barrier")
for var in range(4):
    for u in range(2):
        trs.append(f"ds_read_b128 {rng(AH+8*var+4*u,4,'a')}, v{vHA+var} offset:{64*u}")
        trs.append(f"ds_read_b128 {rng(AN9+8*var+4*u,4,'a')}, v{vNA+var} offset:{64*u}")
NI = int(opts.get("ni", 0))
tr(len(trs) - max(NI, 16), 2)
while fill: e(fill.pop(0))
tr(len(trs) - NI)
stamp()
assert vm[-6:] == ["view0"] * 4 + ["idx1"] * 2
pre = [o for o in pre_ops if (o.kind in VALUK or o.kind == "mfma") and not o.text.startswith("v_lshl_add_u32")]
pre2 = []
for q in range(4):
    w = Op("wait", "wait", R=vr(VZ+16+4*q,4), W=vr(VZ+16+4*q,4) + ["order"], covers=[], prio=1e5); w.extra_after = 5 - q; pre2.append(w)
for i, o in enumerate(sorted(pre, key=lambda o: o.seq)):
    if o.kind == "mfma": o2 = mfma(o.text, o.W, [r for r in o.R if r in o.AB], [], o.C); pre2.append(o2)
    else: pre2.append(Op(o.text, o.kind, o.R, o.W, prio=i))
w = Op("wait", "wait", R=vr(IDX+1,2), W=vr(IDX+1,2) + ["order"], covers=[], prio=12); w.extra_after = 0; pre2.append(w)
for k in range(1, 3): pre2.append(Op(f"v_lshl_add_u32 v{IDX+k}, v{IDX+k}, 8, v{GOFF}", "valu", [f"v{IDX+k}"], [f"v{IDX+k}"], prio=12))
if YE:
    for q in range(4): pre2.append(Op(f"global_load_dwordx4 {rng(VY+16+4*q,4)}, v{IDX+1}, s[{S_TAB}:{S_TAB+1}] offset:{64*q}", "vmem", [f"v{IDX+1}"], vr(VY+16+4*q,4) + ["order"], prio=int(opts.get("y0", 20)) + 8 * q, cost=2))
po, _ = schedule(pre2, look=1e3); assert verify(po) == 0
pl = finalize(po)
w0 = [i for i, s_ in enumerate(pl) if "vmcnt(2)" in s_][0]
yl = [i for i, s_ in enumerate(pl) if s_.startswith("global_load")]
for i, s_ in enumerate(pl):
    if yl and i == yl[0]: tr(len(trs))
    e(s_)
    if i >= w0 and (i - w0) % int(opts.get("nis", 2)) == 0: tr(1)
tr(len(trs))
e(f"s_waitcnt lgkmcnt({12 if LGB else 0})")
def clone(o, seq):
    if o.kind == "nop": return o
    if o.kind == "mfma": o2 = mfma(o.text, o.W, [r for r in o.R if r in o.AB], [], o.C)
    else: o2 = Op(o.text, o.kind, o.R, o.W)
    o2.seq = seq; return o2
import io, contextlib
for k in range(9):
    chk = [clone(o, i) for i, o in enumerate(po)] + [Op(f"s_nop {k}", "nop")] + [clone(o, 10000 + i) for i, o in enumerate(bops[:40])]
    with contextlib.redirect_stdout(io.StringIO()): nb_ = verify(chk)
    if nb_ == 0: break
assert nb_ == 0
if k: e(f"s_nop {k - 1}")
print("entry nops", k, file=sys.stderr)
if DBG == 4 and int(opts["sa"]) < 0:
    e("s_load_dwordx2 s[98:99], s[0:1], 72"); e("s_waitcnt lgkmcnt(0)"); e("s_not_b32 s34, s40"); e(f"v_mov_b32 v{PFR}, s34"); e(f"v_mov_b32 v{PFR+1}, 0")
    e("s_waitcnt vmcnt(0)"); e("s_mov_b64 exec, 1"); e(f"global_atomic_umax v{PFR+1}, v{PFR}, s[98:99]"); e("s_mov_b64 exec, -1")
if DBG: e("s_mov_b32 s34, 0")
L.append(".p2align 3"); L.append("L_loop:")
if DBG and not STEPST: e("s_mov_b32 m0, s34"); e("s_memrealtime s[32:33]"); e("s_waitcnt lgkmcnt(0)"); e(f"s_movreld_b32 s{40+2*NST[0]}, s32"); e("s_add_u32 s34, s34, 2"); NST[0] += 4
PEEL = int(opts.get("peel", 2))
mi = [i for i, o in enumerate(bops) if o.kind == "mfma"]
xi = mi[ST[-PEEL]] if PEEL else len(bops)
nm_ = 0
for i, s in enumerate(body):
    if i == xi: e("s_cbranch_scc0 L_tail")
    if s.startswith("v_mfma") or s.startswith("v_smfmac"):
        if STEPST and nm_ in ([ST[int(x)] for x in opts['stl'].split(',')] if 'stl' in opts else ST[::STEPST]): stamp(True)
        nm_ += 1
    e(s)
if STEPST: stamp(True)
if STEPST and DBG == 4:
    e("s_waitcnt lgkmcnt(0)")
    e(f"s_sub_u32 s96, s{40+2*int(opts['sb'])}, s{40+2*int(opts['sa'])}")
if PEEL: e("s_branch L_loop"); L.append(".p2align 6"); L.append("L_tail:")
else: e("s_cbranch_scc1 L_loop")
stamp()
assert not any(o.kind != "nop" and o.it == 1 for o in bops[xi:])
assert not any(o.kind == "salu" for o in bops[xi:])
rest = [o for o in bops[xi:] + out[cuts[3]:cuts[4]] if o.kind != "nop" and o.it == 2 and not getattr(o, "sm", False)]
assert not any(o.kind in ("vmem", "wait") for o in rest)
ops = []; IT[0] = 0; at(1e6, 1)
def dmax():
    for c in ("row_ror:8 " + FULL, "row_ror:4 " + FULL, "row_ror:2 " + FULL, "row_ror:1 " + FULL, "row_bcast:15 row_mask:0xa bank_mask:0xf", "row_bcast:31 row_mask:0xc bank_mask:0xf"):
        valu(f"v_max_f32_dpp v{MX}, v{MX}, v{MX} {c}", [f"v{MX}"], [f"v{MX}"], "dpp")
for o in sorted(rest, key=lambda o: o.seq):
    if o.kind == "mfma":
        o2 = mfma(o.text, o.W, [r for r in o.R if r in o.AB], [], o.C); o2.free = o.free; push(o2)
    else: valu(o.text, o.R, o.W, o.kind, cost=o.cost).prio = 1e5 + o.prio
TL = [(EM if EPB == 1 else EMB, SM)] + [(ES + 2 * q, ES + 2 * q + 1) for q in range(5)]
M1 = 229; FS = 230; S_M2 = S_MAX + 1
valu(f"v_max3_f32 v{MX}, v{TL[0][0]}, v{TL[1][0]}, v{TL[2][0]}", [f"v{x[0]}" for x in TL[:3]], [f"v{MX}"])
valu(f"v_max3_f32 v{MX}, v{MX}, v{TL[3][0]}, v{TL[4][0]}", [f"v{MX}", f"v{TL[3][0]}", f"v{TL[4][0]}"], [f"v{MX}"])
dmax()
valu(f"v_mul_f32 v{M1}, v{VCS}, v{MX}", [f"v{MX}", f"v{VCS}"], [f"v{M1}"])
valu(f"v_readlane_b32 s{S_MAX}, v{M1}, 63", [f"v{M1}"], [f"s{S_MAX}"], "readlane")
valu(f"v_mov_b32 v{M1}, s{S_MAX}", [f"s{S_MAX}"], [f"v{M1}"])
for i, (x, s_) in enumerate(TL[:5]):
    valu(f"v_fma_f32 v{x}, v{x}, v{VCS}, -s{S_MAX}", [f"s{S_MAX}", f"v{x}", f"v{VCS}"], [f"v{x}"])
    valu(f"v_exp_f32 v{x}, v{x}", [f"v{x}"], [f"v{x}"], "trans", cost=2)
    if i == 0: valu(f"v_mul_f32 v{NUM}, v{x}, v{s_}", [f"v{x}", f"v{s_}"], [f"v{NUM}"])
    else: valu(f"v_fmac_f32 v{NUM}, v{x}, v{s_}", [f"v{x}", f"v{s_}", f"v{NUM}"], [f"v{NUM}"])
    if i == 1: add(DEN, TL[0][0], x)
    elif i > 1: add(DEN, DEN, x)
swap(16, TC, TB); add(TC, TC, TB)
for c in (8, 4, 2, 1): valu(f"v_add_f32_dpp v{TC}, v{TC}, v{TC} row_ror:{c} {FULL}", [f"v{TC}"], [f"v{TC}"], "dpp")
x, s_ = TL[5]
valu(f"v_max_f32 v{MX}, v{MX}, v{x}", [f"v{MX}", f"v{x}"], [f"v{MX}"])
dmax()
valu(f"v_mul_f32 v{MX}, v{VCS}, v{MX}", [f"v{MX}", f"v{VCS}"], [f"v{MX}"])
valu(f"v_readlane_b32 s{S_M2}, v{MX}, 63", [f"v{MX}"], [f"s{S_M2}"], "readlane")
valu(f"v_fma_f32 v{x}, v{x}, v{VCS}, -s{S_M2}", [f"s{S_M2}", f"v{x}", f"v{VCS}"], [f"v{x}"])
valu(f"v_subrev_f32 v{FS}, s{S_M2}, v{M1}", [f"s{S_M2}", f"v{M1}"], [f"v{FS}"])
valu(f"v_exp_f32 v{x}, v{x}", [f"v{x}"], [f"v{x}"], "trans", cost=2)
valu(f"v_exp_f32 v{FS}, v{FS}", [f"v{FS}"], [f"v{FS}"], "trans", cost=2)
valu(f"v_mul_f32 v{s_}, v{x}, v{s_}", [f"v{x}", f"v{s_}"], [f"v{s_}"])
valu(f"v_fma_f32 v{DEN}, v{DEN}, v{FS}, v{x}", [f"v{DEN}", f"v{FS}", f"v{x}"], [f"v{DEN}"])
valu(f"v_fma_f32 v{NUM}, v{NUM}, v{FS}, v{s_}", [f"v{NUM}", f"v{FS}", f"v{s_}"], [f"v{NUM}"])
swap(32, NUM, DEN); add(NUM, NUM, DEN)
swap(16, TA, NUM); add(TA, TA, NUM)
for c in (8, 4, 2, 1): valu(f"v_add_f32_dpp v{TA}, v{TA}, v{TA} row_ror:{c} {FULL}", [f"v{TA}"], [f"v{TA}"], "dpp")
swap(32, TC, TA)
valu(f"v_rcp_f32 v{TA}, v{TA}", [f"v{TA}"], [f"v{TA}"], "trans", cost=2)
valu(f"v_mul_f32 v{TC}, v{TC}, v{TA}", [f"v{TC}", f"v{TA}"], [f"v{TC}"])
valu(f"v_cvt_pk_bf16_f32 v{TC}, v{TC}, v{TC}", [f"v{TC}"], [f"v{TC}"])
NP = 24
pref = []
for o in [o for o in bops[:xi] if o.kind != "nop"][-NP:]:
    if o.kind == "mfma": o2 = mfma(o.text, o.W, [r for r in o.R if r in o.AB], [], o.C); o2.free = o.free
    else: o2 = Op(o.text, "salu" if o.kind in ("wait", "vmem") else o.kind, o.R, o.W, prio=0, cost=o.cost)
    pref.append(o2)
assert not any(o.kind == "nop" for o in bops[xi - NP:xi])
to, _ = schedule(pref + ops, look=1e9, fixed=NP); assert verify(to) == 0
to = to[NP:]
print("peeled part est", est_cycles(bops[xi:]), file=sys.stderr)
print("tail est", est_cycles(to), "pre est", est_cycles(po), file=sys.stderr)
for s in finalize(to): e(s)
stamp()
if DBG == 4:
    a_, b_, K_ = int(opts["sa"]), int(opts["sb"]), int(opts["sk"])
    if b_ < 0: b_ += NST[0]
    e("s_waitcnt lgkmcnt(0)")
    if STEPST: e(f"s_sub_u32 s34, s96, {int(opts.get('sub', 0))}"); e("s_max_i32 s34, s34, 0")
    elif a_ >= 0:
        e(f"s_sub_u32 s34, s{40+2*b_}, s{40+2*a_}")
    else:
        e("v_mov_b32 v1, 0"); e("global_load_dword v2, v1, s[98:99] sc1"); e("s_waitcnt vmcnt(0)"); e("v_readfirstlane_b32 s34, v2"); e("s_nop 3")
        e("s_not_b32 s34, s34"); e(f"s_sub_u32 s34, s{40+2*b_}, s34")
    if int(opts.get("sc", 0)):
        for i, l in enumerate(L): L[i] = l.replace("s_memrealtime", "s_memtime")
        e("s_lshr_b32 s34, s34, 4")
    e("s_min_u32 s34, s34, 10000"); e(f"s_mul_i32 s34, s34, {K_}"); e("s_min_u32 s34, s34, 20000")
    stamp(True); e("s_waitcnt lgkmcnt(0)")
    L.append("L_spin:")
    e("s_memrealtime s[32:33]"); e("s_waitcnt lgkmcnt(0)")
    e(f"s_sub_u32 s35, s32, s{40+2*(NST[0]-1)}"); e("s_cmp_lt_u32 s35, s34"); e("s_cbranch_scc1 L_spin")
if DBG == 1:
    e("s_load_dwordx2 s[34:35], s[0:1], 80"); e("s_waitcnt lgkmcnt(0)")
    e("s_lshl_b32 s3, s3, 4"); e(f"v_mov_b32 v1, s3")
    for k in range(NST[0]):
        e(f"v_mov_b32 v2, s{40+2*k}"); e(f"global_store_dword v1, v2, s[34:35] offset:{4*k}")
    e(f"v_mov_b32 v2, {NST[0]}"); e(f"global_store_dword v1, v2, s[34:35] offset:124")
e(f"s_mov_b64 exec, s[{S_OM}:{S_OM+1}]")
e(f"global_store_short v{OOFF}, v{TC}, s[{S_OUT}:{S_OUT+1}]")
L.append("L_done:")
e("s_endpgm")
L.append("L_end:")
L += ['.section .rodata,"a"', ".p2align 6", ".amdhsa_kernel %s_kernel" % NAME,
      "  .amdhsa_next_free_vgpr 512", "  .amdhsa_next_free_sgpr %d" % (100 if DBG else 40), "  .amdhsa_accum_offset 256",
      "  .amdhsa_group_segment_fixed_size 0", "  .amdhsa_kernarg_size 88", "  .amdhsa_user_sgpr_count 2",
      "  .amdhsa_user_sgpr_kernarg_segment_ptr 1", "  .amdhsa_system_sgpr_workgroup_id_x 1",
      "  .amdhsa_float_denorm_mode_32 3",
      ".end_amdhsa_kernel"]
NT = opts.get("nt", "")
import re
for i, l in enumerate(L):
    m = re.match(r"\s+global_load_dwordx4 v\[\d+:\d+\], v(\d+), s\[6:7\]", l)
    if m and "xyz"[int(m.group(1)) - IDX] in NT: L[i] = l + " nt"
    if "i" in NT and (re.match(r"\s+global_load_dword v\d+, v\d+, s\[4:5\]", l) or "buffer_load_dword" in l): L[i] = l + " nt"
    if "w" in NT and "global_load_lds" in l: L[i] = l + " nt"
    if "p" in NT and "s[32:33]" in l and "global_load" in l: L[i] = l + " nt"
if PADS:
    import subprocess, tempfile, os
    def sizes(lines):
        txt = "\n".join(lines)
        for w in range(4): txt = txt.replace(f"L_pad{w}", "L_resume")
        with tempfile.TemporaryDirectory() as d:
            open(d + "/a.s", "w").write(txt)
            subprocess.run(["clang", "-x", "assembler", "-target", "amdgcn-amd-amdhsa", "-mcpu=gfx950", "-c", d + "/a.s", "-o", d + "/a.o"], check=True)
            dis = subprocess.run(["llvm-objdump", "-d", "--mcpu=gfx950", d + "/a.o"], capture_output=True, text=True).stdout
        return [(int(m.group(1), 16), len(m.group(2).split()) * 4) for m in re.finditer(r"// ([0-9A-F]{12}): ((?:[0-9A-F]{8} ?)+)", dis)]
    k0 = L.index("%s_kernel:" % NAME); k1 = L.index("L_end:")
    L[k0:k1] = [l for l in L[k0:k1] if not l.startswith(".p2align")]
    k1 = L.index("L_end:")
    sz = sizes(L)
    ins = [i for i in range(k0, k1) if L[i].startswith("    ")]
    assert len(ins) == len(sz), (len(ins), len(sz))
    lo = L.index("L_loop:")
    POFF = int(opts.get("poff", 0))
    newL = L[:k0]; addr = 0; nextp = None; npad = 0; j = 0
    for i in range(k0, k1):
        if i == lo:
            print("prologue bytes", addr, file=sys.stderr)
            newL.append("    s_branch L_loop"); newL.append(".p2align 12"); addr = 4096; nextp = 4096
        if L[i - 1] == "L_tail:":
            newL.append(f"L_pad{npad}:"); newL.append(f"    s_cbranch_vccnz PADT{npad}"); npad += 1; addr += 4
        if L[i].startswith("    "):
            if nextp is not None and addr >= nextp and "s_endpgm" not in L[i]:
                newL.append(f"L_pad{npad}:"); newL.append(f"    s_cbranch_vccnz PADT{npad}"); npad += 1; addr += 4; nextp += 4096
            addr += sz[j][1]; j += 1
        newL.append(L[i])
    newL += L[k1:]
    L = [re.sub(r"PADT(\d+)", lambda m: f"L_pad{int(m.group(1)) + 4}" if int(m.group(1)) + 4 < npad else "L_resume", l) for l in newL]
    print("pads", npad, "code bytes", addr, file=sys.stderr)
print("\n".join(L))
```

```python
import sys, math, struct
from sched import *
NAME = "standalone__factorization_afm__recsys"
opts = dict(z8="shl", epb="2", um="xz", sm="2,5,17", late="8", ye="36", pf="6", nt="xyzi"); opts.update(dict(a.split("=") for a in sys.argv[1:] if "=" in a))
LAT_FAR = int(opts.get("latfar", 450)); LAT_NEAR = int(opts.get("latnear", 300))
DBG = int(opts.get("dbg", 0)); PF = int(opts.get("pf", 2))
TOUCH = int(opts.get('touch', 0))
LSP = float(opts.get('lsp', 9))
YE = int(opts.get('ye', 0))
LGB = int(opts.get("lgb", 0))
EPI = float(opts.get("epi", 3.1)); LOOK = int(opts.get("look", 30))
YT = [6,0,4,4,2,3,6,9,3,7,0,1,8,5,3,4]
ZT = [5,2,7,7,9,7,1,0,1,5,4,8,2,9,6,8]
K10 = [("", lambda n: n), ("quad_perm:[1,0,3,2]", lambda n: n ^ 1), ("quad_perm:[2,3,0,1]", lambda n: n ^ 2)]
seen = set(); inval = 0
for k, (_, pi) in enumerate(K10):
    for n in range(16):
        a, b = ZT[n], YT[pi(n)]; key = (min(a, b), max(a, b))
        if a == b or key in seen: inval |= 1 << (16 * k + n)
        else: seen.add(key)
assert len(seen) == 45
POS = [YT.index(c) for c in range(10)]
FULL = "row_mask:0xf bank_mask:0xf"
BIAS = 0; VX = 32; VY = 64; VZ = 96; F = [128, 144]; TMP = 160; ACC = 168; RF = 184; RF2 = 192; D9 = 200; ND9 = 3
MASKC = 212; ES = 216
EM = 226; EMB = 227; SM = 228
SIX = 232; NEGINF = 234; MX = 235; NUM = 236; DEN = 237; TA = 238; TB = 239; TC = 240
IDX = 245; OX = 248; OY = 249; OZ = 250; GOFF = 251; OOFF = 252; VCS = 253; PFR = 254
AW = 0; AN9 = 128; AH = 160; ASEL = 192; AZ = 194
EPB = int(opts.get("epb", 1)); UMS = (opts.get("um", "") + "/" + opts.get("um", "")).split("/")[:2]; UM = UMS[0] + UMS[1]
S_IDX = 4; S_TAB = 6; S_W = 8; S_B = 10; S_H = 12; S_P = 14; S_OUT = 16; S_WAVE = 18; S_MA = 20; S_MB = 40 if 0 else 28; S_MAX = 24; S_T = 26; S_OM = 30; S_IT = 22; S_INC = 23; S_SRD = 36
LN9 = 32768
O_HI = LN9; O_P = LN9 + 320; O_Z = LN9 + 640; O_HH = LN9 + 768; O_B = LN9 + 1024; O_H = LN9 + 1280
CSC = 0.5 * math.log2(math.e)
def f32(x): return "0x%08x" % struct.unpack("<I", struct.pack("<f", x))[0]
L = []
def e(s): L.append("    " + s)
hdr = open("cdna_kernels/%s.s.ref" % NAME).read().split("\n")
for line in hdr:
    if line.startswith("; @launch"):
        L.append("; @launch grid=(256,1,1) block=(256,1,1) lds=34304"); break
    L.append(line)
L += ['.amdgcn_target "amdgcn-amd-amdhsa--gfx950"', ".text", ".globl %s_kernel" % NAME] + ([".p2align 12"] if int(opts.get("pads", 1)) else []) + [".p2align 8",
      ".type %s_kernel,@function" % NAME, "%s_kernel:" % NAME]
NST = [0]
STEPST = int(opts.get('stepst', 0))
def stamp(force=False):
    if DBG and (not STEPST or force): e(f"s_memrealtime s[{40+2*NST[0]}:{41+2*NST[0]}]"); NST[0] += 1
ops = []
TT = [0.0, 0.0]; IT = [0]; MC = [0]
def at(t, inc): TT[0] = t; TT[1] = inc
def push(o): o.it = IT[0]; ops.append(o); return o
def valu(text, R, W, kind="valu", **kw):
    if kind in ("perm", "vmem"): kw["cost"] = 2
    o = Op(text, kind, R, W, prio=round(TT[0] + 1e-4, 3), **kw); TT[0] += TT[1]; return push(o)
def view_load(raw, ireg):
    return [valu(f"global_load_dwordx4 {rng(raw+4*q,4)}, v{ireg}, s[{S_TAB}:{S_TAB+1}] offset:{64*q}", [f"v{ireg}"], vr(raw+4*q,4), "vmem") for q in range(4)]
def wait_for(regs, ls, lat):
    return push(Op("wait", "wait", R=regs, W=regs, covers=ls, lat=lat, prio=round(TT[0] + 1e-4, 3)))
def unpack(V, raw):
    for q in range(16):
        s = raw + q
        valu(f"v_lshlrev_b32 v{V+2*q}, 16, v{s}", [f"v{s}"], [f"v{V+2*q}"])
        valu(f"v_and_b32 v{V+2*q+1}, 0xffff0000, v{s}", [f"v{s}"], [f"v{V+2*q+1}"])
def form(fb, P, ctrl, Q, t0, t1, sfx=''):
    at(t0 + 0.2, (t1 - t0 - 2.5) / 48)
    for i in range(32):
        d = TMP + i % 8
        if ctrl: valu(f"v_mul_f32_dpp v{d}, v{P+i}, v{Q+i} {ctrl} {FULL}{sfx}", [f"v{P+i}", f"v{Q+i}"], [f"v{d}"], "dpp")
        else: valu(f"v_mul_f32 v{d}, v{P+i}, v{Q+i}", [f"v{P+i}", f"v{Q+i}"], [f"v{d}"])
        if i % 2: valu(f"v_cvt_pk_bf16_f32 v{fb+i//2}, v{d-1}, v{d}", [f"v{d-1}", f"v{d}"], [f"v{fb+i//2}"])
def unpack_chunk(V, raw, q):
    for j in range(4 * q, 4 * q + 4):
        s_ = raw + j
        valu(f"v_lshlrev_b32 v{V+2*j}, 16, v{s_}", [f"v{s_}"], [f"v{V+2*j}"])
        valu(f"v_and_b32 v{V+2*j+1}, 0xffff0000, v{s_}", [f"v{s_}"], [f"v{V+2*j+1}"])
def mm(D, A, B, ct, cr):
    MC[0] += 1
    push(mfma(f"v_mfma_f32_16x16x32_bf16 {rng(D,4)}, {rng(A,4,'a')}, {rng(B,4)}, {ct}", vr(D,4), vr(A,4,'a'), vr(B,4), cr))
deferred = []
def smf(D, A, B):
    MC[0] += 1
    o = mfma(f"v_smfmac_f32_16x16x64_bf16 {rng(D,4)}, {rng(A,4,'a')}, {rng(B,8)}, v{SIX}", vr(D,4), vr(A,4,'a') + [f"v{SIX}"], vr(B,8), vr(D,4)); o.free = 1
    push(o)
SNAKE = int(opts.get("snake", 1)); AUXT = int(opts.get("auxt", 5))
def step_mm(fb, d9, var, cinit, fin, extra):
    it0 = IT[0]; held = []
    for t in range(8):
        acc = ACC + 4 * (t % 4)
        for i, ks in enumerate(range(3, -1, -1) if (SNAKE and t % 2) else range(4)):
            c = BIAS + 4 * t if i == 0 else acc
            mm(acc, AW + (t * 4 + ks) * 4, fb + 4 * ks, rng(c, 4), vr(c, 4))
        def epi(t=t, acc=acc, tt=MC[0] - 1 + EPI):
            at(tt, 1.0)
            rf = RF if t < 4 else RF2
            for c in range(2):
                d = rf + 2 * (t % 4) + c
                valu(f"v_cvt_pk_bf16_f32 v{d}, |v{acc+2*c}|, |v{acc+2*c+1}|", [f"v{acc+2*c}", f"v{acc+2*c+1}"], [f"v{d}"])
        def init():
            if cinit is not None:
                ct, cr = ("0", []) if cinit == 0 else (rng(cinit, 4), vr(cinit, 4))
                mm(d9, AZ, fb, ct, cr)
        def prev():
            for cb in deferred: cb()
            deferred.clear(); IT[0] = it0
        if AUXT:
            if 4 <= t <= AUXT: held.append(epi)
            else: epi()
            if t == AUXT:
                prev(); init()
                for ch in opts.get("ao", "01r"): smf(d9, *{"0": (AN9 + 8 * var, fb), "1": (AN9 + 8 * var + 4, fb + 8), "r": (AH + 8 * var, RF)}[ch])
                for h_ in held: h_()
        else:
            epi()
            if t == 1: prev()
            if t == 2: init()
            if t == 3: smf(d9, AN9 + 8 * var, fb)
            if t == 5: smf(d9, AH + 8 * var, RF)
            if t == 6: smf(d9, AN9 + 8 * var + 4, fb + 8)
        for cb in extra.get(t, []): cb()
        IT[0] = it0
    def late():
        IT[0] = it0
        smf(d9, AH + 8 * var + 4, RF2)
        if fin: fin()
    deferred.append(late)
def swap(w, a, b): valu(f"v_permlane{w}_swap_b32 v{a}, v{b}", [f"v{a}", f"v{b}"], [f"v{a}", f"v{b}"], "perm")
def add(d, a, b): valu(f"v_add_f32 v{d}, v{a}, v{b}", [f"v{a}", f"v{b}"], [f"v{d}"])
def mov(d, a): valu(f"v_mov_b32 v{d}, v{a}", [f"v{a}"], [f"v{d}"])
def tred(r):
    swap(32, r, r+2); add(r, r, r+2); swap(32, r+1, r+3); add(r+1, r+1, r+3); swap(16, r, r+1); add(r, r, r+1)
def softmax(ES, odd, t0, t1, t2):
    E = [x[0] for x in ES]
    osm = len(ops)
    at(t0, (t1 - t0) / 11)
    valu(f"v_max3_f32 v{MX}, v{E[0]}, v{E[1]}, v{E[2]}", [f"v{x}" for x in E[:3]], [f"v{MX}"])
    valu(f"v_max3_f32 v{MX}, v{MX}, v{E[3]}, v{E[4]}", [f"v{MX}", f"v{E[3]}", f"v{E[4]}"], [f"v{MX}"])
    valu(f"v_max_f32 v{MX}, v{MX}, v{E[5]}", [f"v{MX}", f"v{E[5]}"], [f"v{MX}"])
    for c in ("row_ror:8 " + FULL, "row_ror:4 " + FULL, "row_ror:2 " + FULL, "row_ror:1 " + FULL, "row_bcast:15 row_mask:0xa bank_mask:0xf", "row_bcast:31 row_mask:0xc bank_mask:0xf"):
        valu(f"v_max_f32_dpp v{MX}, v{MX}, v{MX} {c}", [f"v{MX}"], [f"v{MX}"], "dpp")
    valu(f"v_mul_f32 v{MX}, v{VCS}, v{MX}", [f"v{MX}", f"v{VCS}"], [f"v{MX}"])
    valu(f"v_readlane_b32 s{S_MAX}, v{MX}, 63", [f"v{MX}"], [f"s{S_MAX}"], "readlane")
    at(t1, (t2 - t1) / 28)
    for i, (x, s) in enumerate(ES):
        valu(f"v_fma_f32 v{x}, v{x}, v{VCS}, -s{S_MAX}", [f"s{S_MAX}", f"v{x}", f"v{VCS}"], [f"v{x}"])
        valu(f"v_exp_f32 v{x}, v{x}", [f"v{x}"], [f"v{x}"], "trans", cost=2)
        if i == 0: valu(f"v_mul_f32 v{NUM}, v{x}, v{s}", [f"v{x}", f"v{s}"], [f"v{NUM}"])
        else: valu(f"v_fmac_f32 v{NUM}, v{x}, v{s}", [f"v{x}", f"v{s}", f"v{NUM}"], [f"v{NUM}"])
        if i == 1: add(DEN, ES[0][0], x)
        elif i > 1: add(DEN, DEN, x)
    swap(32, NUM, DEN)
    o1 = len(ops)
    if EPB == 1: mov(TC, TB); mov(TB, TA); add(TA, NUM, DEN)
    elif odd: add(TB, NUM, DEN)
    else: mov(TC, TA); add(TA, NUM, DEN)
    for o in ops[o1:]: o.rot = True
    for o in ops[osm:]: o.sm = True
def salu(text, R, W): return valu(text, R, W, "salu")
BASE = [("ror", t) for t in range(1, 8)] + [("star", 0)] + [("k10", k) for k in range(3)] + [("star", c) for c in range(1, 10)]
def steps_of(el):
    if EPB == 1: return [("ror8", 8)] + BASE
    return BASE if el % 2 == 0 else [("mrg", 8)] + BASE
def fbuf(steps, si):
    off = len(steps) - 20
    return VZ if si == 0 else F[(si - off) % 2]
def do_form(steps, si, t0, t1):
    kind, a = steps[si]; fb = fbuf(steps, si)
    if kind == "star": form(fb, VY, f"row_newbcast:{POS[a]}", VX, t0, t1)
    elif kind == "k10": form(fb, VY, K10[a][0], VZ, t0, t1)
    elif kind == "ror8": form(fb, VX, "row_shl:8", VX, t0, t1, " bound_ctrl:0")
    else: form(fb, VX, f"row_ror:{a}", VX, t0, t1)
YT0, YT1, ZT0, ZT1 = [float(x) for x in opts.get("yz", "3,5.5,5.3,7.3").split(",")]
SM0, SM1, SM2 = [float(x) for x in opts.get("sm", "0.3,1.5,3.6").split(",")]
def um_slots(b0, b1):
    P_ = int(opts.get('ump', 1))
    ps = [b0 + (b1 - b0) * ((j // 2 * 2 + 1 if P_ else j + 0.5)) / 8 for j in range(8)]
    return [(int(x), int((x % 1) * 8)) for x in ps]
UMP = {"y": um_slots(YT0 + 0.3, YT1 + 0.3), "z": um_slots(ZT0, ZT1 - 0.4), "x": um_slots(float(opts.get("x0", 18.5)), float(opts.get("x1", 19.5)))}
def nm_of(steps, UM):
    off = len(steps) - 20; r = []
    for si in range(len(steps)):
        n = 36 + (1 if si < off or (si - off) % 4 == 0 else 0)
        n += sum(1 for v in UM for (bs, t) in UMP[v] if bs == si - off)
        r.append(n)
    return r
NEL = 5 * EPB; CUT = []; STB = []
d9c = [0]
pend_softmax = None
for el in range(NEL):
    it = el // EPB; nit = (el + 1) // EPB
    steps = steps_of(el); nsteps = steps_of(el + 1); N = len(steps); off = N - 20
    IT[0] = it; B0 = MC[0]
    if el % EPB == 0: CUT.append(B0); d9c[0] = 0
    ST = [0]
    for m in nm_of(steps, UMS[el % 2 if EPB == 2 else 0]): ST.append(ST[-1] + m)
    if it == 2: STB += [B0 - CUT[2] + x for x in ST[:-1]]
    def S(x, B0=B0, ST=ST, off=off, N=N):
        x += off; i = int(math.floor(x))
        return B0 + ST[i] + ((x - i) * (ST[i + 1] - ST[i]) if i < N else 0)
    tiles = []
    if LGB and el % EPB == 0:
        at(B0 + 24, 0); o_ = salu("s_waitcnt lgkmcnt(0)", [], vr(AN9 + 8, 24, 'a') + vr(AH + 8, 24, 'a')); o_.kind = "lgw"; o_.nb = B0 + 20
    o1 = len(ops)
    at(B0 + 1 - YE, LSP); ly = view_load(VY + 16, IDX + 1); TT[0] = max(TT[0], B0 + 1); lz = view_load(VZ + 16, IDX + 2)
    IT[0] = nit
    at(S(float(opts.get('ti', 7.5))), LSP)
    li = [valu(f"buffer_load_dword v{IDX+k}, v{[OX,OY,OZ][k]}, s[{S_SRD}:{S_SRD+3}], s{S_IT} offen offset:{(64 if k else 0) + 104 * (el % EPB)}", [f"v{[OX,OY,OZ][k]}", f"s{S_IT}"], [f"v{IDX+k}"], "vmem") for k in range(3)]
    if el % EPB == EPB - 1:
        salu(f"s_addk_i32 s{S_IT}, {104 * EPB}", [f"s{S_IT}"], [f"s{S_IT}", "scc"]); salu(f"s_cmp_lt_u32 s{S_IT}, {104 * (int(opts.get('iters', 4)) + 1)}", [f"s{S_IT}"], ["scc"])
    for o in ops[o1:]: o.nb = o.prio - 1
    IT[0] = it
    if el == 0: do_form(steps, 0, -40, 0) if steps[0][0] != "mrg" else None
    extra = {}
    def sched_unpack(v, V, raw, loads, t0, t1, itv, pre=None, post=None):
        if v in UMS[el % 2 if EPB == 2 else 0]:
            for j, (bs, t) in enumerate(UMP[v]):
                def cb(j=j):
                    IT[0] = itv
                    if j == 0: at(MC[0] - 3, 0); wait_for(vr(raw,16), loads(), LAT_FAR)
                    if pre and j % 2 == 0: pre(j // 2)
                    mm(V + 4 * j, ASEL + 4 * (j % 2), raw + 4 * (j // 2), "0", [])
                    if post and j % 2 == 1: post(j // 2)
                extra.setdefault((bs + off, t), []).append(cb)
        else:
            def now():
                IT[0] = itv
                at(t0, 0); wait_for(vr(raw,16), loads(), LAT_FAR)
                for q in range(4):
                    if pre: pre(q)
                    at(t0 + (t1 - t0) * q / 4, (t1 - t0) / 32); unpack_chunk(V, raw, q)
                    if post: post(q)
            return now
    ny = sched_unpack("y", VY, VY + 16, lambda ly=ly: ly, S(YT0), S(YT1), it)
    nz = sched_unpack("z", VZ, VZ + 16, lambda lz=lz: lz, S(ZT0), S(ZT1), it)
    lxh = []
    nk, na = nsteps[0]; nfb = fbuf(nsteps, 0)
    XA, XB = S(float(opts.get("x0", 18.5))), S(float(opts.get("x1", 19.5)))
    def xpre(q):
        if nk != "mrg": return
        at(XA + (XB - XA) * q / 4 - 8, 0.7)
        for i in range(8 * q, 8 * q + 8):
            d = VY + i % 16
            valu(f"v_mul_f32_dpp v{d}, v{VX+i}, v{VX+i} row_shl:8 {FULL} bound_ctrl:0", [f"v{VX+i}"], [f"v{d}"], "dpp")
    def xpost(q, S=S):
        ta, tb = S(19.2), S(20) - 2.5
        at(ta + (tb - ta) * q / 4, (tb - ta) / 48)
        for i in range(8 * q, 8 * q + 8):
            if nk == "mrg":
                d = VY + i % 16
                valu(f"v_mul_f32_dpp v{d}, v{VX+i}, v{VX+i} row_shr:8 row_mask:0xf bank_mask:0xc", [f"v{VX+i}", f"v{d}"], [f"v{d}"], "dpp")
            else:
                d = TMP + i % 8
                ctl = f"row_shl:8 {FULL} bound_ctrl:0" if nk == "ror8" else f"row_ror:{na} {FULL}"
                valu(f"v_mul_f32_dpp v{d}, v{VX+i}, v{VX+i} {ctl}", [f"v{VX+i}"], [f"v{d}"], "dpp")
            if i % 2: valu(f"v_cvt_pk_bf16_f32 v{nfb+i//2}, v{d-1}, v{d}", [f"v{d-1}", f"v{d}"], [f"v{nfb+i//2}"])
    nx = sched_unpack("x", VX, VZ + 16, lambda lxh=lxh: lxh, XA, XB, nit, xpre, xpost)
    for si in range(N):
        kind, a = steps[si]; bs = si - off
        if bs == 6 and ny: ny(); IT[0] = it
        if bs == 7 and nz: nz(); IT[0] = it
        if si + 1 < N: do_form(steps, si + 1, S(bs), S(bs + 1))
        if bs == 9:
            IT[0] = nit
            at(S(float(opts.get('tx', 11.2))), 2.0); wait_for(vr(IDX,3), li, LAT_NEAR)
            for k in range(3): valu(f"v_lshl_add_u32 v{IDX+k}, v{IDX+k}, 8, v{GOFF}", [f"v{IDX+k}", f"v{GOFF}"], [f"v{IDX+k}"])
            TT[1] = LSP; o2 = len(ops)
            lxh += view_load(VZ + 16, IDX)
            for o in ops[o2:]: o.nb = o.prio - 1
            IT[0] = it
        if bs == 19 and nx: nx(); IT[0] = it
        fb = fbuf(steps, si)
        ex = {t: extra[(si, t)] for t in range(8) if (si, t) in extra}
        if bs < 0:
            d9 = D9 + 4 * (d9c[0] % ND9); d9c[0] += 1
            def fin(S=S, d9=d9, kind=kind, ps=pend_softmax):
                at(MC[0] + 4 if kind == "mrg" else S(SM1 + (SM2 - SM1) / 6 - 0.5), 2.0)
                add(d9, d9, d9 + 1)
                valu(f"v_cndmask_b32 v{EM}, v{NEGINF}, v{d9}, s[{S_MA}:{S_MA+1}]", [f"v{NEGINF}", f"v{d9}"], [f"v{EM}"])
                if kind == "mrg": valu(f"v_cndmask_b32 v{EMB}, v{NEGINF}, v{d9}, s[{S_MB}:{S_MB+1}]", [f"v{NEGINF}", f"v{d9}"], [f"v{EMB}"])
                add(SM, d9 + 2, d9 + 3)
                if kind == "mrg": ps(S(SM0 + 0.4), S(SM1 + 0.4), S(SM2 + 0.4))
            step_mm(fb, d9, 0, 0, fin, ex)
        else:
            var = bs % 4
            if var == 0: d9 = D9 + 4 * (d9c[0] % ND9); d9c[0] += 1
            fin = None
            if var == 3:
                de = ES + 2 * (bs // 4)
                tiles.append((de, de + 1))
                def fin(d9=d9, de=de, last=(bs == 19), tiles=tiles, el=el):
                    at(MC[0] + 4, 3.0)
                    add(de, d9, d9 + 1); add(de + 1, d9 + 2, d9 + 3)
                    if last and (EPB == 1 or el % 2 == 1):
                        b1 = MC[0] - (4 * AUXT + 5 if AUXT else 9)
                        softmax([(EM if EPB == 1 else EMB, SM)] + tiles, True, b1 + 37 * SM0 + 9, b1 + 37 * SM1, b1 + 37 * SM2)
            step_mm(fb, d9, var, (MASKC if bs == 8 else 0) if var == 0 else None, fin, ex)
    pend_softmax = lambda t0, t1, t2, tiles=tiles: softmax(tiles + [(EM, SM)], False, t0, t1, t2)
for cb in deferred: cb()
ST = STB
out, st = schedule(ops, look=LOOK, late=float(opts.get('late', 4)))
bad = verify(out)
assert bad == 0
lines = finalize(out)
cuts = [i for i, o in enumerate(out) if o.kind == "mfma" and o.g in CUT]
s1 = lines[cuts[2]:cuts[3]]; s2 = lines[cuts[3]:cuts[4]]
if s1 != s2:
    for i, (a, b) in enumerate(zip(s1, s2)):
        if a != b: print("diff at", i, len(s1), len(s2), s1[i-3:i+3], s2[i-3:i+3], file=sys.stderr); break
    raise SystemExit("body not periodic")
body = s1; bops = out[cuts[2]:cuts[3]]
pre_ops = [o for o in out[:cuts[2]] if o.kind != "nop" and o.it >= 2]
post_ops = [o for o in bops if o.kind != "nop" and o.it == 1]
assert sum(1 for o in pre_ops if o.kind == 'vmem') == (11 if YE else 7) and sum(1 for o in pre_ops if o.kind == 'salu') == 2
nm = sum(1 for o in bops if o.kind == "mfma"); nf = sum(o.cost for o in bops if o.kind not in ("mfma", "nop"))
print(st, "body len", len(body), "est cycles/iter", est_cycles(bops), "issue", sum(4 * (4 - o.free) for o in bops if o.kind == "mfma") + nf * 4, "pipe", nm * 16, "pre", len(pre_ops), "post", len(post_ops), "nops in body", sum(1 for o in bops if o.kind == "nop"), file=sys.stderr)
if int(opts.get("prof", 0)):
    seg = []; cur_ = []; nm_ = 0
    for o in bops:
        if o.kind == "mfma":
            if nm_ in ST and cur_: seg.append(cur_); cur_ = []
            nm_ += 1
        cur_.append(o)
    seg.append(cur_)
    from collections import Counter
    for i, sg in enumerate(seg): print(i, est_cycles(sg + [sg[0]]) - 8, dict(Counter(o.kind for o in sg)), file=sys.stderr)
e("s_cmp_ge_u32 s2, 256"); e("s_cbranch_scc1 L_done")
stamp()
e("s_load_dwordx4 s[4:7], s[0:1], 0"); e("s_load_dwordx4 s[8:11], s[0:1], 32")
e("s_load_dwordx4 s[12:15], s[0:1], 48"); e("s_load_dwordx2 s[16:17], s[0:1], 64")
T = VY
vN, vG, vL, vW0, vW1, vWN, vPF, vSM, vT0, vT1, vT2, vWV, vTR, vNA = T, T+1, T+2, T+3, T+4, T+5, T+6, T+7, T+8, T+9, T+10, T+11, T+12, T+20
vHA = VY + 24; vBA = VY + 28
vm = []; dsq = []
def vmem(s, tag): e(s); vm.append(tag)
def vwait(tag):
    last = max(i for i, t in enumerate(vm) if t == tag)
    e(f"s_waitcnt vmcnt({len(vm) - 1 - last})")
def ds(s, tag): e(s); dsq.append(tag)
def dwait(tag):
    last = max(i for i, t in enumerate(dsq) if t == tag)
    e(f"s_waitcnt lgkmcnt({min(15, len(dsq) - 1 - last)})")
def pf_addr():
    e("s_getpc_b64 s[32:33]")
    L.append("L_pfbase:")
    e(f"v_lshlrev_b32 v{vPF}, 7, v0")
    e(f"v_min_u32 v{vPF}, L_end-L_pfbase-4, v{vPF}")
def pf_load():
    vmem(f"global_load_dword v{PFR}, v{vPF}, s[32:33]", "pf")
    if EPB == 2:
        e(f"v_add_u32 v{vPF}, 0x8000, v{vPF}"); e(f"v_min_u32 v{vPF}, L_end-L_pfbase-4, v{vPF}")
        vmem(f"global_load_dword v{PFR+1}, v{vPF}, s[32:33]", "pf")
EARLY = int(opts.get("early", 1))
if PF == 3: pf_addr(); pf_load()
e(f"v_lshrrev_b32 v{vWV}, 6, v0")
e(f"v_and_b32 v{vN}, 15, v0")
e(f"v_readfirstlane_b32 s{S_WAVE}, v{vWV}")
if PF == 6:
    NL = int(opts.get("nl", 6 if EPB == 2 else 3))
    e("s_getpc_b64 s[32:33]")
    L.append("L_pfbase:")
    e("s_getreg_b32 s3, hwreg(HW_REG_HW_ID, 13, 2)"); e("s_getreg_b32 s19, hwreg(HW_REG_HW_ID, 8, 2)"); e("s_lshl2_add_u32 s3, s3, s19")
    e("s_getreg_b32 s19, hwreg(HW_REG_HW_ID, 4, 2)"); e("s_lshl2_add_u32 s3, s3, s19"); e(f"s_mul_i32 s3, s3, {NL * 128}")
    e(f"v_min_u32 v{vPF}, {NL - 1}, v{vN}"); e(f"v_lshl_add_u32 v{vPF}, v{vPF}, 7, s3"); e(f"v_min_u32 v{vPF}, L_end-L_pfbase-4, v{vPF}")
    vmem(f"global_load_dword v{PFR}, v{vPF}, s[32:33]", "pf")
    L.append(f".if (L_end-L_pfbase) > {64 * NL * 128}\n.error \"prefetch does not cover the code\"\n.endif") if 0 else None
if PF == 5:
    NL = int(opts.get("nl", 6)); CM = int(opts.get("cm", 15))
    e("s_getpc_b64 s[32:33]")
    L.append("L_pfbase:")
    e(f"s_bfe_u32 s3, s2, {3 | (CM.bit_length() << 16)}"); e("s_lshl_b32 s3, s3, 2"); e(f"s_add_u32 s3, s3, s{S_WAVE}"); e(f"s_mul_i32 s3, s3, {NL * 128}")
    e(f"v_min_u32 v{vPF}, {NL - 1}, v{vN}"); e(f"v_lshl_add_u32 v{vPF}, v{vPF}, 7, s3"); e(f"v_min_u32 v{vPF}, L_end-L_pfbase-4, v{vPF}")
    vmem(f"global_load_dword v{PFR}, v{vPF}, s[32:33]", "pf")
e(f"s_lshl_b32 s3, s2, 2"); e(f"s_add_u32 s3, s3, s{S_WAVE}")
e(f"s_mul_i32 s19, s3, 416")
e(f"v_lshl_add_u32 v{OX}, v{vN}, 2, s19")
e(f"v_bfe_u32 v{vG}, v0, 4, 2")
e(f"s_lshl_b32 s{S_T}, s{S_WAVE}, 13")
e(f"v_lshrrev_b32 v{vT2}, 1, v{vN}")
e(f"v_xor_b32 v{vT0}, v{vT2}, v{vG}")
e(f"v_lshlrev_b32 v{vT0}, 5, v{vT0}")
e(f"v_and_b32 v{vT1}, 1, v0")
e(f"v_lshl_add_u32 v{vT0}, v{vT1}, 4, v{vT0}")
e(f"v_lshl_add_u32 v{vT0}, v{vG}, 8, v{vT0}")
e(f"v_add_u32 v{vW0}, s{S_T}, v{vT0}")
e(f"v_xor_b32 v{vW1}, 0x80, v{vW0}")
e(f"s_add_u32 s{S_T+1}, s{S_T}, 0x1000")
e(f"s_mov_b32 m0, s{S_T}")
def part2():
    e(f"v_lshlrev_b32 v{GOFF}, 4, v{vG}")
    e(f"v_and_b32 v{vL}, 63, v0"); e(f"v_lshlrev_b32 v{vL}, 2, v{vL}")
    e(f"v_lshlrev_b32 v{vSM}, 2, v{vT1}")
    e(f"v_lshl_add_u32 v{vT0}, v{vT2}, 5, v{vSM}"); e(f"v_lshl_add_u32 v{vT0}, v{vG}, 3, v{vT0}")
    e(f"v_cmp_eq_u32 vcc, 0, v{vWV}")
    e(f"v_lshlrev_b32 v{vT1}, 5, v{vT1}"); e(f"v_and_b32 v{vT2}, 3, v{vT2}")
    e(f"v_cndmask_b32 v{vSM}, v{vL}, v{vT0}, vcc")
    e(f"v_lshl_add_u32 v{vT1}, v{vT2}, 3, v{vT1}"); e(f"v_bfe_u32 v{vT2}, v0, 3, 2"); e(f"v_lshl_add_u32 v{vT1}, v{vT2}, 6, v{vT1}")
    e(f"v_bfe_u32 v{vT2}, v0, 5, 1"); e(f"v_lshlrev_b32 v{vT2}, 2, v{vT2}")
    e(f"v_cmp_eq_u32 vcc, 3, v{vWV}")
    e(f"v_add_u32 v{vT1}, v{vT1}, v{vT2}"); e(f"v_and_b32 v{vT0}, 31, v0")
    e(f"v_cndmask_b32 v{vSM}, v{vSM}, v{vT1}, vcc")
    e(f"v_cmp_eq_u32 vcc, 2, v{vWV}")
    e(f"v_lshl_add_u32 v{vT0}, v{vT0}, 3, v{vT2}"); e(f"s_mov_b32 s{S_T+2}, {O_P}")
    e(f"v_cndmask_b32 v{vSM}, v{vSM}, v{vT0}, vcc")
    e(f"s_cmp_eq_u32 s{S_WAVE}, 1"); e(f"s_cselect_b32 s{S_T+2}, {O_H}, s{S_T+2}")
    e(f"s_cmp_eq_u32 s{S_WAVE}, 3"); e(f"s_cselect_b32 s{S_T+2}, {O_HH}, s{S_T+2}")
    e(f"s_cmp_eq_u32 s{S_WAVE}, 0"); e(f"s_cselect_b32 s{S_T+2}, {O_B}, s{S_T+2}")
def part3():
    def nib(tab): return sum(v << (4 * i) for i, v in enumerate(tab))
    e(f"s_mov_b32 s20, 0x{nib(YT) & 0xffffffff:08x}"); e(f"s_mov_b32 s21, 0x{nib(YT) >> 32:08x}")
    e(f"v_lshlrev_b32 v{OZ}, 2, v{vN}")
    e(f"v_lshrrev_b64 v[{vT0}:{vT0+1}], v{OZ}, s[20:21]")
    e(f"s_mov_b32 s22, 0x{nib(ZT) & 0xffffffff:08x}"); e(f"s_mov_b32 s23, 0x{nib(ZT) >> 32:08x}")
    e(f"v_and_b32 v{OY}, 15, v{vT0}")
    e(f"v_lshrrev_b64 v[{vT0}:{vT0+1}], v{OZ}, s[22:23]")
    e(f"v_and_b32 v{OZ}, 15, v{vT0}")
    e(f"v_lshl_add_u32 v{OY}, v{OY}, 2, s19")
    e(f"v_lshl_add_u32 v{OZ}, v{OZ}, 2, s19")
if PF in (1, 2): pf_addr()
if not EARLY: part2()
e("s_waitcnt lgkmcnt(0)")
stamp()
vmem(f"global_load_dword v{IDX}, v{OX}, s[{S_IDX}:{S_IDX+1}]", "idx0")
for half in range(2):
    for q in range(4):
        vmem(f"global_load_lds_dwordx4 v{vW1 if q & 2 else vW0}, s[{S_W}:{S_W+1}] offset:{1024*q}", "wdma")
    if half == 0:
        e(f"v_add_u32 v{vW0}, 0x1000, v{vW0}"); e(f"s_mov_b32 m0, s{S_T+1}"); e(f"v_add_u32 v{vW1}, 0x1000, v{vW1}")
if EARLY: part2()
e(f"s_cselect_b64 s[34:35], s[{S_B}:{S_B+1}], s[{S_H}:{S_H+1}]")
e(f"s_cmp_eq_u32 s{S_WAVE}, 2"); e(f"s_mov_b32 m0, s{S_T+2}"); e(f"s_cselect_b64 s[34:35], s[{S_P}:{S_P+1}], s[34:35]")
vmem(f"global_load_lds_dword v{vSM}, s[34:35]", "wdma")
e(f"v_mov_b32 v{MASKC+1}, 0")
e(f"v_lshrrev_b32 v{vL}, 1, v{vL}")
ds(f"ds_write_b16 v{vL}, v{MASKC+1} offset:{O_Z}", "z")
e(f"v_lshrrev_b32 v{vT0}, 3, v{vN}"); e(f"v_and_b32 v{vT1}, 3, v{vN}"); e(f"v_lshl_or_b32 v{vT0}, v{vT0}, 2, v{vT1}")
e(f"v_lshrrev_b32 v{vT1}, 1, v{vG}"); e(f"v_xor_b32 v{vT0}, v{vT0}, v{vT1}"); e(f"v_lshlrev_b32 v{vT0}, 5, v{vT0}")
e(f"v_and_b32 v{vT1}, 1, v{vG}"); e(f"v_lshl_add_u32 v{vT0}, v{vT1}, 4, v{vT0}"); e(f"v_lshl_add_u32 v{vT0}, v{vN}, 8, v{vT0}")
e(f"v_add_u32 v{vWN}, s{S_T}, v{vT0}")
vWNk = [vWN, vW0, vW1, vSM]
for ks in range(1, 4): e(f"v_xor_b32 v{vWNk[ks]}, {ks << 6}, v{vWN}")
e(f"v_lshrrev_b32 v{vT0}, 2, v{vN}")
e(f"v_lshl_or_b32 v{vT1}, v{vT1}, 2, v{vT0}")
e(f"v_lshl_add_u32 v{vT0}, v{vG}, 3, v{vT0}"); e(f"v_lshlrev_b32 v{vT0}, 8, v{vT0}")
e(f"v_lshl_add_u32 v{vT0}, v{vT1}, 5, v{vT0}")
e(f"v_and_b32 v{vT1}, 3, v{vN}"); e(f"v_lshl_add_u32 v{vTR}, v{vT1}, 3, v{vT0}")
for t in range(1, 8): e(f"v_xor_b32 v{vTR+t}, {t << 5}, v{vTR}")
e(f"v_lshlrev_b32 v{vBA}, 6, v{vG}")
e(f"s_mov_b32 s{S_SRD}, s{S_IDX}"); e(f"s_mov_b32 s{S_SRD+1}, s{S_IDX+1}"); e(f"s_mov_b32 s{S_SRD+2}, {4096*104}"); e(f"s_mov_b32 s{S_SRD+3}, 0x00020000")
part3()
stamp()
vwait("idx0"); stamp()
e(f"v_lshl_add_u32 v{IDX}, v{IDX}, 8, v{GOFF}")
for q in range(4): vmem(f"global_load_dwordx4 {rng(VZ+16+4*q,4)}, v{IDX}, s[{S_TAB}:{S_TAB+1}] offset:{64*q}", "view0")
for k in range(1, 3): vmem(f"global_load_dword v{IDX+k}, v{[OX,OY,OZ][k]}, s[{S_IDX}:{S_IDX+1}] offset:64", "idx1")
e(f"s_lshl_b32 s3, s3, 3"); e(f"v_lshl_add_u32 v{OOFF}, v{vG}, 1, s3")
PADS = int(opts.get("pads", 1))
def warm():
    e("s_mov_b64 vcc, -1")
    for w in range(3): e(f"s_cmp_eq_u32 s{S_WAVE}, {w}"); e(f"s_cbranch_scc1 L_pad{w}")
    e("s_branch L_pad3")
    L.append("L_resume:")
    e("s_mov_b64 vcc, 0")
if PADS: warm()
vwait("wdma"); e("s_waitcnt lgkmcnt(0)")
stamp(); e("s_barrier"); stamp()
WN = F[0]; HB = ACC; WHA = RF
trs = [f"ds_read_b64_tr_b16 {rng(AW+(t*4+ks)*4+2*u,2,'a')}, v{vTR+t} offset:{8192*ks+1024*u}" for t in range(8) for ks in range(4) for u in range(2)]
fill = []
def f(s_): fill.append(s_)
def smask(r, v): f(f"s_mov_b32 s{r}, 0x{v & 0xffffffff:08x}"); f(f"s_mov_b32 s{r+1}, 0x{v >> 32:08x}")
f(f"s_lshl_b32 s{S_T+1}, s{S_WAVE}, 5"); f(f"v_and_b32 v{vT0}, 12, v{vN}"); f(f"v_add_u32 v{vT2}, s{S_T+1}, v{vT0}")
f(f"v_bfe_u32 v{vT0}, v{vN}, 1, 1"); f(f"v_lshl_add_u32 v{vT2}, v{vT0}, 7, v{vT2}")
f(f"v_and_b32 v{vT1}, 1, v{vN}"); f(f"v_lshl_add_u32 v{vT2}, v{vT1}, 1, v{vT2}")
f(f"v_mul_u32_u24 v{SIX}, 0xaaaa, v{vT1}"); f(f"v_add_u32 v{SIX}, 0x4444, v{SIX}")
vZ, vS9, vSH = vL, vPF, vWV
f(f"v_xor_b32 v{vZ}, 32, v{GOFF}"); f(f"v_add_u32 v{vZ}, {O_Z}, v{vZ}")
f(f"v_lshl_add_u32 v{vSH}, v{vT1}, 7, v{GOFF}"); f(f"v_mul_u32_u24 v{vT0}, 320, v{vT0}"); f(f"v_add3_u32 v{vS9}, v{vSH}, v{vT0}, s{S_OM}")
f(f"v_add_u32 v{vSH}, {O_HH}, v{vSH}")
smask(S_MA, 0x3333333333333333)
f(f"v_cndmask_b32 v{vSH}, v{vZ}, v{vSH}, s[{S_MA}:{S_MA+1}]")
if UM:
    f(f"v_lshlrev_b32 v{vT0}, 4, v{vT1}"); f(f"v_mov_b32 v{vT1}, 0x3f80"); f(f"v_lshlrev_b32 v{vT1}, v{vT0}, v{vT1}")
    smask(S_MB, 0xF0000F0000F0000F)
    f(f"v_cndmask_b32 v{vT1}, 0, v{vT1}, s[{S_MB}:{S_MB+1}]")
    f(f"v_cndmask_b32 v{vT0}, 0, v{vT1}, s[{S_MA}:{S_MA+1}]"); f(f"v_sub_u32 v{vT1}, v{vT1}, v{vT0}")
    f(f"v_accvgpr_write_b32 a{ASEL}, v{vT0}"); f(f"v_accvgpr_write_b32 a{ASEL+1}, v{vT1}")
    f(f"v_accvgpr_write_b32 a{ASEL+6}, v{vT0}"); f(f"v_accvgpr_write_b32 a{ASEL+7}, v{vT1}")
for r in range(4): f(f"v_accvgpr_write_b32 a{AZ+r}, 0")
for var in range(4):
    smask(S_MA, 0x000F000F000F000F << (4 * var))
    f(f"v_cndmask_b32 v{vNA+var}, v{vZ}, v{vS9}, s[{S_MA}:{S_MA+1}]"); f(f"v_cndmask_b32 v{vHA+var}, v{vZ}, v{vSH}, s[{S_MA}:{S_MA+1}]")
f(f"v_mov_b32 v{NEGINF}, 0xff800000"); f(f"v_mov_b32 v{VCS}, {f32(CSC)}")
f(f"v_mov_b32 v{MASKC+2}, 0"); f(f"v_mov_b32 v{MASKC+3}, 0")
smask(S_MA, inval)
f(f"v_cndmask_b32 v{MASKC}, v{MASKC+1}, v{NEGINF}, s[{S_MA}:{S_MA+1}]")
smask(S_MA, 0xff); smask(S_MB, 0xff00); smask(S_OM, 0x0001000100010001); f(f"s_movk_i32 s{S_IT}, 104")
e(f"s_mov_b32 s{S_OM}, {O_HI}")
def tr(n, nf=1):
    for _ in range(n):
        if trs: ds(trs.pop(0), "tr")
        for _ in range(nf):
            if fill: e(fill.pop(0))
for ks in range(4): ds(f"ds_read_b128 {rng(HB+4*ks,4)}, v{GOFF} offset:{O_H+64*ks}", "wn")
for uu in range(2):
    for ks in range(4): ds(f"ds_read_b128 {rng(WN+16*uu+4*ks,4)}, v{vWNk[ks]} offset:{4096*uu}", "wn")
for k in range(4): ds(f"ds_read_b128 {rng(BIAS+16+4*k,4)}, v{vBA} offset:{O_B+16*k}", "bb")
tr(8, 2)
dwait("wn")
for ks in range(4):
    for uu in range(2):
        c = "0" if ks == 0 else rng(WHA+4*uu, 4)
        e(f"v_mfma_f32_16x16x32_bf16 {rng(WHA+4*uu,4)}, {rng(HB+4*ks,4)}, {rng(WN+16*uu+4*ks,4)}, {c}")
        tr(1)
tr(4, 2)
for uu in range(2):
    a = WHA + 4 * uu
    e(f"v_cvt_pk_bf16_f32 v{a+1}, v{a}, v{a}")
    ds(f"ds_write_b16 v{vT2}, v{a+1} offset:{O_HI+16*uu}", "whw")
dwait("bb")
for q in range(16):
    s_ = BIAS + 16 + q
    f(f"v_lshlrev_b32 v{BIAS+2*q}, 16, v{s_}"); f(f"v_and_b32 v{BIAS+2*q+1}, 0xffff0000, v{s_}")
tr(15, 2)
dwait("whw")
e("s_barrier")
for var in range(4):
    for u in range(2):
        trs.append(f"ds_read_b128 {rng(AH+8*var+4*u,4,'a')}, v{vHA+var} offset:{64*u}")
        trs.append(f"ds_read_b128 {rng(AN9+8*var+4*u,4,'a')}, v{vNA+var} offset:{64*u}")
NI = int(opts.get("ni", 0))
tr(len(trs) - max(NI, 16), 2)
while fill: e(fill.pop(0))
tr(len(trs) - NI)
stamp()
assert vm[-6:] == ["view0"] * 4 + ["idx1"] * 2
pre = [o for o in pre_ops if (o.kind in VALUK or o.kind == "mfma") and not o.text.startswith("v_lshl_add_u32")]
pre2 = []
for q in range(4):
    w = Op("wait", "wait", R=vr(VZ+16+4*q,4), W=vr(VZ+16+4*q,4) + ["order"], covers=[], prio=1e5); w.extra_after = 5 - q; pre2.append(w)
for i, o in enumerate(sorted(pre, key=lambda o: o.seq)):
    if o.kind == "mfma": o2 = mfma(o.text, o.W, [r for r in o.R if r in o.AB], [], o.C); pre2.append(o2)
    else: pre2.append(Op(o.text, o.kind, o.R, o.W, prio=i))
w = Op("wait", "wait", R=vr(IDX+1,2), W=vr(IDX+1,2) + ["order"], covers=[], prio=12); w.extra_after = 0; pre2.append(w)
for k in range(1, 3): pre2.append(Op(f"v_lshl_add_u32 v{IDX+k}, v{IDX+k}, 8, v{GOFF}", "valu", [f"v{IDX+k}"], [f"v{IDX+k}"], prio=12))
if YE:
    for q in range(4): pre2.append(Op(f"global_load_dwordx4 {rng(VY+16+4*q,4)}, v{IDX+1}, s[{S_TAB}:{S_TAB+1}] offset:{64*q}", "vmem", [f"v{IDX+1}"], vr(VY+16+4*q,4) + ["order"], prio=int(opts.get("y0", 20)) + 8 * q, cost=2))
po, _ = schedule(pre2, look=1e3); assert verify(po) == 0
pl = finalize(po)
w0 = [i for i, s_ in enumerate(pl) if "vmcnt(2)" in s_][0]
yl = [i for i, s_ in enumerate(pl) if s_.startswith("global_load")]
for i, s_ in enumerate(pl):
    if yl and i == yl[0]: tr(len(trs))
    e(s_)
    if i >= w0 and (i - w0) % int(opts.get("nis", 2)) == 0: tr(1)
tr(len(trs))
e(f"s_waitcnt lgkmcnt({12 if LGB else 0})")
def clone(o, seq):
    if o.kind == "nop": return o
    if o.kind == "mfma": o2 = mfma(o.text, o.W, [r for r in o.R if r in o.AB], [], o.C)
    else: o2 = Op(o.text, o.kind, o.R, o.W)
    o2.seq = seq; return o2
import io, contextlib
for k in range(9):
    chk = [clone(o, i) for i, o in enumerate(po)] + [Op(f"s_nop {k}", "nop")] + [clone(o, 10000 + i) for i, o in enumerate(bops[:40])]
    with contextlib.redirect_stdout(io.StringIO()): nb_ = verify(chk)
    if nb_ == 0: break
assert nb_ == 0
if k: e(f"s_nop {k - 1}")
print("entry nops", k, file=sys.stderr)
if DBG == 4 and int(opts["sa"]) < 0:
    e("s_load_dwordx2 s[98:99], s[0:1], 72"); e("s_waitcnt lgkmcnt(0)"); e("s_not_b32 s34, s40"); e(f"v_mov_b32 v{PFR}, s34"); e(f"v_mov_b32 v{PFR+1}, 0")
    e("s_waitcnt vmcnt(0)"); e("s_mov_b64 exec, 1"); e(f"global_atomic_umax v{PFR+1}, v{PFR}, s[98:99]"); e("s_mov_b64 exec, -1")
if DBG: e("s_mov_b32 s34, 0")
L.append(".p2align 3"); L.append("L_loop:")
if DBG and not STEPST: e("s_mov_b32 m0, s34"); e("s_memrealtime s[32:33]"); e("s_waitcnt lgkmcnt(0)"); e(f"s_movreld_b32 s{40+2*NST[0]}, s32"); e("s_add_u32 s34, s34, 2"); NST[0] += 4
PEEL = int(opts.get("peel", 2))
mi = [i for i, o in enumerate(bops) if o.kind == "mfma"]
xi = mi[ST[-PEEL]] if PEEL else len(bops)
nm_ = 0
for i, s in enumerate(body):
    if i == xi: e("s_cbranch_scc0 L_tail")
    if s.startswith("v_mfma") or s.startswith("v_smfmac"):
        if STEPST and nm_ in ([ST[int(x)] for x in opts['stl'].split(',')] if 'stl' in opts else ST[::STEPST]): stamp(True)
        nm_ += 1
    e(s)
if STEPST: stamp(True)
if STEPST and DBG == 4:
    e("s_waitcnt lgkmcnt(0)")
    e(f"s_sub_u32 s96, s{40+2*int(opts['sb'])}, s{40+2*int(opts['sa'])}")
if PEEL: e("s_branch L_loop"); L.append(".p2align 6"); L.append("L_tail:")
else: e("s_cbranch_scc1 L_loop")
stamp()
assert not any(o.kind != "nop" and o.it == 1 for o in bops[xi:])
assert not any(o.kind == "salu" for o in bops[xi:])
rest = [o for o in bops[xi:] + out[cuts[3]:cuts[4]] if o.kind != "nop" and o.it == 2 and not getattr(o, "sm", False)]
assert not any(o.kind in ("vmem", "wait") for o in rest)
ops = []; IT[0] = 0; at(1e6, 1)
def dmax():
    for c in ("row_ror:8 " + FULL, "row_ror:4 " + FULL, "row_ror:2 " + FULL, "row_ror:1 " + FULL, "row_bcast:15 row_mask:0xa bank_mask:0xf", "row_bcast:31 row_mask:0xc bank_mask:0xf"):
        valu(f"v_max_f32_dpp v{MX}, v{MX}, v{MX} {c}", [f"v{MX}"], [f"v{MX}"], "dpp")
for o in sorted(rest, key=lambda o: o.seq):
    if o.kind == "mfma":
        o2 = mfma(o.text, o.W, [r for r in o.R if r in o.AB], [], o.C); o2.free = o.free; push(o2)
    else: valu(o.text, o.R, o.W, o.kind, cost=o.cost).prio = 1e5 + o.prio
TL = [(EM if EPB == 1 else EMB, SM)] + [(ES + 2 * q, ES + 2 * q + 1) for q in range(5)]
M1 = 229; FS = 230; S_M2 = S_MAX + 1
valu(f"v_max3_f32 v{MX}, v{TL[0][0]}, v{TL[1][0]}, v{TL[2][0]}", [f"v{x[0]}" for x in TL[:3]], [f"v{MX}"])
valu(f"v_max3_f32 v{MX}, v{MX}, v{TL[3][0]}, v{TL[4][0]}", [f"v{MX}", f"v{TL[3][0]}", f"v{TL[4][0]}"], [f"v{MX}"])
dmax()
valu(f"v_mul_f32 v{M1}, v{VCS}, v{MX}", [f"v{MX}", f"v{VCS}"], [f"v{M1}"])
valu(f"v_readlane_b32 s{S_MAX}, v{M1}, 63", [f"v{M1}"], [f"s{S_MAX}"], "readlane")
valu(f"v_mov_b32 v{M1}, s{S_MAX}", [f"s{S_MAX}"], [f"v{M1}"])
for i, (x, s_) in enumerate(TL[:5]):
    valu(f"v_fma_f32 v{x}, v{x}, v{VCS}, -s{S_MAX}", [f"s{S_MAX}", f"v{x}", f"v{VCS}"], [f"v{x}"])
    valu(f"v_exp_f32 v{x}, v{x}", [f"v{x}"], [f"v{x}"], "trans", cost=2)
    if i == 0: valu(f"v_mul_f32 v{NUM}, v{x}, v{s_}", [f"v{x}", f"v{s_}"], [f"v{NUM}"])
    else: valu(f"v_fmac_f32 v{NUM}, v{x}, v{s_}", [f"v{x}", f"v{s_}", f"v{NUM}"], [f"v{NUM}"])
    if i == 1: add(DEN, TL[0][0], x)
    elif i > 1: add(DEN, DEN, x)
swap(16, TC, TB); add(TC, TC, TB)
for c in (8, 4, 2, 1): valu(f"v_add_f32_dpp v{TC}, v{TC}, v{TC} row_ror:{c} {FULL}", [f"v{TC}"], [f"v{TC}"], "dpp")
x, s_ = TL[5]
valu(f"v_max_f32 v{MX}, v{MX}, v{x}", [f"v{MX}", f"v{x}"], [f"v{MX}"])
dmax()
valu(f"v_mul_f32 v{MX}, v{VCS}, v{MX}", [f"v{MX}", f"v{VCS}"], [f"v{MX}"])
valu(f"v_readlane_b32 s{S_M2}, v{MX}, 63", [f"v{MX}"], [f"s{S_M2}"], "readlane")
valu(f"v_fma_f32 v{x}, v{x}, v{VCS}, -s{S_M2}", [f"s{S_M2}", f"v{x}", f"v{VCS}"], [f"v{x}"])
valu(f"v_subrev_f32 v{FS}, s{S_M2}, v{M1}", [f"s{S_M2}", f"v{M1}"], [f"v{FS}"])
valu(f"v_exp_f32 v{x}, v{x}", [f"v{x}"], [f"v{x}"], "trans", cost=2)
valu(f"v_exp_f32 v{FS}, v{FS}", [f"v{FS}"], [f"v{FS}"], "trans", cost=2)
valu(f"v_mul_f32 v{s_}, v{x}, v{s_}", [f"v{x}", f"v{s_}"], [f"v{s_}"])
valu(f"v_fma_f32 v{DEN}, v{DEN}, v{FS}, v{x}", [f"v{DEN}", f"v{FS}", f"v{x}"], [f"v{DEN}"])
valu(f"v_fma_f32 v{NUM}, v{NUM}, v{FS}, v{s_}", [f"v{NUM}", f"v{FS}", f"v{s_}"], [f"v{NUM}"])
swap(32, NUM, DEN); add(NUM, NUM, DEN)
swap(16, TA, NUM); add(TA, TA, NUM)
for c in (8, 4, 2, 1): valu(f"v_add_f32_dpp v{TA}, v{TA}, v{TA} row_ror:{c} {FULL}", [f"v{TA}"], [f"v{TA}"], "dpp")
swap(32, TC, TA)
valu(f"v_rcp_f32 v{TA}, v{TA}", [f"v{TA}"], [f"v{TA}"], "trans", cost=2)
valu(f"v_mul_f32 v{TC}, v{TC}, v{TA}", [f"v{TC}", f"v{TA}"], [f"v{TC}"])
valu(f"v_cvt_pk_bf16_f32 v{TC}, v{TC}, v{TC}", [f"v{TC}"], [f"v{TC}"])
NP = 24
pref = []
for o in [o for o in bops[:xi] if o.kind != "nop"][-NP:]:
    if o.kind == "mfma": o2 = mfma(o.text, o.W, [r for r in o.R if r in o.AB], [], o.C); o2.free = o.free
    else: o2 = Op(o.text, "salu" if o.kind in ("wait", "vmem") else o.kind, o.R, o.W, prio=0, cost=o.cost)
    pref.append(o2)
assert not any(o.kind == "nop" for o in bops[xi - NP:xi])
to, _ = schedule(pref + ops, look=1e9, fixed=NP); assert verify(to) == 0
to = to[NP:]
print("peeled part est", est_cycles(bops[xi:]), file=sys.stderr)
print("tail est", est_cycles(to), "pre est", est_cycles(po), file=sys.stderr)
for s in finalize(to): e(s)
stamp()
if DBG == 4:
    a_, b_, K_ = int(opts["sa"]), int(opts["sb"]), int(opts["sk"])
    if b_ < 0: b_ += NST[0]
    e("s_waitcnt lgkmcnt(0)")
    if STEPST: e(f"s_sub_u32 s34, s96, {int(opts.get('sub', 0))}"); e("s_max_i32 s34, s34, 0")
    elif a_ >= 0:
        e(f"s_sub_u32 s34, s{40+2*b_}, s{40+2*a_}")
    else:
        e("v_mov_b32 v1, 0"); e("global_load_dword v2, v1, s[98:99] sc1"); e("s_waitcnt vmcnt(0)"); e("v_readfirstlane_b32 s34, v2"); e("s_nop 3")
        e("s_not_b32 s34, s34"); e(f"s_sub_u32 s34, s{40+2*b_}, s34")
    if int(opts.get("sc", 0)):
        for i, l in enumerate(L): L[i] = l.replace("s_memrealtime", "s_memtime")
        e("s_lshr_b32 s34, s34, 4")
    e("s_min_u32 s34, s34, 10000"); e(f"s_mul_i32 s34, s34, {K_}"); e("s_min_u32 s34, s34, 20000")
    stamp(True); e("s_waitcnt lgkmcnt(0)")
    L.append("L_spin:")
    e("s_memrealtime s[32:33]"); e("s_waitcnt lgkmcnt(0)")
    e(f"s_sub_u32 s35, s32, s{40+2*(NST[0]-1)}"); e("s_cmp_lt_u32 s35, s34"); e("s_cbranch_scc1 L_spin")
if DBG == 1:
    e("s_load_dwordx2 s[34:35], s[0:1], 80"); e("s_waitcnt lgkmcnt(0)")
    e("s_lshl_b32 s3, s3, 4"); e(f"v_mov_b32 v1, s3")
    for k in range(NST[0]):
        e(f"v_mov_b32 v2, s{40+2*k}"); e(f"global_store_dword v1, v2, s[34:35] offset:{4*k}")
    e(f"v_mov_b32 v2, {NST[0]}"); e(f"global_store_dword v1, v2, s[34:35] offset:124")
e(f"s_mov_b64 exec, s[{S_OM}:{S_OM+1}]")
e(f"global_store_short v{OOFF}, v{TC}, s[{S_OUT}:{S_OUT+1}]")
L.append("L_done:")
e("s_endpgm")
L.append("L_end:")
L += ['.section .rodata,"a"', ".p2align 6", ".amdhsa_kernel %s_kernel" % NAME,
      "  .amdhsa_next_free_vgpr 512", "  .amdhsa_next_free_sgpr %d" % (100 if DBG else 40), "  .amdhsa_accum_offset 256",
      "  .amdhsa_group_segment_fixed_size 0", "  .amdhsa_kernarg_size 88", "  .amdhsa_user_sgpr_count 2",
      "  .amdhsa_user_sgpr_kernarg_segment_ptr 1", "  .amdhsa_system_sgpr_workgroup_id_x 1",
      "  .amdhsa_float_denorm_mode_32 3",
      ".end_amdhsa_kernel"]
NT = opts.get("nt", "")
import re
for i, l in enumerate(L):
    m = re.match(r"\s+global_load_dwordx4 v\[\d+:\d+\], v(\d+), s\[6:7\]", l)
    if m and "xyz"[int(m.group(1)) - IDX] in NT: L[i] = l + " nt"
    if "i" in NT and (re.match(r"\s+global_load_dword v\d+, v\d+, s\[4:5\]", l) or "buffer_load_dword" in l): L[i] = l + " nt"
    if "w" in NT and "global_load_lds" in l: L[i] = l + " nt"
    if "p" in NT and "s[32:33]" in l and "global_load" in l: L[i] = l + " nt"
if PADS:
    import subprocess, tempfile, os
    def sizes(lines):
        txt = "\n".join(lines)
        for w in range(4): txt = txt.replace(f"L_pad{w}", "L_resume")
        with tempfile.TemporaryDirectory() as d:
            open(d + "/a.s", "w").write(txt)
            subprocess.run(["clang", "-x", "assembler", "-target", "amdgcn-amd-amdhsa", "-mcpu=gfx950", "-c", d + "/a.s", "-o", d + "/a.o"], check=True)
            dis = subprocess.run(["llvm-objdump", "-d", "--mcpu=gfx950", d + "/a.o"], capture_output=True, text=True).stdout
        return [(int(m.group(1), 16), len(m.group(2).split()) * 4) for m in re.finditer(r"// ([0-9A-F]{12}): ((?:[0-9A-F]{8} ?)+)", dis)]
    k0 = L.index("%s_kernel:" % NAME); k1 = L.index("L_end:")
    L[k0:k1] = [l for l in L[k0:k1] if not l.startswith(".p2align")]
    k1 = L.index("L_end:")
    sz = sizes(L)
    ins = [i for i in range(k0, k1) if L[i].startswith("    ")]
    assert len(ins) == len(sz), (len(ins), len(sz))
    lo = L.index("L_loop:")
    POFF = int(opts.get("poff", 0))
    newL = L[:k0]; addr = 0; nextp = None; npad = 0; j = 0
    for i in range(k0, k1):
        if i == lo:
            print("prologue bytes", addr, file=sys.stderr)
            newL.append("    s_branch L_loop"); newL.append(".p2align 12"); addr = 4096; nextp = 4096
        if L[i - 1] == "L_tail:":
            newL.append(f"L_pad{npad}:"); newL.append(f"    s_cbranch_vccnz PADT{npad}"); npad += 1; addr += 4
        if L[i].startswith("    "):
            if nextp is not None and addr >= nextp and "s_endpgm" not in L[i]:
                newL.append(f"L_pad{npad}:"); newL.append(f"    s_cbranch_vccnz PADT{npad}"); npad += 1; addr += 4; nextp += 4096
            addr += sz[j][1]; j += 1
        newL.append(L[i])
    newL += L[k1:]
    L = [re.sub(r"PADT(\d+)", lambda m: f"L_pad{int(m.group(1)) + 4}" if int(m.group(1)) + 4 < npad else "L_resume", l) for l in newL]
    print("pads", npad, "code bytes", addr, file=sys.stderr)
print("\n".join(L))
```

```python
import sys, math, struct, re, io, contextlib, subprocess, tempfile
from sched import *
NAME = "standalone__factorization_afm__recsys"
opts = dict(a.split("=") for a in "sm=1,3,8 gy=3.8 latfar=370 y1=5.8 z0=5.4 z1=6.9 ti=3 tx=10.2 x0=18.3 x1=19.3 y0=3.9 nb0=100".split() + sys.argv[1:] if "=" in a)
def oi(k, d): return int(opts.get(k, d))
def of(k, d): return float(opts.get(k, d))
LAT_FAR = oi("latfar", 400); LAT_Z = oi("latz", 300); LAT_NEAR = oi("latnear", 300)
DBG = oi("dbg", 0); STEPST = oi("stepst", 0); LSP = of("lsp", 9); EPI = of("epi", 3.1); LOOK = oi("look", 30); LATE = of("late", 8)
VINIT = oi('vinit', 1); YE = oi("ye", 36); AUXT = oi("auxt", 5); PEEL = oi("peel", 2); RSGN = oi("rsgn", -1); NT = opts.get("nt", "xyzi")
YT = [0,4,3,2,1,5,7,3,2,6,9,0,3,7,8,9]
ZT = [2,8,6,7,1,4,0,9,1,5,9,4,5,8,1,6]
K10 = [("", lambda n: n), ("quad_perm:[1,0,3,2]", lambda n: n ^ 1), ("quad_perm:[2,3,0,1]", lambda n: n ^ 2)]
seen = set(); inval = 0
for k, (_, pi) in enumerate(K10):
    for n in range(16):
        a, b = ZT[n], YT[pi(n)]; key = (min(a, b), max(a, b))
        if a == b or key in seen: inval |= 1 << (16 * k + n)
        else: seen.add(key)
assert len(seen) == 45
STARS = [14, 15, 0, 4, 8, 12, 1, 5, 9, 13]
assert sorted(YT[l] for l in STARS) == list(range(10))
BASE = [("ror", t) for t in range(1, 8)] + [("star", 14)] + [("k10", k) for k in range(3)] + [("star", l) for l in STARS[1:]]
FULL = "row_mask:0xf bank_mask:0xf"
BIAS = 0; VX = 32; VY = 64; VZ = 96; F = [128, 144]; TMP = 160; ACC = 168; RF = 184; RF2 = 192; D9 = 200; ND9 = 3
MASKC = 212; DY = [216, 220]; SK = 224; EE = 226; EM = 231; EMB = 232; SIX = 233; NEGINF = 234; MX = 235; NUM = 236; DEN = 237
TA = 238; TB = 239; TC = 240; K64 = 241; LW = 242; LR = 243; IDX = 245; OX = 248; OY = 249; OZ = 250; GOFF = 251; OOFF = 252; VCS = 253; M1 = 254; FS = 255
AW = 0; AH = 128; AN9 = 160; ADP = 184; ASEL = 208; AZ = 214
S_IDX = 4; S_TAB = 6; S_W = 8; S_B = 10; S_H = 12; S_P = 14; S_OUT = 16; S_WAVE = 18; S_MA = 20; S_IT = 22; S_MAX = 24; S_M2 = 25; S_T = 26; S_MB = 28; S_OM = 30; S_SRD = 36
LN9 = 32768
O_P = LN9; O_HH = LN9 + 256; O_Z = LN9 + 512; O_B = LN9 + 640; O_PN = LN9 + 896; O_SK = LN9 + 1152; SKW = 2560; SKP = 1280; RS = 80
LDS = O_SK + 4 * SKW
KS = 64
CSC = math.log2(math.e) * 2.0 ** KS
def f32(x): return "0x%08x" % struct.unpack("<I", struct.pack("<f", x))[0]
L = []
def e(s): L.append("    " + s)
for line in open("cdna_kernels/%s.s.ref" % NAME).read().split("\n"):
    if line.startswith("; @launch"): L.append(f"; @launch grid=(256,1,1) block=(256,1,1) lds={LDS}"); break
    L.append(line)
L += ['.amdgcn_target "amdgcn-amd-amdhsa--gfx950"', ".text", ".globl %s_kernel" % NAME, ".p2align 12", ".p2align 8",
      ".type %s_kernel,@function" % NAME, "%s_kernel:" % NAME]
NST = [0]
def stamp(force=False):
    if DBG and (not STEPST or force): e(f"s_memrealtime s[{40+2*NST[0]}:{41+2*NST[0]}]"); NST[0] += 1
ops = []; TT = [0.0, 0.0]; IT = [0]; MC = [0]
def at(t, inc): TT[0] = t; TT[1] = inc
def push(o): o.it = IT[0]; ops.append(o); return o
def valu(text, R, W, kind="valu", **kw):
    if kind in ("perm", "vmem", "ds"): kw["cost"] = 2
    o = Op(text, kind, R, W, prio=round(TT[0] + 1e-4, 3), **kw); TT[0] += TT[1]; return push(o)
def v(*r): return [f"v{x}" for x in r]
def view_load(raw, ireg):
    return [valu(f"global_load_dwordx4 {rng(raw+4*q,4)}, v{ireg}, s[{S_TAB}:{S_TAB+1}] offset:{64*q}", v(ireg), vr(raw+4*q,4), "vmem") for q in range(4)]
def wait_for(regs, ls, lat, lg=False):
    o = push(Op("wait", "wait", R=regs, W=regs, covers=ls, lat=lat, prio=round(TT[0] + 1e-4, 3))); o.lg = lg; return o
def cvt(d, a, b, sfx=""): valu(f"v_cvt_pk_bf16_f32 v{d}, v{a}, v{b}{sfx}", v(a, b), v(d))
def form(fb, P, ctrl, Q, t0, t1):
    at(t0 + 0.2, (t1 - t0 - 2.5) / 48)
    for i in range(32):
        d = TMP + i % 8
        if ctrl: valu(f"v_mul_f32_dpp v{d}, v{P+i}, v{Q+i} {ctrl} {FULL}", v(P+i, Q+i), v(d), "dpp")
        else: valu(f"v_mul_f32 v{d}, v{P+i}, v{Q+i}", v(P+i, Q+i), v(d))
        if i % 2: cvt(fb + i // 2, d - 1, d)
def mm(D, A, B, C=None, ap='a'):
    MC[0] += 1
    ct, cr = ("0", []) if C is None else (rng(C, 4), vr(C, 4))
    push(mfma(f"v_mfma_f32_16x16x32_bf16 {rng(D,4)}, {rng(A,4,ap)}, {rng(B,4)}, {ct}", vr(D,4), vr(A,4,ap), vr(B,4), cr))
def smf(D, A, B):
    MC[0] += 1
    o = mfma(f"v_smfmac_f32_16x16x64_bf16 {rng(D,4)}, {rng(A,4,'a')}, {rng(B,8)}, v{SIX}", vr(D,4), vr(A,4,'a') + v(SIX), vr(B,8), vr(D,4)); o.free = 1
    push(o)
deferred = []
def step_mm(fb, d9, var, init, ninth, fin, extra):
    it0 = IT[0]; held = []
    for t in range(8):
        acc = ACC + 4 * (t % 4)
        for i, ks in enumerate(range(3, -1, -1) if t % 2 else range(4)):
            mm(acc, AW + (t * 4 + ks) * 4, fb + 4 * ks, BIAS + 4 * t if i == 0 else acc)
        def epi(t=t, acc=acc, tt=MC[0] - 1 + EPI):
            at(tt, 1.0)
            for c in range(2): cvt((RF if t < 4 else RF2) + 2 * (t % 4) + c, acc + 2 * c, acc + 2 * c + 1, " clamp")
        if 4 <= t <= AUXT: held.append(epi)
        else: epi()
        if t == AUXT:
            for cb in deferred: cb()
            deferred.clear(); IT[0] = it0
            if init is not None and VINIT:
                at(MC[0] - 14, 2)
                if init: mov(d9, init)
                for r in range(1 if init else 0, 4 if init else 2): valu(f"v_mov_b32 v{d9+r}, 0", [], v(d9+r))
            elif init is not None: mm(d9, AZ, fb, init if init else None)
            if ninth: smf(d9, AN9 + 8 * var, fb); smf(d9, AN9 + 8 * var + 4, fb + 8)
            smf(d9, AH + 8 * var, RF)
            for h_ in held: h_()
        for cb in extra.get(t, []): cb()
        IT[0] = it0
    def late():
        IT[0] = it0
        smf(d9, AH + 8 * var + 4, RF2)
        if fin: fin()
    deferred.append(late)
def swap(w, a, b): valu(f"v_permlane{w}_swap_b32 v{a}, v{b}", v(a, b), v(a, b), "perm")
def add(d, a, b): valu(f"v_add_f32 v{d}, v{a}, v{b}", v(a, b), v(d))
def mov(d, a): valu(f"v_mov_b32 v{d}, v{a}", v(a), v(d))
def dmax():
    for c in ("row_ror:8 " + FULL, "row_ror:4 " + FULL, "row_ror:2 " + FULL, "row_ror:1 " + FULL, "row_bcast:15 row_mask:0xa bank_mask:0xf", "row_bcast:31 row_mask:0xc bank_mask:0xf"):
        valu(f"v_max_f32_dpp v{MX}, v{MX}, v{MX} {c}", v(MX), v(MX), "dpp")
def expsum(TL, smax):
    for i, (x, s) in enumerate(TL):
        valu(f"v_fma_f32 v{x}, v{x}, v{VCS}, -s{smax}", [f"s{smax}"] + v(x, VCS), v(x))
        valu(f"v_exp_f32 v{x}, v{x}", v(x), v(x), "trans", cost=2)
        if i == 0: valu(f"v_mul_f32 v{NUM}, v{x}, v{s}", v(x, s), v(NUM))
        else: valu(f"v_fmac_f32 v{NUM}, v{x}, v{s}", v(x, s, NUM), v(NUM))
        if i == 1: add(DEN, TL[0][0], x)
        elif i > 1: add(DEN, DEN, x)
def tiles_of(par): return [(EE, SK), (EMB if par else EM, SK + 1), (EE + 1, DY[par] + 2), (EE + 2, DY[par] + 3), (EE + 3, DY[par]), (EE + 4, DY[par] + 1)]
def skew_read(par):
    rd = [valu(f"ds_read_b32 v{SK+q}, v{LR+q} offset:{SKP*par}", v(LR+q) + [f"lds{par}"], v(SK+q), "ds") for q in range(2)]
    TT[0] += 10; wait_for(v(SK, SK+1), rd, 30, lg=True)
    valu(f"v_mov_b32_dpp v{DY[par]+2}, v{SK+1} quad_perm:[0,1,2,3] row_mask:0x7 bank_mask:0xf", v(SK+1, DY[par]+2), v(DY[par]+2), "dpp")
def softmax(par, t0, t1, t2):
    TL = tiles_of(par); E = [x[0] for x in TL]
    at(t1 - 30, 4); skew_read(par)
    o0 = len(ops)
    at(t0, (t1 - t0) / 11)
    valu(f"v_max3_f32 v{MX}, v{E[0]}, v{E[1]}, v{E[2]}", v(*E[:3]), v(MX))
    valu(f"v_max3_f32 v{MX}, v{MX}, v{E[3]}, v{E[4]}", v(MX, E[3], E[4]), v(MX))
    valu(f"v_max_f32 v{MX}, v{MX}, v{E[5]}", v(MX, E[5]), v(MX))
    dmax()
    valu(f"v_mul_f32 v{MX}, v{VCS}, v{MX}", v(MX, VCS), v(MX))
    valu(f"v_readlane_b32 s{S_MAX}, v{MX}, 63", v(MX), [f"s{S_MAX}"], "readlane")
    at(t1, (t2 - t1) / 28)
    expsum(TL, S_MAX)
    swap(32, NUM, DEN)
    if par: add(TB, NUM, DEN)
    else: mov(TC, TA); add(TA, NUM, DEN)
    for o in ops[o0:]: o.sm = True
def salu(text, R, W): return valu(text, R, W, "salu")
def steps_of(el): return BASE if el % 2 == 0 else [("mrg", 8)] + BASE
def fbuf(steps, si): return VZ if si == 0 else F[(si - (len(steps) - 20)) % 2]
def do_form(steps, si, t0, t1):
    kind, a = steps[si]; fb = fbuf(steps, si)
    if kind == "star": form(fb, VY, f"row_newbcast:{a}", VX, t0, t1)
    elif kind == "k10": form(fb, VY, K10[a][0], VZ, t0, t1)
    else: form(fb, VX, f"row_ror:{a}", VX, t0, t1)
SM0, SM1, SM2 = [float(x) for x in opts.get("sm", "2,5,17").split(",")]
def slots(b0, b1, n=4): return [b0 + (b1 - b0) * (j + 0.5) / n for j in range(n)]
XP0, XP1, GX = of("xp0", 0.0), of("xp1", 1.1), of("gx", 1.4)
GY, Y0, Y1, Z0, Z1, X0, X1 = of("gy", 3.0), of("y0", 3.2), of("y1", 5.6), of("z0", 5.2), of("z1", 6.9), of("x0", 18.5), of("x1", 19.5)
def plan(off):
    P = [(p, 2) for p in slots(XP0, XP1)] + [(GX, 4), (GY + off, 4)]
    P += [(p + off, 2) for p in slots(Y0, Y1) + slots(Z0, Z1) + slots(X0, X1)]
    return P
def pos(p): return (int(p), int((p % 1) * 8))
def nm_of(steps):
    off = len(steps) - 20; r = []
    for si, (kind, _) in enumerate(steps):
        n = 34 + (2 if kind == "k10" else 0) + (1 if (si < off or (si - off) % 4 == 0) and not VINIT else 0)
        r.append(n + sum(c for p, c in plan(off) if int(p) == si))
    return r
NEL = 10; CUT = []; STB = []; d9c = [0]
for el in range(NEL):
    par = el % 2; it = el // 2; nit = (el + 1) // 2
    steps = steps_of(el); nsteps = steps_of(el + 1); N = len(steps); off = N - 20
    IT[0] = it; B0 = MC[0]
    if par == 0: CUT.append(B0); d9c[0] = 0
    ST = [0]
    for m in nm_of(steps): ST.append(ST[-1] + m)
    if it == 2: STB += [B0 - CUT[2] + x for x in ST[:-1]]
    def S(x, B0=B0, ST=ST, off=off, N=N):
        x += off; i = int(math.floor(x))
        return B0 + ST[i] + ((x - i) * (ST[i + 1] - ST[i]) if i < N else 0)
    def newd9():
        d = D9 + 4 * (d9c[0] % ND9); d9c[0] += 1; return d
    o1 = len(ops)
    at(B0 + 1 - YE, LSP); ly = view_load(VY + 16, IDX + 1)
    for o in ops[o1:]: o.nb = o.prio - 1
    if el == 0: do_form(steps, 0, -40, 0)
    extra = {}
    def reg(p, cb): extra.setdefault(pos(p), []).append(cb)
    XR = VZ + 16; dy = DY[par]
    for q, p in enumerate(slots(XP0, XP1)):
        def cb(q=q, dy=dy):
            d0, d1 = (VY + 8, VY + 12) if q < 3 else (VY + 12, dy)
            mm(d0, ADP + 6 * q, XR + 4 * q); mm(d1, ADP + 6 * q + 2, XR + 4 * q)
            at(MC[0] + 2.5, 0.5)
            cvt(VY + 4 * q, d0, d0 + 1); cvt(VY + 4 * q + 1, d0 + 2, d0 + 3); cvt(VY + 4 * q + 2, d1, d1 + 1); cvt(VY + 4 * q + 3, d1 + 2, d1 + 3)
        reg(p, cb)
    lz = []; li = []
    def gx(par=par, lz=lz, li=li, nit=nit, S=S, el=el):
        d = newd9()
        for ks in range(4): mm(d, XR + 4 * ks, VY + 4 * ks, d if ks else None, 'v')
        at(MC[0] + 3, 0); valu(f"ds_write_b128 v{LW}, {rng(d,4)} offset:{SKP*par}", v(LW) + vr(d, 4), [f"lds{par}"], "ds")
        o2 = len(ops); at(MC[0] + 1, LSP); lz += view_load(VZ + 16, IDX + 2)
        IT[0] = nit; at(S(of("ti", 7.5)), LSP)
        li += [valu(f"buffer_load_dword v{IDX+k}, v{[OX,OY,OZ][k]}, s[{S_SRD}:{S_SRD+3}], s{S_IT} offen offset:{(64 if k else 0) + 104 * par}", v([OX,OY,OZ][k]) + [f"s{S_IT}"], v(IDX+k), "vmem") for k in range(3)]
        if par:
            salu(f"s_addk_i32 s{S_IT}, 208", [f"s{S_IT}"], [f"s{S_IT}", "scc"]); salu(f"s_cmp_lt_u32 s{S_IT}, {104 * (oi('iters', 4) + 1)}", [f"s{S_IT}"], ["scc"])
        for o in ops[o2:]: o.nb = o.prio - 1
    reg(GX, gx)
    def gy(dy=dy, ly=ly):
        at(MC[0] - 3, 0); wait_for(vr(VY + 16, 16), ly, LAT_FAR)
        for ks in range(4): mm(dy, VY + 16 + 4 * ks, VY + 4 * ks, dy if ks else None, 'v')
    reg(GY + off, gy)
    def unpack_at(ps, V, raw, loads, lat, itv, pre=None, post=None):
        for q, p in enumerate(ps):
            def cb(q=q):
                IT[0] = itv
                if q == 0 and loads is not None: at(MC[0] - 3, 0); wait_for(vr(raw, 16), loads, lat)
                if pre: pre(q)
                mm(V + 8 * q, ASEL, raw + 4 * q); mm(V + 8 * q + 4, ASEL + 2, raw + 4 * q)
                if post: post(q)
            reg(p + off, cb)
    unpack_at(slots(Y0, Y1), VY, VY + 16, None, 0, it)
    unpack_at(slots(Z0, Z1), VZ, VZ + 16, lz, LAT_Z, it)
    lx = []; nk, na = nsteps[0]
    def xpre(q, nk=nk, S=S):
        if nk != "mrg": return
        at(S(X0) + (S(X1) - S(X0)) * q / 4 - 8, 0.7)
        for i in range(8 * q, 8 * q + 8):
            valu(f"v_mul_f32_dpp v{VY+i%16}, v{VX+i}, v{VX+i} row_shl:8 {FULL} bound_ctrl:0", v(VX+i), v(VY+i%16), "dpp")
    def xpost(q, nk=nk, na=na, S=S):
        ta, tb = S(19.2), S(20) - 2.5
        at(ta + (tb - ta) * q / 4, (tb - ta) / 48)
        for i in range(8 * q, 8 * q + 8):
            if nk == "mrg":
                d = VY + i % 16
                valu(f"v_mul_f32_dpp v{d}, v{VX+i}, v{VX+i} row_shr:8 row_mask:0xf bank_mask:0xc", v(VX+i, d), v(d), "dpp")
            else:
                d = TMP + i % 8
                valu(f"v_mul_f32_dpp v{d}, v{VX+i}, v{VX+i} row_ror:{na} {FULL}", v(VX+i), v(d), "dpp")
            if i % 2: cvt(VZ + i // 2, d - 1, d)
    unpack_at(slots(X0, X1), VX, VZ + 16, lx, LAT_FAR, nit, xpre, xpost)
    for si in range(N):
        kind, a = steps[si]; bs = si - off
        if si + 1 < N: do_form(steps, si + 1, S(bs), S(bs + 1))
        if bs == 9:
            IT[0] = nit
            at(S(of("tx", 11.2)), 2.0); wait_for(vr(IDX, 3), li, LAT_NEAR)
            for k in range(3): valu(f"v_lshl_add_u32 v{IDX+k}, v{IDX+k}, 8, v{GOFF}", v(IDX+k, GOFF), v(IDX+k))
            TT[1] = LSP; o2 = len(ops); lx += view_load(VZ + 16, IDX)
            for o in ops[o2:]: o.nb = o.prio - 1
            IT[0] = it
        fb = fbuf(steps, si)
        ex = {t: extra[(si, t)] for t in range(8) if (si, t) in extra}
        if bs < 0:
            d9 = newd9()
            def fin(S=S, d9=d9):
                at(MC[0] + 4, 2.0)
                add(d9, d9, d9 + 1)
                valu(f"v_cndmask_b32 v{EM}, v{NEGINF}, v{d9}, s[{S_MA}:{S_MA+1}]", v(NEGINF, d9), v(EM))
                valu(f"v_cndmask_b32 v{EMB}, v{NEGINF}, v{d9}, s[{S_MB}:{S_MB+1}]", v(NEGINF, d9), v(EMB))
                softmax(0, S(SM0 + 0.4), S(SM1 + 0.4), S(SM2 + 0.4))
            step_mm(fb, d9, 3, 0, False, fin, ex)
        else:
            var = bs % 4; q = bs // 4
            if var == 0: d9 = newd9()
            fin = None
            if var == 3:
                def fin(d9=d9, q=q, par=par, dy=dy):
                    at(MC[0] + 4, 3.0)
                    add(EE + q, d9, d9 + 1)
                    if q == 2:
                        add(d9 + 2, d9 + 2, d9 + 3)
                        valu(f"v_mul_f32_dpp v{dy+3}, v{d9+2}, v{K64} quad_perm:[0,1,2,3] row_mask:0x7 bank_mask:0xf", v(d9+2, K64, dy+3), v(dy+3), "dpp")
                    if q == 4 and par:
                        b1 = MC[0] - (4 * AUXT + 9)
                        softmax(1, b1 + 38 * SM0 + 9, b1 + 38 * SM1, b1 + 38 * SM2)
            step_mm(fb, d9, var, (MASKC if q == 2 else 0) if var == 0 else None, kind == "k10", fin, ex)
for cb in deferred: cb()
ST = STB
out, st = schedule(ops, look=LOOK, late=LATE)
assert verify(out) == 0
lines = finalize(out)
cuts = [i for i, o in enumerate(out) if o.kind == "mfma" and o.g in CUT]
body = lines[cuts[2]:cuts[3]]
assert body == lines[cuts[3]:cuts[4]], "body not periodic"
bops = out[cuts[2]:cuts[3]]
pre_ops = [o for o in out[:cuts[2]] if o.kind != "nop" and o.it >= 2]
assert sum(1 for o in pre_ops if o.kind == 'vmem') == 11 and sum(1 for o in pre_ops if o.kind == 'salu') == 2 and not any(o.kind == "ds" for o in pre_ops)
assert [o.text for o in out[:cuts[2]] if o.kind == "vmem"][-4:] == [o.text for o in pre_ops if f"v{IDX+1}," in o.text and "dwordx4" in o.text]
nf = sum(o.cost for o in bops if o.kind not in ("mfma", "nop"))
print(st, "body", len(body), "est cycles/iter", est_cycles(bops), "issue", sum(4 * (4 - o.free) for o in bops if o.kind == "mfma") + nf * 4,
      "pipe", 16 * sum(1 for o in bops if o.kind == "mfma"), "pre", len(pre_ops), "nops in body", sum(1 for o in bops if o.kind == "nop"), file=sys.stderr)
if oi("prof", 0):
    seg = []; cur_ = []; nm_ = 0
    for o in bops:
        if o.kind == "mfma":
            if nm_ in ST and cur_: seg.append(cur_); cur_ = []
            nm_ += 1
        cur_.append(o)
    seg.append(cur_)
    print(" ".join(f"{i}:{est_cycles(sg + [sg[0]]) - 8}/{16 * sum(1 for o in sg if o.kind == 'mfma')}" for i, sg in enumerate(seg)), file=sys.stderr)
def clone(o, **kw):
    if o.kind == "nop": return o
    if o.kind == "mfma": o2 = mfma(o.text, o.W, [r for r in o.R if r in o.AB], [], o.C); o2.free = o.free
    else: o2 = Op(o.text, o.kind, o.R, o.W, cost=o.cost)
    for k_, v_ in kw.items(): setattr(o2, k_, v_)
    return o2
e("s_cmp_ge_u32 s2, 256"); e("s_cbranch_scc1 L_done")
stamp()
e("s_load_dwordx4 s[4:7], s[0:1], 0"); e("s_load_dwordx4 s[8:11], s[0:1], 32")
e("s_load_dwordx4 s[12:15], s[0:1], 48"); e("s_load_dwordx2 s[16:17], s[0:1], 64")
T = VY
vN, vG, vL, vW0, vW1, vZ, vPF, vSM, vT0, vT1, vT2, vWV, vTR, vNA, vHA, vBA = T, T+1, T+2, T+3, T+4, T+5, T+6, T+7, T+8, T+9, T+10, T+11, T+12, T+20, T+24, T+28
vM0, vM1, vBS, vPR = T + 30, T + 31, RF, F[0]
vm = []; dsq = []
def vmem(s, tag): e(s); vm.append(tag)
def vwait(tag): e(f"s_waitcnt vmcnt({len(vm) - 1 - max(i for i, t in enumerate(vm) if t == tag)})")
def ds(s, tag): e(s); dsq.append(tag)
def dwait(tag): e(f"s_waitcnt lgkmcnt({min(15, len(dsq) - 1 - max(i for i, t in enumerate(dsq) if t == tag))})")
def smask(r, val): e(f"s_mov_b32 s{r}, 0x{val & 0xffffffff:08x}"); e(f"s_mov_b32 s{r+1}, 0x{val >> 32:08x}")
e(f"v_lshrrev_b32 v{vWV}, 6, v0"); e(f"v_and_b32 v{vN}, 15, v0"); e(f"v_readfirstlane_b32 s{S_WAVE}, v{vWV}")
NL = 6
e("s_getpc_b64 s[32:33]"); L.append("L_pfbase:")
e("s_getreg_b32 s3, hwreg(HW_REG_HW_ID, 13, 2)"); e("s_getreg_b32 s19, hwreg(HW_REG_HW_ID, 8, 2)"); e("s_lshl2_add_u32 s3, s3, s19")
e("s_getreg_b32 s19, hwreg(HW_REG_HW_ID, 4, 2)"); e("s_lshl2_add_u32 s3, s3, s19"); e(f"s_mul_i32 s3, s3, {NL * 128}")
e(f"v_min_u32 v{vPF}, {NL - 1}, v{vN}"); e(f"v_lshl_add_u32 v{vPF}, v{vPF}, 7, s3"); e(f"v_min_u32 v{vPF}, L_end-L_pfbase-4, v{vPF}")
vmem(f"global_load_dword v{FS}, v{vPF}, s[32:33]", "pf")
e("s_lshl_b32 s3, s2, 2"); e(f"s_add_u32 s3, s3, s{S_WAVE}"); e("s_mul_i32 s19, s3, 416")
e(f"v_lshl_add_u32 v{OX}, v{vN}, 2, s19")
e(f"v_bfe_u32 v{vG}, v0, 4, 2")
e(f"s_lshl_b32 s{S_T}, s{S_WAVE}, 13")
e(f"v_lshrrev_b32 v{vT2}, 1, v{vN}"); e(f"v_xor_b32 v{vT0}, v{vT2}, v{vG}"); e(f"v_lshlrev_b32 v{vT0}, 5, v{vT0}")
e(f"v_and_b32 v{vT1}, 1, v0"); e(f"v_lshl_add_u32 v{vT0}, v{vT1}, 4, v{vT0}"); e(f"v_lshl_add_u32 v{vT0}, v{vG}, 8, v{vT0}")
e(f"v_add_u32 v{vW0}, s{S_T}, v{vT0}"); e(f"v_xor_b32 v{vW1}, 0x80, v{vW0}")
e(f"s_add_u32 s{S_T+1}, s{S_T}, 0x1000"); e(f"s_mov_b32 m0, s{S_T}")
e("s_waitcnt lgkmcnt(0)")
stamp()
vmem(f"global_load_dword v{IDX}, v{OX}, s[{S_IDX}:{S_IDX+1}]", "idx0")
for half in range(2):
    for q in range(4): vmem(f"global_load_lds_dwordx4 v{vW1 if q & 2 else vW0}, s[{S_W}:{S_W+1}] offset:{1024*q}", "wdma")
    if half == 0: e(f"v_add_u32 v{vW0}, 0x1000, v{vW0}"); e(f"s_mov_b32 m0, s{S_T+1}"); e(f"v_add_u32 v{vW1}, 0x1000, v{vW1}")
e(f"v_and_b32 v{vL}, 63, v0"); e(f"v_lshlrev_b32 v{vSM}, 2, v{vL}")
e(f"v_cmp_eq_u32 vcc, 0, v{vWV}")
e(f"v_lshlrev_b32 v{vT0}, 2, v{vT1}"); e(f"v_lshl_add_u32 v{vT0}, v{vT2}, 5, v{vT0}"); e(f"v_lshl_add_u32 v{vT0}, v{vG}, 3, v{vT0}")
e(f"v_cndmask_b32 v{vSM}, v{vSM}, v{vT0}, vcc")
e(f"v_cmp_eq_u32 vcc, 2, v{vWV}")
e(f"v_bfe_u32 v{vW1}, v0, 5, 1"); e(f"v_lshlrev_b32 v{vW1}, 2, v{vW1}"); e(f"v_and_b32 v{vT0}, 31, v0"); e(f"v_lshl_add_u32 v{vT0}, v{vT0}, 3, v{vW1}")
e(f"v_cndmask_b32 v{vSM}, v{vSM}, v{vT0}, vcc")
e(f"v_cmp_eq_u32 vcc, 3, v{vWV}")
e(f"v_lshl_add_u32 v{vW1}, v{vT1}, 5, v{vW1}"); e(f"v_and_b32 v{vT0}, 3, v{vT2}"); e(f"v_lshl_add_u32 v{vW1}, v{vT0}, 3, v{vW1}")
e(f"v_bfe_u32 v{vT0}, v0, 3, 2"); e(f"v_lshl_add_u32 v{vW1}, v{vT0}, 6, v{vW1}")
e(f"v_cndmask_b32 v{vSM}, v{vSM}, v{vW1}, vcc")
e(f"s_mov_b32 s{S_T+2}, {O_P}"); e(f"s_cmp_eq_u32 s{S_WAVE}, 1"); e(f"s_cselect_b32 s{S_T+2}, {O_PN}, s{S_T+2}")
e(f"s_cmp_eq_u32 s{S_WAVE}, 3"); e(f"s_cselect_b32 s{S_T+2}, {O_HH}, s{S_T+2}"); e(f"s_cselect_b64 s[34:35], s[{S_H}:{S_H+1}], s[{S_P}:{S_P+1}]")
e(f"s_cmp_eq_u32 s{S_WAVE}, 0"); e(f"s_cselect_b32 s{S_T+2}, {O_B}, s{S_T+2}"); e(f"s_mov_b32 m0, s{S_T+2}"); e(f"s_cselect_b64 s[34:35], s[{S_B}:{S_B+1}], s[34:35]")
vmem(f"global_load_lds_dword v{vSM}, s[34:35]", "wdma")
e(f"v_lshlrev_b32 v{GOFF}, 4, v{vG}")
def nib(tab): return sum(x << (4 * i) for i, x in enumerate(tab))
blockA = len(L)
smask(S_MA, nib(YT)); smask(S_MB, nib(ZT))
e(f"v_lshlrev_b32 v{OZ}, 2, v{vN}")
e(f"v_lshrrev_b64 v[{vT0}:{vT0+1}], v{OZ}, s[{S_MA}:{S_MA+1}]"); e(f"v_and_b32 v{OY}, 15, v{vT0}")
e(f"v_lshrrev_b64 v[{vT0}:{vT0+1}], v{OZ}, s[{S_MB}:{S_MB+1}]"); e(f"v_and_b32 v{OZ}, 15, v{vT0}")
e(f"v_lshl_add_u32 v{OY}, v{OY}, 2, s19"); e(f"v_lshl_add_u32 v{OZ}, v{OZ}, 2, s19")
for r in range(1, 2 if VINIT else 4): e(f"v_mov_b32 v{MASKC+r}, 0")
e(f"v_lshlrev_b32 v{vL}, 1, v{vL}")
ds(f"ds_write_b16 v{vL}, v{MASKC+1} offset:{O_Z}", "z")
e(f"v_and_b32 v{vT1}, 1, v{vG}"); e(f"v_lshrrev_b32 v{vT0}, 2, v{vN}"); e(f"v_lshl_or_b32 v{vT1}, v{vT1}, 2, v{vT0}")
e(f"v_lshl_add_u32 v{vT0}, v{vG}, 3, v{vT0}"); e(f"v_lshlrev_b32 v{vT0}, 8, v{vT0}"); e(f"v_lshl_add_u32 v{vT0}, v{vT1}, 5, v{vT0}")
e(f"v_and_b32 v{vT1}, 3, v{vN}"); e(f"v_lshl_add_u32 v{vTR}, v{vT1}, 3, v{vT0}")
for t in range(1, 8): e(f"v_xor_b32 v{vTR+t}, {t << 5}, v{vTR}")
e(f"v_lshlrev_b32 v{vBA}, 6, v{vG}")
e(f"s_mov_b32 s{S_SRD}, s{S_IDX}"); e(f"s_mov_b32 s{S_SRD+1}, s{S_IDX+1}"); e(f"s_mov_b32 s{S_SRD+2}, {4096*104}"); e(f"s_mov_b32 s{S_SRD+3}, 0x00020000")
e("s_lshl_b32 s3, s3, 3"); e(f"v_lshl_add_u32 v{OOFF}, v{vG}, 1, s3")
blockB = len(L)
e(f"v_and_b32 v{vT1}, 1, v{vN}"); e(f"v_lshlrev_b32 v{vT0}, 4, v{vT1}"); e(f"v_mov_b32 v{vM1}, 0xffff"); e(f"v_lshlrev_b32 v{vM1}, v{vT0}, v{vM1}")
smask(S_MB, 0xF0000F0000F0000F); smask(S_MA, 0x3333333333333333)
e(f"v_cndmask_b32 v{vM1}, 0, v{vM1}, s[{S_MB}:{S_MB+1}]"); e(f"v_cndmask_b32 v{vM0}, 0, v{vM1}, s[{S_MA}:{S_MA+1}]"); e(f"v_sub_u32 v{vM1}, v{vM1}, v{vM0}")
sv = (127 - KS // 2) << 7; sb = (127 - KS) << 7
for j, m_ in enumerate((vM0, vM1)):
    e(f"v_and_b32 v{vT0}, 0x{sv * 0x10001:08x}, v{m_}"); e(f"v_accvgpr_write_b32 a{ASEL+j}, v{vT0}"); e(f"v_accvgpr_write_b32 a{ASEL+4+j}, v{vT0}")
    e(f"v_and_b32 v{vBS+j}, 0x{sb * 0x10001:08x}, v{m_}"); e(f"v_mov_b32 v{vBS+4+j}, v{vBS+j}"); e(f"v_mov_b32 v{vBS+2+j}, 0")
for r in [ASEL + 2, ASEL + 3] + [AZ + r for r in range(0 if VINIT else 4)] + [ADP + 6 * q + 2 + j for q in range(4) for j in range(2)]: e(f"v_accvgpr_write_b32 a{r}, 0")
e(f"v_mul_u32_u24 v{SIX}, 0xaaaa, v{vT1}"); e(f"v_add_u32 v{SIX}, 0x4444, v{SIX}")
e(f"v_xor_b32 v{vZ}, 32, v{GOFF}"); e(f"v_add_u32 v{vZ}, {O_Z}, v{vZ}")
e(f"v_lshl_add_u32 v{vW0}, v{vT1}, 7, v{GOFF}"); e(f"v_add_u32 v{vW1}, {O_P}, v{vW0}"); e(f"v_add_u32 v{vW0}, {O_HH}, v{vW0}")
e(f"v_cndmask_b32 v{vW0}, v{vZ}, v{vW0}, s[{S_MA}:{S_MA+1}]"); e(f"v_cndmask_b32 v{vW1}, v{vW1}, v{vZ}, s[{S_MA}:{S_MA+1}]")
for var in range(4):
    smask(S_MA, 0x000F000F000F000F << (4 * var))
    e(f"v_cndmask_b32 v{vHA+var}, v{vZ}, v{vW0}, s[{S_MA}:{S_MA+1}]")
    if var < 3: e(f"v_cndmask_b32 v{vNA+var}, v{vZ}, v{vW1}, s[{S_MA}:{S_MA+1}]")
e(f"v_mov_b32 v{NEGINF}, 0xff800000"); e(f"v_mov_b32 v{VCS}, {f32(CSC)}"); e(f"v_mov_b32 v{K64}, {f32(2.0 ** KS)}")
smask(S_MA, inval); e(f"v_cndmask_b32 v{MASKC}, v{MASKC+1}, v{NEGINF}, s[{S_MA}:{S_MA+1}]")
e(f"s_mul_i32 s{S_T+1}, s{S_WAVE}, {SKW}"); e(f"s_add_u32 s{S_T+1}, s{S_T+1}, {O_SK}")
e(f"v_mul_u32_u24 v{vT0}, {RS}, v{vN}"); e(f"v_add_u32 v{vT0}, s{S_T+1}, v{vT0}"); e(f"v_add_u32 v{LW}, v{vT0}, v{GOFF}")
e(f"v_{'sub' if RSGN < 0 else 'add'}_u32 v{vT1}, v{vN}, v{vG}")
for q in range(2):
    e(f"v_add_u32 v{vT2}, {RSGN * (4 * q + 1)}, v{vT1}"); e(f"v_and_b32 v{vT2}, 15, v{vT2}"); e(f"v_lshl_add_u32 v{LR+q}, v{vT2}, 2, v{vT0}")
smask(S_MA, 0xff << 48); smask(S_MB, 0xff00 << 48); smask(S_OM, 0x0001000100010001); e(f"s_movk_i32 s{S_IT}, 104")
setup = L[blockB:]; del L[blockB:]
NB0 = oi("nb0", 24); NB1 = oi("nb1", 0)
L += setup[:NB0]; setup = setup[NB0:]
stamp()
vwait("idx0"); stamp()
e(f"v_lshl_add_u32 v{IDX}, v{IDX}, 8, v{GOFF}")
for q in range(4): vmem(f"global_load_dwordx4 {rng(VZ+16+4*q,4)}, v{IDX}, s[{S_TAB}:{S_TAB+1}] offset:{64*q}", "view0")
for k in range(1, 3): vmem(f"global_load_dword v{IDX+k}, v{[OX,OY,OZ][k]}, s[{S_IDX}:{S_IDX+1}] offset:64", "idx1")
L += setup[:NB1]; setup = setup[NB1:]
e("s_mov_b64 vcc, -1")
for w in range(3): e(f"s_cmp_eq_u32 s{S_WAVE}, {w}"); e(f"s_cbranch_scc1 L_pad{w}")
e("s_branch L_pad3"); L.append("L_resume:"); e("s_mov_b64 vcc, 0")
vwait("wdma"); e("s_waitcnt lgkmcnt(0)")
stamp(); e("s_barrier"); stamp()
trs = [f"ds_read_b64_tr_b16 {rng(AW+(t*4+ks)*4+2*u,2,'a')}, v{vTR+t} offset:{8192*ks+1024*u}" for t in range(8) for ks in range(4) for u in range(2)]
fill = [l.strip() for l in setup]
def tr(n, nf=1):
    for _ in range(n):
        if trs: ds(trs.pop(0), "tr")
        for _ in range(nf):
            if fill: e(fill.pop(0))
for k in range(4): ds(f"ds_read_b128 {rng(BIAS+16+4*k,4)}, v{vBA} offset:{O_B+16*k}", "bb")
for k in range(4): ds(f"ds_read_b128 {rng(vPR+4*k,4)}, v{GOFF} offset:{O_PN+64*k}", "bb")
tr(15, 2)
dwait("bb")
for q in range(4):
    fill += [f"v_mfma_f32_16x16x32_bf16 {rng(BIAS+8*q+4*u,4)}, {rng(vBS+2*u,4)}, {rng(BIAS+16+4*q,4)}, 0" for u in range(2)]
    for r in range(4):
        fill += [f"v_and_b32 v{vPR+4*q+r}, v{vM1 if r % 2 else vM0}, v{vPR+4*q+r}", f"v_accvgpr_write_b32 a{ADP+6*q+(r if r < 2 else r+2)}, v{vPR+4*q+r}"]
tr(len(trs), 2)
while fill: e(fill.pop(0))
for var in range(4):
    for u in range(2):
        ds(f"ds_read_b128 {rng(AH+8*var+4*u,4,'a')}, v{vHA+var} offset:{64*u}", "aux")
        if var < 3: ds(f"ds_read_b128 {rng(AN9+8*var+4*u,4,'a')}, v{vNA+var} offset:{64*u}", "aux")
stamp()
L.append("L_al:")
assert vm[-6:] == ["view0"] * 4 + ["idx1"] * 2
pre2 = []
for q in range(4):
    w = Op("wait", "wait", R=vr(VZ+16+4*q,4), W=vr(VZ+16+4*q,4) + ["order"], covers=[], prio=1e5); w.extra_after = 5 - q; pre2.append(w)
pre = [o for o in pre_ops if (o.kind in VALUK or o.kind == "mfma") and not o.text.startswith("v_lshl_add_u32")]
for i, o in enumerate(sorted(pre, key=lambda o: o.seq)): pre2.append(clone(o, prio=i))
w = Op("wait", "wait", R=vr(IDX+1,2), W=vr(IDX+1,2) + ["order"], covers=[], prio=12); w.extra_after = 0; pre2.append(w)
for k in range(1, 3): pre2.append(Op(f"v_lshl_add_u32 v{IDX+k}, v{IDX+k}, 8, v{GOFF}", "valu", v(IDX+k), v(IDX+k), prio=12))
for q in range(4): pre2.append(Op(f"global_load_dwordx4 {rng(VY+16+4*q,4)}, v{IDX+1}, s[{S_TAB}:{S_TAB+1}] offset:{64*q}", "vmem", v(IDX+1), vr(VY+16+4*q,4) + ["order"], prio=20 + 8 * q, cost=2))
po, _ = schedule(pre2, look=1e3); assert verify(po) == 0
for s_ in finalize(po): e(s_)
e("s_waitcnt lgkmcnt(0)")
for k in range(9):
    chk = [clone(o, seq=i) for i, o in enumerate(po)] + [Op(f"s_nop {k}", "nop")] + [clone(o, seq=10000 + i) for i, o in enumerate(bops[:40])]
    with contextlib.redirect_stdout(io.StringIO()): nb_ = verify(chk)
    if nb_ == 0: break
assert nb_ == 0
if k: e(f"s_nop {k - 1}")
if DBG: e("s_mov_b32 s34, 0")
L.append("L_loop:")
if DBG and not STEPST: e("s_mov_b32 m0, s34"); e("s_memrealtime s[32:33]"); e("s_waitcnt lgkmcnt(0)"); e(f"s_movreld_b32 s{40+2*NST[0]}, s32"); e("s_add_u32 s34, s34, 2"); NST[0] += 4
mi = [i for i, o in enumerate(bops) if o.kind == "mfma"]
xi = mi[ST[-PEEL]]
nm_ = 0
for i, s in enumerate(body):
    if i == xi: e("s_cbranch_scc0 L_tail")
    if s.startswith("v_mfma") or s.startswith("v_smfmac"):
        if STEPST and nm_ in ST[::STEPST]: stamp(True)
        nm_ += 1
    e(s)
if STEPST: stamp(True)
e("s_branch L_loop"); L.append("L_tail:")
stamp()
assert not any(o.kind != "nop" and o.it == 1 for o in bops[xi:]) and not any(o.kind == "salu" for o in bops[xi:])
rest = [o for o in bops[xi:] + out[cuts[3]:cuts[4]] if o.kind != "nop" and o.it == 2 and not getattr(o, "sm", False)]
rest = [o for o in rest if not (o.kind in ("ds", "wait") or o.text.startswith("v_mov_b32_dpp"))]
assert not any(o.kind == "vmem" for o in rest)
ops = []; IT[0] = 0
for o in sorted(rest, key=lambda o: o.seq): push(clone(o, prio=None if o.kind == "mfma" else 1e5 + o.prio))
at(1e6, 1)
skew_read(1)
TL = tiles_of(1)
valu(f"v_max3_f32 v{MX}, v{TL[0][0]}, v{TL[1][0]}, v{TL[2][0]}", v(*[x[0] for x in TL[:3]]), v(MX))
valu(f"v_max3_f32 v{MX}, v{MX}, v{TL[3][0]}, v{TL[4][0]}", v(MX, TL[3][0], TL[4][0]), v(MX))
dmax()
valu(f"v_mul_f32 v{M1}, v{VCS}, v{MX}", v(MX, VCS), v(M1))
valu(f"v_readlane_b32 s{S_MAX}, v{M1}, 63", v(M1), [f"s{S_MAX}"], "readlane")
valu(f"v_mov_b32 v{M1}, s{S_MAX}", [f"s{S_MAX}"], v(M1))
expsum(TL[:5], S_MAX)
swap(16, TC, TB); add(TC, TC, TB)
for c in (8, 4, 2, 1): valu(f"v_add_f32_dpp v{TC}, v{TC}, v{TC} row_ror:{c} {FULL}", v(TC), v(TC), "dpp")
x, s_ = TL[5]
valu(f"v_max_f32 v{MX}, v{MX}, v{x}", v(MX, x), v(MX))
dmax()
valu(f"v_mul_f32 v{MX}, v{VCS}, v{MX}", v(MX, VCS), v(MX))
valu(f"v_readlane_b32 s{S_M2}, v{MX}, 63", v(MX), [f"s{S_M2}"], "readlane")
valu(f"v_fma_f32 v{x}, v{x}, v{VCS}, -s{S_M2}", [f"s{S_M2}"] + v(x, VCS), v(x))
valu(f"v_subrev_f32 v{FS}, s{S_M2}, v{M1}", [f"s{S_M2}"] + v(M1), v(FS))
valu(f"v_exp_f32 v{x}, v{x}", v(x), v(x), "trans", cost=2)
valu(f"v_exp_f32 v{FS}, v{FS}", v(FS), v(FS), "trans", cost=2)
valu(f"v_mul_f32 v{s_}, v{x}, v{s_}", v(x, s_), v(s_))
valu(f"v_fma_f32 v{DEN}, v{DEN}, v{FS}, v{x}", v(DEN, FS, x), v(DEN))
valu(f"v_fma_f32 v{NUM}, v{NUM}, v{FS}, v{s_}", v(NUM, FS, s_), v(NUM))
swap(32, NUM, DEN); add(NUM, NUM, DEN)
swap(16, TA, NUM); add(TA, TA, NUM)
for c in (8, 4, 2, 1): valu(f"v_add_f32_dpp v{TA}, v{TA}, v{TA} row_ror:{c} {FULL}", v(TA), v(TA), "dpp")
swap(32, TC, TA)
valu(f"v_rcp_f32 v{TA}, v{TA}", v(TA), v(TA), "trans", cost=2)
valu(f"v_mul_f32 v{TC}, v{TC}, v{TA}", v(TC, TA), v(TC))
cvt(TC, TC, TC)
NP = 24
pref = [clone(o, prio=0) for o in bops[xi - NP:xi]]
assert not any(o.kind == "nop" for o in pref)
for o in pref:
    if o.kind in ("wait", "vmem"): o.kind = "salu"
to, _ = schedule(pref + ops, look=1e9, fixed=NP); assert verify(to) == 0
to = to[NP:]
print("peeled part est", est_cycles(bops[xi:]), "tail est", est_cycles(to), "pre est", est_cycles(po), file=sys.stderr)
for s in finalize(to): e(s)
stamp()
if DBG == 1:
    e("s_load_dwordx2 s[34:35], s[0:1], 80"); e("s_waitcnt lgkmcnt(0)")
    e("s_lshl_b32 s3, s3, 4"); e("v_mov_b32 v1, s3")
    for k in range(NST[0]): e(f"v_mov_b32 v2, s{40+2*k}"); e(f"global_store_dword v1, v2, s[34:35] offset:{4*k}")
    e(f"v_mov_b32 v2, {NST[0]}"); e("global_store_dword v1, v2, s[34:35] offset:124")
e(f"s_mov_b64 exec, s[{S_OM}:{S_OM+1}]")
e(f"global_store_short v{OOFF}, v{TC}, s[{S_OUT}:{S_OUT+1}]")
L.append("L_done:"); e("s_endpgm"); L.append("L_end:")
L += ['.section .rodata,"a"', ".p2align 6", ".amdhsa_kernel %s_kernel" % NAME,
      "  .amdhsa_next_free_vgpr 512", "  .amdhsa_next_free_sgpr %d" % (100 if DBG else 40), "  .amdhsa_accum_offset 256",
      "  .amdhsa_group_segment_fixed_size 0", "  .amdhsa_kernarg_size 88", "  .amdhsa_user_sgpr_count 2",
      "  .amdhsa_user_sgpr_kernarg_segment_ptr 1", "  .amdhsa_system_sgpr_workgroup_id_x 1",
      "  .amdhsa_float_denorm_mode_32 3", ".end_amdhsa_kernel"]
for i, l in enumerate(L):
    if l == "L_loop:": NT = opts.get("ntl", "")
    m = re.match(r"\s+global_load_dwordx4 v\[\d+:\d+\], v(\d+), s\[6:7\]", l)
    if m and "xyz"[int(m.group(1)) - IDX] in NT: L[i] = l + " nt"
    if "i" in NT and (re.match(r"\s+global_load_dword v\d+, v\d+, s\[4:5\]", l) or "buffer_load_dword" in l): L[i] = l + " nt"
txt = "\n".join(L)
for w in range(4): txt = txt.replace(f"L_pad{w}", "L_resume")
with tempfile.TemporaryDirectory() as d:
    open(d + "/a.s", "w").write(txt)
    subprocess.run(["clang", "-x", "assembler", "-target", "amdgcn-amd-amdhsa", "-mcpu=gfx950", "-c", d + "/a.s", "-o", d + "/a.o"], check=True)
    dis = subprocess.run(["llvm-objdump", "-d", "--mcpu=gfx950", d + "/a.o"], capture_output=True, text=True).stdout
sz = [len(m.group(1).split()) * 4 for m in re.finditer(r"// [0-9A-F]{12}: ((?:[0-9A-F]{8} ?)+)", dis)]
k0 = L.index("%s_kernel:" % NAME); k1 = L.index("L_end:")
assert sum(1 for i in range(k0, k1) if L[i].startswith("    ")) == len(sz)
newL = L[:k0]; addr = 0; nextp = None; npad = 0; j = 0
def pad():
    global npad, addr
    newL.append(f"L_pad{npad}:"); newL.append(f"    s_cbranch_vccnz PADT{npad}"); npad += 1; addr += 4
for i in range(k0, k1):
    if L[i] == "L_al:":
        print("prologue bytes", addr, file=sys.stderr); assert addr + 768 + 4 <= 4096 or DBG
        newL += ["    s_branch L_al", ".p2align 12"]; addr = 4096; nextp = 4096
    if L[i - 1] == "L_tail:": pad()
    if L[i].startswith("    "):
        if nextp is not None and addr >= nextp and "s_endpgm" not in L[i]: pad(); nextp += 4096
        addr += sz[j]; j += 1
    newL.append(L[i])
newL += L[k1:]
L = [re.sub(r"PADT(\d+)", lambda m: f"L_pad{int(m.group(1)) + 4}" if int(m.group(1)) + 4 < npad else "L_resume", l) for l in newL]
print("pads", npad, "code bytes", addr, file=sys.stderr); assert addr <= 64 * NL * 128
print("\n".join(L))
```

```python
import sys, math, struct, re, io, contextlib, subprocess, tempfile
from sched import *
NAME = "standalone__factorization_afm__recsys"
opts = dict(a.split("=") for a in "sm=1,3,8 gy=3.8 latfar=370 y1=5.8 z0=5.4 z1=6.9 ti=3 tx=10.2 x0=18.3 x1=19.3 y0=3.9 nb0=100".split() + sys.argv[1:] if "=" in a)
def oi(k, d): return int(opts.get(k, d))
def of(k, d): return float(opts.get(k, d))
LAT_FAR = oi("latfar", 400); LAT_Z = oi("latz", 300); LAT_NEAR = oi("latnear", 300)
DBG = oi("dbg", 0); STEPST = oi("stepst", 0); LSP = of("lsp", 9); EPI = of("epi", 3.1); LOOK = oi("look", 30); LATE = of("late", 8)
VINIT = oi('vinit', 3); YE = oi("ye", 36); AUXT = oi("auxt", 5); PEEL = oi("peel", 2); RSGN = oi("rsgn", -1); NT = opts.get("nt", "xyzi")
YT = [0,4,3,2,1,5,7,3,2,6,9,0,3,7,8,9]
ZT = [2,8,6,7,1,4,0,9,1,5,9,4,5,8,1,6]
K10 = [("", lambda n: n), ("quad_perm:[1,0,3,2]", lambda n: n ^ 1), ("quad_perm:[2,3,0,1]", lambda n: n ^ 2)]
seen = set(); inval = 0
for k, (_, pi) in enumerate(K10):
    for n in range(16):
        a, b = ZT[n], YT[pi(n)]; key = (min(a, b), max(a, b))
        if a == b or key in seen: inval |= 1 << (16 * k + n)
        else: seen.add(key)
assert len(seen) == 45
STARS = [14, 15, 0, 4, 8, 12, 1, 5, 9, 13]
assert sorted(YT[l] for l in STARS) == list(range(10))
BASE = [("ror", t) for t in range(1, 8)] + [("star", 14)] + [("k10", k) for k in range(3)] + [("star", l) for l in STARS[1:]]
FULL = "row_mask:0xf bank_mask:0xf"
BIAS = 0; VX = 32; VY = 64; VZ = 96; F = [128, 144]; TMP = 160; ACC = 168; RF = 184; RF2 = 192; D9 = 200; ND9 = 3
MASKC = 212; DY = [216, 220]; SK = 224; EE = 226; EM = 231; EMB = 232; SIX = 233; NEGINF = 234; MX = 235; NUM = 236; DEN = 237
TA = 238; TB = 239; TC = 240; K64 = 241; LW = 242; LR = 243; IDX = 245; OX = 248; OY = 249; OZ = 250; GOFF = 251; OOFF = 252; VCS = 253; M1 = 254; FS = 255
AW = 0; AH = 128; AN9 = 160; ADP = 184; ASEL = 200; AZ = 204
S_IDX = 4; S_TAB = 6; S_W = 8; S_B = 10; S_H = 12; S_P = 14; S_OUT = 16; S_WAVE = 18; S_MA = 20; S_IT = 22; S_MAX = 24; S_M2 = 25; S_T = 26; S_MB = 28; S_OM = 30; S_SRD = 36
LN9 = 32768
O_P = LN9; O_HH = LN9 + 256; O_Z = LN9 + 512; O_B = LN9 + 640; O_PN = LN9 + 896; O_SK = LN9 + 1152; SKW = 2560; SKP = 1280; RS = 80
LDS = O_SK + 4 * SKW
KS = 64
CSC = math.log2(math.e) * 2.0 ** KS
def f32(x): return "0x%08x" % struct.unpack("<I", struct.pack("<f", x))[0]

DOC = """
; ---------------------------------------------------------------------------------------------------------
; AFM forward, generated by a list scheduler (own script).  One wave per SIMD, 4 batch rows per wave.
;  * The 325 field pairs are covered by 20.5 "steps" of 16 pairs per row.  Three f32 "views" of the gathered
;    rows live in VGPRs (lane = field, lane group = slice of d); pair products come from DPP multiplies
;    (row_ror / row_newbcast / quad_perm) and are rounded to bf16 exactly like the reference's ei*ej.
;  * hid^T = W^T . pair^T + b : v_mfma 16x16x32 (W^T resident in AGPRs, bias as the C operand).
;  * ReLU + bf16 rounding of hid in one v_cvt_pk_bf16_f32 ... clamp: views are scaled by 2^-32 each and b by
;    2^-64 (exact powers of two), so the clamp's upper bound of 1.0 sits at hid = 2^64; the factor is undone
;    in the exponent constant of the softmax.
;  * e = relu(hid).h through v_smfmac (even/odd dword rows cover all of K); s = pair.p through a Gram product
;    (X*p).[X|Y]^T, smfmac for the three steps inside the second field set; out = sum(alpha*s).
;  * softmax subtracts the row's true maximum (running max + rescale for the last row of a wave).
;  * ii / jj are the fixed triu_indices(26,26,1) and are folded into the pair cover.
; ---------------------------------------------------------------------------------------------------------
""".strip().split("\n")
L = []
def e(s): L.append("    " + s)
for line in open("cdna_kernels/%s.s.ref" % NAME).read().split("\n"):
    if line.startswith("; @launch"): L.append(f"; @launch grid=(256,1,1) block=(256,1,1) lds={LDS}"); break
    L.append(line)
L += DOC + ['.amdgcn_target "amdgcn-amd-amdhsa--gfx950"', ".text", ".globl %s_kernel" % NAME, ".p2align 12", ".p2align 8",
      ".type %s_kernel,@function" % NAME, "%s_kernel:" % NAME]
NST = [0]
def stamp(force=False):
    if DBG and (not STEPST or force): e(f"s_memrealtime s[{40+2*NST[0]}:{41+2*NST[0]}]"); NST[0] += 1
ops = []; TT = [0.0, 0.0]; IT = [0]; MC = [0]
def at(t, inc): TT[0] = t; TT[1] = inc
def push(o): o.it = IT[0]; ops.append(o); return o
def valu(text, R, W, kind="valu", **kw):
    if kind in ("perm", "vmem", "ds"): kw["cost"] = 2
    o = Op(text, kind, R, W, prio=round(TT[0] + 1e-4, 3), **kw); TT[0] += TT[1]; return push(o)
def v(*r): return [f"v{x}" for x in r]
def view_load(raw, ireg):
    return [valu(f"global_load_dwordx4 {rng(raw+4*q,4)}, v{ireg}, s[{S_TAB}:{S_TAB+1}] offset:{64*q}", v(ireg), vr(raw+4*q,4), "vmem") for q in range(4)]
def wait_for(regs, ls, lat, lg=False):
    o = push(Op("wait", "wait", R=regs, W=regs, covers=ls, lat=lat, prio=round(TT[0] + 1e-4, 3))); o.lg = lg; return o
def cvt(d, a, b, sfx=""): valu(f"v_cvt_pk_bf16_f32 v{d}, v{a}, v{b}{sfx}", v(a, b), v(d))
def form(fb, P, ctrl, Q, t0, t1):
    at(t0 + 0.2, (t1 - t0 - 2.5) / 48)
    for i in range(32):
        d = TMP + i % 8
        if ctrl: valu(f"v_mul_f32_dpp v{d}, v{P+i}, v{Q+i} {ctrl} {FULL}", v(P+i, Q+i), v(d), "dpp")
        else: valu(f"v_mul_f32 v{d}, v{P+i}, v{Q+i}", v(P+i, Q+i), v(d))
        if i % 2: cvt(fb + i // 2, d - 1, d)
def mm(D, A, B, C=None, ap='a'):
    MC[0] += 1
    ct, cr = ("0", []) if C is None else (rng(C, 4), vr(C, 4))
    push(mfma(f"v_mfma_f32_16x16x32_bf16 {rng(D,4)}, {rng(A,4,ap)}, {rng(B,4)}, {ct}", vr(D,4), vr(A,4,ap), vr(B,4), cr))
def m4(D, A, B, last, C=None):
    MC[0] += 1
    o = mfma(f"v_mfma_f32_4x4x4_16b_bf16 {rng(D,4)}, {rng(A,2,'a')}, {rng(B,2)}, {rng(C,4) if C else 0}", vr(D,4), vr(A,2,'a'), vr(B,2), vr(C,4) if C else [], passes=2)
    o.occ = 4 if last else 2; o.free = o.occ - 1
    push(o)
def smf(D, A, B):
    MC[0] += 1
    o = mfma(f"v_smfmac_f32_16x16x64_bf16 {rng(D,4)}, {rng(A,4,'a')}, {rng(B,8)}, v{SIX}", vr(D,4), vr(A,4,'a') + v(SIX), vr(B,8), vr(D,4)); o.free = 1
    push(o)
deferred = []
def step_mm(fb, d9, var, init, ninth, fin, extra):
    it0 = IT[0]; held = []
    for t in range(8):
        acc = ACC + 4 * (t % 4)
        for i, ks in enumerate(range(3, -1, -1) if t % 2 else range(4)):
            mm(acc, AW + (t * 4 + ks) * 4, fb + 4 * ks, BIAS + 4 * t if i == 0 else acc)
        def epi(t=t, acc=acc, tt=MC[0] - 1 + EPI):
            at(tt, 1.0)
            for c in range(2): cvt((RF if t < 4 else RF2) + 2 * (t % 4) + c, acc + 2 * c, acc + 2 * c + 1, " clamp")
        if 4 <= t <= AUXT: held.append(epi)
        else: epi()
        if t == AUXT:
            if init is not None and (VINIT == 2 or (VINIT == 3 and init)): m4(d9, AZ, fb, True, init if init else None); init = None
            for cb in deferred: cb()
            deferred.clear(); IT[0] = it0
            if init is not None and VINIT:
                at(MC[0] - 14, 2)
                if init: mov(d9, init)
                for r in range(1 if init else 0, 4 if init else 2): valu(f"v_mov_b32 v{d9+r}, 0", [], v(d9+r))
            elif init is not None: mm(d9, AZ, fb, init if init else None)
            if ninth: smf(d9, AN9 + 8 * var, fb); smf(d9, AN9 + 8 * var + 4, fb + 8)
            smf(d9, AH + 8 * var, RF)
            for h_ in held: h_()
        for cb in extra.get(t, []): cb()
        IT[0] = it0
    def late():
        IT[0] = it0
        smf(d9, AH + 8 * var + 4, RF2)
        if fin: fin()
    deferred.append(late)
def swap(w, a, b): valu(f"v_permlane{w}_swap_b32 v{a}, v{b}", v(a, b), v(a, b), "perm")
def add(d, a, b): valu(f"v_add_f32 v{d}, v{a}, v{b}", v(a, b), v(d))
def mov(d, a): valu(f"v_mov_b32 v{d}, v{a}", v(a), v(d))
def dmax():
    for c in ("row_ror:8 " + FULL, "row_ror:4 " + FULL, "row_ror:2 " + FULL, "row_ror:1 " + FULL, "row_bcast:15 row_mask:0xa bank_mask:0xf", "row_bcast:31 row_mask:0xc bank_mask:0xf"):
        valu(f"v_max_f32_dpp v{MX}, v{MX}, v{MX} {c}", v(MX), v(MX), "dpp")
def expsum(TL, smax):
    for i, (x, s) in enumerate(TL):
        valu(f"v_fma_f32 v{x}, v{x}, v{VCS}, -s{smax}", [f"s{smax}"] + v(x, VCS), v(x))
        valu(f"v_exp_f32 v{x}, v{x}", v(x), v(x), "trans", cost=2)
        if i == 0: valu(f"v_mul_f32 v{NUM}, v{x}, v{s}", v(x, s), v(NUM))
        else: valu(f"v_fmac_f32 v{NUM}, v{x}, v{s}", v(x, s, NUM), v(NUM))
        if i == 1: add(DEN, TL[0][0], x)
        elif i > 1: add(DEN, DEN, x)
def tiles_of(par): return [(EE, SK), (EMB if par else EM, SK + 1), (EE + 1, DY[par] + 2), (EE + 2, DY[par] + 3), (EE + 3, DY[par]), (EE + 4, DY[par] + 1)]
def skew_read(par):
    rd = [valu(f"ds_read_b32 v{SK+q}, v{LR+q} offset:{SKP*par}", v(LR+q) + [f"lds{par}"], v(SK+q), "ds") for q in range(2)]
    TT[0] += 10; wait_for(v(SK, SK+1), rd, 30, lg=True)
    valu(f"v_mov_b32_dpp v{DY[par]+2}, v{SK+1} quad_perm:[0,1,2,3] row_mask:0x7 bank_mask:0xf", v(SK+1, DY[par]+2), v(DY[par]+2), "dpp")
def softmax(par, t0, t1, t2):
    TL = tiles_of(par); E = [x[0] for x in TL]
    at(t1 - 30, 4); skew_read(par)
    o0 = len(ops)
    at(t0, (t1 - t0) / 11)
    valu(f"v_max3_f32 v{MX}, v{E[0]}, v{E[1]}, v{E[2]}", v(*E[:3]), v(MX))
    valu(f"v_max3_f32 v{MX}, v{MX}, v{E[3]}, v{E[4]}", v(MX, E[3], E[4]), v(MX))
    valu(f"v_max_f32 v{MX}, v{MX}, v{E[5]}", v(MX, E[5]), v(MX))
    dmax()
    valu(f"v_mul_f32 v{MX}, v{VCS}, v{MX}", v(MX, VCS), v(MX))
    valu(f"v_readlane_b32 s{S_MAX}, v{MX}, 63", v(MX), [f"s{S_MAX}"], "readlane")
    at(t1, (t2 - t1) / 28)
    expsum(TL, S_MAX)
    swap(32, NUM, DEN)
    if par: add(TB, NUM, DEN)
    else: mov(TC, TA); add(TA, NUM, DEN)
    for o in ops[o0:]: o.sm = True
def salu(text, R, W): return valu(text, R, W, "salu")
def steps_of(el): return BASE if el % 2 == 0 else [("mrg", 8)] + BASE
def fbuf(steps, si): return VZ if si == 0 else F[(si - (len(steps) - 20)) % 2]
def do_form(steps, si, t0, t1):
    kind, a = steps[si]; fb = fbuf(steps, si)
    if kind == "star": form(fb, VY, f"row_newbcast:{a}", VX, t0, t1)
    elif kind == "k10": form(fb, VY, K10[a][0], VZ, t0, t1)
    else: form(fb, VX, f"row_ror:{a}", VX, t0, t1)
SM0, SM1, SM2 = [float(x) for x in opts.get("sm", "2,5,17").split(",")]
def slots(b0, b1, n=4): return [b0 + (b1 - b0) * (j + 0.5) / n for j in range(n)]
XP0, XP1, GX = of("xp0", 0.0), of("xp1", 1.1), of("gx", 1.4)
GY, Y0, Y1, Z0, Z1, X0, X1 = of("gy", 3.0), of("y0", 3.2), of("y1", 5.6), of("z0", 5.2), of("z1", 6.9), of("x0", 18.5), of("x1", 19.5)
NBY, NBZ, NBX = oi("nby", 1), oi("nbz", 1), oi("nbx", 2)
def plan(off):
    P = [(p, 4) for p in slots(XP0, XP1, 2)] + [(GX, 4), (GY + off, 4)]
    for (a_, b_, n_) in ((Y0, Y1, NBY), (Z0, Z1, NBZ), (X0, X1, NBX)): P += [(p + off, 8 // n_) for p in slots(a_, b_, n_)]
    return P
def pos(p): return (int(p), int((p % 1) * 8))
def nm_of(steps):
    off = len(steps) - 20; r = []
    for si, (kind, _) in enumerate(steps):
        n = 34 + (2 if kind == "k10" else 0) + (1 if ((si < off or (si - off) % 4 == 0) and VINIT in (0, 2)) or (VINIT == 3 and si - off == 8) else 0)
        r.append(n + sum(c for p, c in plan(off) if int(p) == si))
    return r
NEL = 10; CUT = []; STB = []; d9c = [0]
for el in range(NEL):
    par = el % 2; it = el // 2; nit = (el + 1) // 2
    steps = steps_of(el); nsteps = steps_of(el + 1); N = len(steps); off = N - 20
    IT[0] = it; B0 = MC[0]
    if par == 0: CUT.append(B0); d9c[0] = 0
    ST = [0]
    for m in nm_of(steps): ST.append(ST[-1] + m)
    if it == 2: STB += [B0 - CUT[2] + x for x in ST[:-1]]
    def S(x, B0=B0, ST=ST, off=off, N=N):
        x += off; i = int(math.floor(x))
        return B0 + ST[i] + ((x - i) * (ST[i + 1] - ST[i]) if i < N else 0)
    def newd9():
        if d9c[0] == oi('skip', 10): d9c[0] += 1
        d = D9 + 4 * (d9c[0] % ND9); d9c[0] += 1; return d
    o1 = len(ops)
    at(B0 + 1 - YE, LSP); ly = view_load(VY + 16, IDX + 1)
    for o in ops[o1:]: o.nb = o.prio - 1
    if el == 0: do_form(steps, 0, -40, 0)
    extra = {}
    def reg(p, cb): extra.setdefault(pos(p), []).append(cb)
    XR = VZ + 16; dy = DY[par]
    dxh = []
    for q, p in enumerate(slots(XP0, XP1, 2)):
        def cb(q=q, dy=dy, dxh=dxh):
            if q == 1: dxh.append(newd9())
            dst = [VY, VY + 4, VY + 8, VY + 12] if q == 0 else [VY + 8, VY + 12, dy, dxh[0]]
            for c in range(4): m4(dst[c], ADP + 8 * q + 2 * c, XR + 8 * q + 2 * c, c == 3)
            at(MC[0] + 1, 0.5)
            for c in range(4): cvt(VY + 8 * q + 2 * c, dst[c], dst[c] + 1); cvt(VY + 8 * q + 2 * c + 1, dst[c] + 2, dst[c] + 3)
        reg(p, cb)
    lz = []; li = []
    def gx(par=par, lz=lz, li=li, nit=nit, S=S, el=el, dxh=dxh):
        d = dxh[0]
        for ks in range(4): mm(d, XR + 4 * ks, VY + 4 * ks, d if ks else None, 'v')
        at(MC[0] + 3, 0); valu(f"ds_write_b128 v{LW}, {rng(d,4)} offset:{SKP*par}", v(LW) + vr(d, 4), [f"lds{par}"], "ds")
        o2 = len(ops); at(MC[0] + 1, LSP); lz += view_load(VZ + 16, IDX + 2)
        IT[0] = nit; at(S(of("ti", 7.5)), LSP)
        li += [valu(f"buffer_load_dword v{IDX+k}, v{[OX,OY,OZ][k]}, s[{S_SRD}:{S_SRD+3}], s{S_IT} offen offset:{(64 if k else 0) + 104 * par}", v([OX,OY,OZ][k]) + [f"s{S_IT}"], v(IDX+k), "vmem") for k in range(3)]
        if par:
            salu(f"s_addk_i32 s{S_IT}, 208", [f"s{S_IT}"], [f"s{S_IT}", "scc"]); salu(f"s_cmp_lt_u32 s{S_IT}, {104 * (oi('iters', 4) + 1)}", [f"s{S_IT}"], ["scc"])
        for o in ops[o2:]: o.nb = o.prio - 1
    reg(GX, gx)
    def gy(dy=dy, ly=ly):
        at(MC[0] - 3, 0); wait_for(vr(VY + 16, 16), ly, LAT_FAR)
        for ks in range(4): mm(dy, VY + 16 + 4 * ks, VY + 4 * ks, dy if ks else None, 'v')
    reg(GY + off, gy)
    def unpack_at(ps, V, raw, loads, lat, itv, pre=None, post=None):
        nq = 4 // len(ps)
        for j, p in enumerate(ps):
            def cb(j=j):
                IT[0] = itv
                if j == 0 and loads is not None: at(MC[0] - 3, 0); wait_for(vr(raw, 16), loads, lat)
                qs = range(nq * j, nq * j + nq)
                if pre:
                    for q in qs: pre(q)
                for c in range(2 * qs[0], 2 * qs[-1] + 2): m4(V + 4 * c, ASEL, raw + 2 * c, c == 2 * qs[-1] + 1)
                if post:
                    for q in qs: post(q)
            reg(p + off, cb)
    unpack_at(slots(Y0, Y1, NBY), VY, VY + 16, None, 0, it)
    unpack_at(slots(Z0, Z1, NBZ), VZ, VZ + 16, lz, LAT_Z, it)
    lx = []; nk, na = nsteps[0]
    def xpre(q, nk=nk, S=S):
        if nk != "mrg": return
        at(S(X0) + (S(X1) - S(X0)) * q / 4 - 8, 0.7)
        for i in range(8 * q, 8 * q + 8):
            valu(f"v_mul_f32_dpp v{VY+i%16}, v{VX+i}, v{VX+i} row_shl:8 {FULL} bound_ctrl:0", v(VX+i), v(VY+i%16), "dpp")
    def xpost(q, nk=nk, na=na, S=S):
        ta, tb = S(19.2), S(20) - 2.5
        at(ta + (tb - ta) * q / 4, (tb - ta) / 48)
        for i in range(8 * q, 8 * q + 8):
            if nk == "mrg":
                d = VY + i % 16
                valu(f"v_mul_f32_dpp v{d}, v{VX+i}, v{VX+i} row_shr:8 row_mask:0xf bank_mask:0xc", v(VX+i, d), v(d), "dpp")
            else:
                d = TMP + i % 8
                valu(f"v_mul_f32_dpp v{d}, v{VX+i}, v{VX+i} row_ror:{na} {FULL}", v(VX+i), v(d), "dpp")
            if i % 2: cvt(VZ + i // 2, d - 1, d)
    unpack_at(slots(X0, X1, NBX), VX, VZ + 16, lx, LAT_FAR, nit, xpre, xpost)
    for si in range(N):
        kind, a = steps[si]; bs = si - off
        if si + 1 < N: do_form(steps, si + 1, S(bs), S(bs + 1))
        if bs == 9:
            IT[0] = nit
            at(S(of("tx", 11.2)), 2.0); wait_for(vr(IDX, 3), li, LAT_NEAR)
            for k in range(3): valu(f"v_lshl_add_u32 v{IDX+k}, v{IDX+k}, 8, v{GOFF}", v(IDX+k, GOFF), v(IDX+k))
            TT[1] = LSP; o2 = len(ops); lx += view_load(VZ + 16, IDX)
            for o in ops[o2:]: o.nb = o.prio - 1
            IT[0] = it
        fb = fbuf(steps, si)
        ex = {t: extra[(si, t)] for t in range(8) if (si, t) in extra}
        if bs < 0:
            d9 = newd9()
            def fin(S=S, d9=d9):
                at(MC[0] + 4, 2.0)
                add(d9, d9, d9 + 1)
                valu(f"v_cndmask_b32 v{EM}, v{NEGINF}, v{d9}, s[{S_MA}:{S_MA+1}]", v(NEGINF, d9), v(EM))
                valu(f"v_cndmask_b32 v{EMB}, v{NEGINF}, v{d9}, s[{S_MB}:{S_MB+1}]", v(NEGINF, d9), v(EMB))
                softmax(0, S(SM0 + 0.4), S(SM1 + 0.4), S(SM2 + 0.4))
            step_mm(fb, d9, 3, 0, False, fin, ex)
        else:
            var = bs % 4; q = bs // 4
            if var == 0: d9 = newd9()
            fin = None
            if var == 3:
                def fin(d9=d9, q=q, par=par, dy=dy):
                    at(MC[0] + 4, 3.0)
                    add(EE + q, d9, d9 + 1)
                    if q == 2:
                        add(d9 + 2, d9 + 2, d9 + 3)
                        valu(f"v_mul_f32_dpp v{dy+3}, v{d9+2}, v{K64} quad_perm:[0,1,2,3] row_mask:0x7 bank_mask:0xf", v(d9+2, K64, dy+3), v(dy+3), "dpp")
                    if q == 4 and par:
                        b1 = MC[0] - (4 * AUXT + 9)
                        softmax(1, b1 + 38 * SM0 + 9, b1 + 38 * SM1, b1 + 38 * SM2)
            step_mm(fb, d9, var, (MASKC if q == 2 else 0) if var == 0 else None, kind == "k10", fin, ex)
for cb in deferred: cb()
ST = STB
out, st = schedule(ops, look=LOOK, late=LATE)
assert verify(out) == 0
lines = finalize(out)
cuts = [i for i, o in enumerate(out) if o.kind == "mfma" and o.g in CUT]
body = lines[cuts[2]:cuts[3]]
assert body == lines[cuts[3]:cuts[4]], "body not periodic"
bops = out[cuts[2]:cuts[3]]
pre_ops = [o for o in out[:cuts[2]] if o.kind != "nop" and o.it >= 2]
assert sum(1 for o in pre_ops if o.kind == 'vmem') == 11 and sum(1 for o in pre_ops if o.kind == 'salu') == 2 and not any(o.kind == "ds" for o in pre_ops)
assert [o.text for o in out[:cuts[2]] if o.kind == "vmem"][-4:] == [o.text for o in pre_ops if f"v{IDX+1}," in o.text and "dwordx4" in o.text]
nf = sum(o.cost for o in bops if o.kind not in ("mfma", "nop"))
print(st, "body", len(body), "est cycles/iter", est_cycles(bops), "issue", sum(4 * (getattr(o, "occ", 4) - o.free) for o in bops if o.kind == "mfma") + nf * 4,
      "pipe", sum(4 * getattr(o, "occ", 4) for o in bops if o.kind == "mfma"), "pre", len(pre_ops), "nops in body", sum(1 for o in bops if o.kind == "nop"), file=sys.stderr)
if oi("prof", 0):
    seg = []; cur_ = []; nm_ = 0
    for o in bops:
        if o.kind == "mfma":
            if nm_ in ST and cur_: seg.append(cur_); cur_ = []
            nm_ += 1
        cur_.append(o)
    seg.append(cur_)
    print(" ".join(f"{i}:{est_cycles(sg + [sg[0]]) - 8}/{sum(4 * getattr(o, 'occ', 4) for o in sg if o.kind == 'mfma')}" for i, sg in enumerate(seg)), file=sys.stderr)
def clone(o, **kw):
    if o.kind == "nop": return o
    if o.kind == "mfma": o2 = mfma(o.text, o.W, [r for r in o.R if r in o.AB], [], o.C, passes=o.passes); o2.free = o.free; o2.occ = getattr(o, 'occ', 4)
    else: o2 = Op(o.text, o.kind, o.R, o.W, cost=o.cost)
    for k_, v_ in kw.items(): setattr(o2, k_, v_)
    return o2
e("s_cmp_ge_u32 s2, 256"); e("s_cbranch_scc1 L_done")
stamp()
e("s_load_dwordx4 s[4:7], s[0:1], 0"); e("s_load_dwordx4 s[8:11], s[0:1], 32")
e("s_load_dwordx4 s[12:15], s[0:1], 48"); e("s_load_dwordx2 s[16:17], s[0:1], 64")
T = VY
vN, vG, vL, vW0, vW1, vZ, vPF, vSM, vT0, vT1, vT2, vWV, vTR, vNA, vHA, vBA = T, T+1, T+2, T+3, T+4, T+5, T+6, T+7, T+8, T+9, T+10, T+11, T+12, T+20, T+24, T+28
vM0, vM1, vBS, vPR = T + 30, T + 31, RF, F[0]
vm = []; dsq = []
def vmem(s, tag): e(s); vm.append(tag)
def vwait(tag): e(f"s_waitcnt vmcnt({len(vm) - 1 - max(i for i, t in enumerate(vm) if t == tag)})")
def ds(s, tag): e(s); dsq.append(tag)
def dwait(tag): e(f"s_waitcnt lgkmcnt({min(15, len(dsq) - 1 - max(i for i, t in enumerate(dsq) if t == tag))})")
def smask(r, val): e(f"s_mov_b32 s{r}, 0x{val & 0xffffffff:08x}"); e(f"s_mov_b32 s{r+1}, 0x{val >> 32:08x}")
e(f"v_lshrrev_b32 v{vWV}, 6, v0"); e(f"v_and_b32 v{vN}, 15, v0"); e(f"v_readfirstlane_b32 s{S_WAVE}, v{vWV}")
NL = 6
e("s_getpc_b64 s[32:33]"); L.append("L_pfbase:")
e("s_getreg_b32 s3, hwreg(HW_REG_HW_ID, 13, 2)"); e("s_getreg_b32 s19, hwreg(HW_REG_HW_ID, 8, 2)"); e("s_lshl2_add_u32 s3, s3, s19")
e("s_getreg_b32 s19, hwreg(HW_REG_HW_ID, 4, 2)"); e("s_lshl2_add_u32 s3, s3, s19"); e(f"s_mul_i32 s3, s3, {NL * 128}")
e(f"v_min_u32 v{vPF}, {NL - 1}, v{vN}"); e(f"v_lshl_add_u32 v{vPF}, v{vPF}, 7, s3"); e(f"v_min_u32 v{vPF}, L_end-L_pfbase-4, v{vPF}")
vmem(f"global_load_dword v{FS}, v{vPF}, s[32:33]", "pf")
e("s_lshl_b32 s3, s2, 2"); e(f"s_add_u32 s3, s3, s{S_WAVE}"); e("s_mul_i32 s19, s3, 416")
e(f"v_lshl_add_u32 v{OX}, v{vN}, 2, s19")
e(f"v_bfe_u32 v{vG}, v0, 4, 2")
e(f"s_lshl_b32 s{S_T}, s{S_WAVE}, 13")
e(f"v_lshrrev_b32 v{vT2}, 1, v{vN}"); e(f"v_xor_b32 v{vT0}, v{vT2}, v{vG}"); e(f"v_lshlrev_b32 v{vT0}, 5, v{vT0}")
e(f"v_and_b32 v{vT1}, 1, v0"); e(f"v_lshl_add_u32 v{vT0}, v{vT1}, 4, v{vT0}"); e(f"v_lshl_add_u32 v{vT0}, v{vG}, 8, v{vT0}")
e(f"v_add_u32 v{vW0}, s{S_T}, v{vT0}"); e(f"v_xor_b32 v{vW1}, 0x80, v{vW0}")
e(f"s_add_u32 s{S_T+1}, s{S_T}, 0x1000"); e(f"s_mov_b32 m0, s{S_T}")
e("s_waitcnt lgkmcnt(0)")
stamp()
vmem(f"global_load_dword v{IDX}, v{OX}, s[{S_IDX}:{S_IDX+1}]", "idx0")
for half in range(2):
    for q in range(4): vmem(f"global_load_lds_dwordx4 v{vW1 if q & 2 else vW0}, s[{S_W}:{S_W+1}] offset:{1024*q}", "wdma")
    if half == 0: e(f"v_add_u32 v{vW0}, 0x1000, v{vW0}"); e(f"s_mov_b32 m0, s{S_T+1}"); e(f"v_add_u32 v{vW1}, 0x1000, v{vW1}")
e(f"v_and_b32 v{vL}, 63, v0"); e(f"v_lshlrev_b32 v{vSM}, 2, v{vL}")
e(f"v_cmp_eq_u32 vcc, 0, v{vWV}")
e(f"v_lshlrev_b32 v{vT0}, 2, v{vT1}"); e(f"v_lshl_add_u32 v{vT0}, v{vT2}, 5, v{vT0}"); e(f"v_lshl_add_u32 v{vT0}, v{vG}, 3, v{vT0}")
e(f"v_cndmask_b32 v{vSM}, v{vSM}, v{vT0}, vcc")
e(f"v_cmp_eq_u32 vcc, 2, v{vWV}")
e(f"v_bfe_u32 v{vW1}, v0, 5, 1"); e(f"v_lshlrev_b32 v{vW1}, 2, v{vW1}"); e(f"v_and_b32 v{vT0}, 31, v0"); e(f"v_lshl_add_u32 v{vT0}, v{vT0}, 3, v{vW1}")
e(f"v_cndmask_b32 v{vSM}, v{vSM}, v{vT0}, vcc")
e(f"v_cmp_eq_u32 vcc, 3, v{vWV}")
e(f"v_lshl_add_u32 v{vW1}, v{vT1}, 5, v{vW1}"); e(f"v_and_b32 v{vT0}, 3, v{vT2}"); e(f"v_lshl_add_u32 v{vW1}, v{vT0}, 3, v{vW1}")
e(f"v_bfe_u32 v{vT0}, v0, 3, 2"); e(f"v_lshl_add_u32 v{vW1}, v{vT0}, 6, v{vW1}")
e(f"v_cndmask_b32 v{vSM}, v{vSM}, v{vW1}, vcc")
e(f"s_mov_b32 s{S_T+2}, {O_P}"); e(f"s_cmp_eq_u32 s{S_WAVE}, 1"); e(f"s_cselect_b32 s{S_T+2}, {O_PN}, s{S_T+2}")
e(f"s_cmp_eq_u32 s{S_WAVE}, 3"); e(f"s_cselect_b32 s{S_T+2}, {O_HH}, s{S_T+2}"); e(f"s_cselect_b64 s[34:35], s[{S_H}:{S_H+1}], s[{S_P}:{S_P+1}]")
e(f"s_cmp_eq_u32 s{S_WAVE}, 0"); e(f"s_cselect_b32 s{S_T+2}, {O_B}, s{S_T+2}"); e(f"s_mov_b32 m0, s{S_T+2}"); e(f"s_cselect_b64 s[34:35], s[{S_B}:{S_B+1}], s[34:35]")
vmem(f"global_load_lds_dword v{vSM}, s[34:35]", "wdma")
e(f"v_lshlrev_b32 v{GOFF}, 4, v{vG}")
def nib(tab): return sum(x << (4 * i) for i, x in enumerate(tab))
blockA = len(L)
smask(S_MA, nib(YT)); smask(S_MB, nib(ZT))
e(f"v_lshlrev_b32 v{OZ}, 2, v{vN}")
e(f"v_lshrrev_b64 v[{vT0}:{vT0+1}], v{OZ}, s[{S_MA}:{S_MA+1}]"); e(f"v_and_b32 v{OY}, 15, v{vT0}")
e(f"v_lshrrev_b64 v[{vT0}:{vT0+1}], v{OZ}, s[{S_MB}:{S_MB+1}]"); e(f"v_and_b32 v{OZ}, 15, v{vT0}")
e(f"v_lshl_add_u32 v{OY}, v{OY}, 2, s19"); e(f"v_lshl_add_u32 v{OZ}, v{OZ}, 2, s19")
for r in range(1, 2 if VINIT == 1 else 4): e(f"v_mov_b32 v{MASKC+r}, 0")
e(f"v_lshlrev_b32 v{vL}, 1, v{vL}")
ds(f"ds_write_b16 v{vL}, v{MASKC+1} offset:{O_Z}", "z")
e(f"v_and_b32 v{vT1}, 1, v{vG}"); e(f"v_lshrrev_b32 v{vT0}, 2, v{vN}"); e(f"v_lshl_or_b32 v{vT1}, v{vT1}, 2, v{vT0}")
e(f"v_lshl_add_u32 v{vT0}, v{vG}, 3, v{vT0}"); e(f"v_lshlrev_b32 v{vT0}, 8, v{vT0}"); e(f"v_lshl_add_u32 v{vT0}, v{vT1}, 5, v{vT0}")
e(f"v_and_b32 v{vT1}, 3, v{vN}"); e(f"v_lshl_add_u32 v{vTR}, v{vT1}, 3, v{vT0}")
for t in range(1, 8): e(f"v_xor_b32 v{vTR+t}, {t << 5}, v{vTR}")
e(f"v_lshlrev_b32 v{vBA}, 6, v{vG}")
e(f"s_mov_b32 s{S_SRD}, s{S_IDX}"); e(f"s_mov_b32 s{S_SRD+1}, s{S_IDX+1}"); e(f"s_mov_b32 s{S_SRD+2}, {4096*104}"); e(f"s_mov_b32 s{S_SRD+3}, 0x00020000")
e("s_lshl_b32 s3, s3, 3"); e(f"v_lshl_add_u32 v{OOFF}, v{vG}, 1, s3")
blockB = len(L)
e(f"v_and_b32 v{vT1}, 1, v{vN}"); e(f"v_lshlrev_b32 v{vT0}, 4, v{vT1}"); e(f"v_mov_b32 v{vM1}, 0xffff"); e(f"v_lshlrev_b32 v{vM1}, v{vT0}, v{vM1}")
smask(S_MA, 0x3333333333333333)
e(f"v_cndmask_b32 v{vM0}, 0, v{vM1}, s[{S_MA}:{S_MA+1}]"); e(f"v_sub_u32 v{vM1}, v{vM1}, v{vM0}")
sv = (127 - KS // 2) << 7; sb = (127 - KS) << 7
for j, m_ in enumerate((vM0, vM1)):
    e(f"v_and_b32 v{vT0}, 0x{sv * 0x10001:08x}, v{m_}"); e(f"v_accvgpr_write_b32 a{ASEL+j}, v{vT0}"); e(f"v_and_b32 v{vBS+j}, 0x{sb * 0x10001:08x}, v{m_}")
for r in [AZ + r for r in range({0: 4, 1: 0}.get(VINIT, 2))]: e(f"v_accvgpr_write_b32 a{r}, 0")
e(f"v_mul_u32_u24 v{SIX}, 0xaaaa, v{vT1}"); e(f"v_add_u32 v{SIX}, 0x4444, v{SIX}")
e(f"v_xor_b32 v{vZ}, 32, v{GOFF}"); e(f"v_add_u32 v{vZ}, {O_Z}, v{vZ}")
e(f"v_lshl_add_u32 v{vW0}, v{vT1}, 7, v{GOFF}"); e(f"v_add_u32 v{vW1}, {O_P}, v{vW0}"); e(f"v_add_u32 v{vW0}, {O_HH}, v{vW0}")
e(f"v_cndmask_b32 v{vW0}, v{vZ}, v{vW0}, s[{S_MA}:{S_MA+1}]"); e(f"v_cndmask_b32 v{vW1}, v{vW1}, v{vZ}, s[{S_MA}:{S_MA+1}]")
for var in range(4):
    smask(S_MA, 0x000F000F000F000F << (4 * var))
    e(f"v_cndmask_b32 v{vHA+var}, v{vZ}, v{vW0}, s[{S_MA}:{S_MA+1}]")
    if var < 3: e(f"v_cndmask_b32 v{vNA+var}, v{vZ}, v{vW1}, s[{S_MA}:{S_MA+1}]")
e(f"v_mov_b32 v{NEGINF}, 0xff800000"); e(f"v_mov_b32 v{VCS}, {f32(CSC)}"); e(f"v_mov_b32 v{K64}, {f32(2.0 ** KS)}")
smask(S_MA, inval); e(f"v_cndmask_b32 v{MASKC}, v{MASKC+1}, v{NEGINF}, s[{S_MA}:{S_MA+1}]")
e(f"s_mul_i32 s{S_T+1}, s{S_WAVE}, {SKW}"); e(f"s_add_u32 s{S_T+1}, s{S_T+1}, {O_SK}")
e(f"v_mul_u32_u24 v{vT0}, {RS}, v{vN}"); e(f"v_add_u32 v{vT0}, s{S_T+1}, v{vT0}"); e(f"v_add_u32 v{LW}, v{vT0}, v{GOFF}")
e(f"v_{'sub' if RSGN < 0 else 'add'}_u32 v{vT1}, v{vN}, v{vG}")
for q in range(2):
    e(f"v_add_u32 v{vT2}, {RSGN * (4 * q + 1)}, v{vT1}"); e(f"v_and_b32 v{vT2}, 15, v{vT2}"); e(f"v_lshl_add_u32 v{LR+q}, v{vT2}, 2, v{vT0}")
smask(S_MA, 0xff << 48); smask(S_MB, 0xff00 << 48); smask(S_OM, 0x0001000100010001); e(f"s_movk_i32 s{S_IT}, 104")
if oi('defa', 0): blockB = blockA
setup = L[blockB:]; del L[blockB:]
NB0 = oi("nb0", 24); NB1 = oi("nb1", 0)
L += setup[:NB0]; setup = setup[NB0:]
stamp()
vwait("idx0"); stamp()
e(f"v_lshl_add_u32 v{IDX}, v{IDX}, 8, v{GOFF}")
for q in range(4): vmem(f"global_load_dwordx4 {rng(VZ+16+4*q,4)}, v{IDX}, s[{S_TAB}:{S_TAB+1}] offset:{64*q}", "view0")
L += setup[:NB1]; setup = setup[NB1:]
for k in range(1, 3): vmem(f"global_load_dword v{IDX+k}, v{[OX,OY,OZ][k]}, s[{S_IDX}:{S_IDX+1}] offset:64", "idx1")
def warm():
    e("s_mov_b64 vcc, -1")
    for w in range(3): e(f"s_cmp_eq_u32 s{S_WAVE}, {w}"); e(f"s_cbranch_scc1 L_pad{w}")
    e("s_branch L_pad3"); L.append("L_resume:"); e("s_mov_b64 vcc, 0")
if oi("wpos", 1) == 1: warm()
vwait("wdma"); e("s_waitcnt lgkmcnt(0)")
stamp(); e("s_barrier"); stamp()
trs = [f"ds_read_b64_tr_b16 {rng(AW+(t*4+ks)*4+2*u,2,'a')}, v{vTR+t} offset:{8192*ks+1024*u}" for t in range(8) for ks in range(4) for u in range(2)]
fill = [l.strip() for l in setup]
def tr(n, nf=1):
    for _ in range(n):
        if trs: ds(trs.pop(0), "tr")
        for _ in range(nf):
            if fill: e(fill.pop(0))
for k in range(4): ds(f"ds_read_b128 {rng(BIAS+16+4*k,4)}, v{vBA} offset:{O_B+16*k}", "bb")
for k in range(4): ds(f"ds_read_b128 {rng(vPR+4*k,4)}, v{GOFF} offset:{O_PN+64*k}", "bb")
tr(15, 2)
dwait("bb")
for c in range(8):
    fill += [f"v_mfma_f32_4x4x4_16b_bf16 {rng(BIAS+4*c,4)}, {rng(vBS,2)}, {rng(BIAS+16+2*c,2)}, 0"]
    for r in range(2 * c, 2 * c + 2): fill += [f"v_and_b32 v{vPR+r}, v{vM1 if r % 2 else vM0}, v{vPR+r}", f"v_accvgpr_write_b32 a{ADP+r}, v{vPR+r}"]
tr(len(trs), 2)
while fill: e(fill.pop(0))
for var in range(4):
    for u in range(2):
        ds(f"ds_read_b128 {rng(AH+8*var+4*u,4,'a')}, v{vHA+var} offset:{64*u}", "aux")
        if var < 3: ds(f"ds_read_b128 {rng(AN9+8*var+4*u,4,'a')}, v{vNA+var} offset:{64*u}", "aux")
if oi("wpos", 1) == 3: warm()
stamp()
L.append("L_al:")
assert vm[-6:] == ["view0"] * 4 + ["idx1"] * 2
pre2 = []
for q in range(4):
    w = Op("wait", "wait", R=vr(VZ+16+4*q,4), W=vr(VZ+16+4*q,4) + ["order"], covers=[], prio=1e5); w.extra_after = 5 - q; pre2.append(w)
pre = [o for o in pre_ops if (o.kind in VALUK or o.kind == "mfma") and not o.text.startswith("v_lshl_add_u32")]
for i, o in enumerate(sorted(pre, key=lambda o: o.seq)): pre2.append(clone(o, prio=i))
w = Op("wait", "wait", R=vr(IDX+1,2), W=vr(IDX+1,2) + ["order"], covers=[], prio=12); w.extra_after = 0; pre2.append(w)
for k in range(1, 3): pre2.append(Op(f"v_lshl_add_u32 v{IDX+k}, v{IDX+k}, 8, v{GOFF}", "valu", v(IDX+k), v(IDX+k), prio=12))
for q in range(4): pre2.append(Op(f"global_load_dwordx4 {rng(VY+16+4*q,4)}, v{IDX+1}, s[{S_TAB}:{S_TAB+1}] offset:{64*q}", "vmem", v(IDX+1), vr(VY+16+4*q,4) + ["order"], prio=20 + 8 * q, cost=2))
po, _ = schedule(pre2, look=1e3); assert verify(po) == 0
for s_ in finalize(po): e(s_)
e("s_waitcnt lgkmcnt(0)")
for k in range(9):
    chk = [clone(o, seq=i) for i, o in enumerate(po)] + [Op(f"s_nop {k}", "nop")] + [clone(o, seq=10000 + i) for i, o in enumerate(bops[:40])]
    with contextlib.redirect_stdout(io.StringIO()): nb_ = verify(chk)
    if nb_ == 0: break
assert nb_ == 0
if k: e(f"s_nop {k - 1}")
if DBG: e("s_mov_b32 s34, 0")
L.append("L_loop:")
if DBG and not STEPST: e("s_mov_b32 m0, s34"); e("s_memrealtime s[32:33]"); e("s_waitcnt lgkmcnt(0)"); e(f"s_movreld_b32 s{40+2*NST[0]}, s32"); e("s_add_u32 s34, s34, 2"); NST[0] += 4
mi = [i for i, o in enumerate(bops) if o.kind == "mfma"]
xi = mi[ST[-PEEL]]
nm_ = 0
for i, s in enumerate(body):
    if i == xi: e("s_cbranch_scc0 L_tail")
    if s.startswith("v_mfma") or s.startswith("v_smfmac"):
        if STEPST and nm_ in ST[::STEPST]: stamp(True)
        nm_ += 1
    e(s)
if STEPST: stamp(True)
e("s_branch L_loop"); L.append("L_tail:")
stamp()
assert not any(o.kind != "nop" and o.it == 1 for o in bops[xi:]) and not any(o.kind == "salu" for o in bops[xi:])
rest = [o for o in bops[xi:] + out[cuts[3]:cuts[4]] if o.kind != "nop" and o.it == 2 and not getattr(o, "sm", False)]
rest = [o for o in rest if not (o.kind in ("ds", "wait") or o.text.startswith("v_mov_b32_dpp"))]
assert not any(o.kind == "vmem" for o in rest)
ops = []; IT[0] = 0
for o in sorted(rest, key=lambda o: o.seq): push(clone(o, prio=None if o.kind == "mfma" else 1e5 + o.prio))
at(1e6, 1)
skew_read(1)
TL = tiles_of(1)
valu(f"v_max3_f32 v{MX}, v{TL[0][0]}, v{TL[1][0]}, v{TL[2][0]}", v(*[x[0] for x in TL[:3]]), v(MX))
valu(f"v_max3_f32 v{MX}, v{MX}, v{TL[3][0]}, v{TL[4][0]}", v(MX, TL[3][0], TL[4][0]), v(MX))
dmax()
valu(f"v_mul_f32 v{M1}, v{VCS}, v{MX}", v(MX, VCS), v(M1))
valu(f"v_readlane_b32 s{S_MAX}, v{M1}, 63", v(M1), [f"s{S_MAX}"], "readlane")
valu(f"v_mov_b32 v{M1}, s{S_MAX}", [f"s{S_MAX}"], v(M1))
expsum(TL[:5], S_MAX)
swap(16, TC, TB); add(TC, TC, TB)
for c in (8, 4, 2, 1): valu(f"v_add_f32_dpp v{TC}, v{TC}, v{TC} row_ror:{c} {FULL}", v(TC), v(TC), "dpp")
x, s_ = TL[5]
valu(f"v_max_f32 v{MX}, v{MX}, v{x}", v(MX, x), v(MX))
dmax()
valu(f"v_mul_f32 v{MX}, v{VCS}, v{MX}", v(MX, VCS), v(MX))
valu(f"v_readlane_b32 s{S_M2}, v{MX}, 63", v(MX), [f"s{S_M2}"], "readlane")
valu(f"v_fma_f32 v{x}, v{x}, v{VCS}, -s{S_M2}", [f"s{S_M2}"] + v(x, VCS), v(x))
valu(f"v_subrev_f32 v{FS}, s{S_M2}, v{M1}", [f"s{S_M2}"] + v(M1), v(FS))
valu(f"v_exp_f32 v{x}, v{x}", v(x), v(x), "trans", cost=2)
valu(f"v_exp_f32 v{FS}, v{FS}", v(FS), v(FS), "trans", cost=2)
valu(f"v_mul_f32 v{s_}, v{x}, v{s_}", v(x, s_), v(s_))
valu(f"v_fma_f32 v{DEN}, v{DEN}, v{FS}, v{x}", v(DEN, FS, x), v(DEN))
valu(f"v_fma_f32 v{NUM}, v{NUM}, v{FS}, v{s_}", v(NUM, FS, s_), v(NUM))
swap(32, NUM, DEN); add(NUM, NUM, DEN)
swap(16, TA, NUM); add(TA, TA, NUM)
for c in (8, 4, 2, 1): valu(f"v_add_f32_dpp v{TA}, v{TA}, v{TA} row_ror:{c} {FULL}", v(TA), v(TA), "dpp")
swap(32, TC, TA)
valu(f"v_rcp_f32 v{TA}, v{TA}", v(TA), v(TA), "trans", cost=2)
valu(f"v_mul_f32 v{TC}, v{TC}, v{TA}", v(TC, TA), v(TC))
cvt(TC, TC, TC)
NP = 24
pref = [clone(o, prio=0) for o in bops[xi - NP:xi]]
assert not any(o.kind == "nop" for o in pref)
for o in pref:
    if o.kind in ("wait", "vmem"): o.kind = "salu"
to, _ = schedule(pref + ops, look=1e9, fixed=NP); assert verify(to) == 0
to = to[NP:]
print("peeled part est", est_cycles(bops[xi:]), "tail est", est_cycles(to), "pre est", est_cycles(po), file=sys.stderr)
for s in finalize(to): e(s)
stamp()
if DBG == 1:
    e("s_load_dwordx2 s[34:35], s[0:1], 80"); e("s_waitcnt lgkmcnt(0)")
    e("s_lshl_b32 s3, s3, 4"); e("v_mov_b32 v1, s3")
    for k in range(NST[0]): e(f"v_mov_b32 v2, s{40+2*k}"); e(f"global_store_dword v1, v2, s[34:35] offset:{4*k}")
    e(f"v_mov_b32 v2, {NST[0]}"); e("global_store_dword v1, v2, s[34:35] offset:124")
e(f"s_mov_b64 exec, s[{S_OM}:{S_OM+1}]")
e(f"global_store_short v{OOFF}, v{TC}, s[{S_OUT}:{S_OUT+1}]")
L.append("L_done:"); e("s_endpgm"); L.append("L_end:")
L += ['.section .rodata,"a"', ".p2align 6", ".amdhsa_kernel %s_kernel" % NAME,
      "  .amdhsa_next_free_vgpr 512", "  .amdhsa_next_free_sgpr %d" % (100 if DBG else 40), "  .amdhsa_accum_offset 256",
      "  .amdhsa_group_segment_fixed_size 0", "  .amdhsa_kernarg_size 88", "  .amdhsa_user_sgpr_count 2",
      "  .amdhsa_user_sgpr_kernarg_segment_ptr 1", "  .amdhsa_system_sgpr_workgroup_id_x 1",
      "  .amdhsa_float_denorm_mode_32 3", ".end_amdhsa_kernel"]
for i, l in enumerate(L):
    if l == "L_loop:": NT = opts.get("ntl", "")
    m = re.match(r"\s+global_load_dwordx4 v\[\d+:\d+\], v(\d+), s\[6:7\]", l)
    if m and "xyz"[int(m.group(1)) - IDX] in NT: L[i] = l + " nt"
    if "i" in NT and (re.match(r"\s+global_load_dword v\d+, v\d+, s\[4:5\]", l) or "buffer_load_dword" in l): L[i] = l + " nt"
txt = "\n".join(L)
for w in range(4): txt = txt.replace(f"L_pad{w}", "L_resume")
with tempfile.TemporaryDirectory() as d:
    open(d + "/a.s", "w").write(txt)
    subprocess.run(["clang", "-x", "assembler", "-target", "amdgcn-amd-amdhsa", "-mcpu=gfx950", "-c", d + "/a.s", "-o", d + "/a.o"], check=True)
    dis = subprocess.run(["llvm-objdump", "-d", "--mcpu=gfx950", d + "/a.o"], capture_output=True, text=True).stdout
sz = [len(m.group(1).split()) * 4 for m in re.finditer(r"// [0-9A-F]{12}: ((?:[0-9A-F]{8} ?)+)", dis)]
k0 = L.index("%s_kernel:" % NAME); k1 = L.index("L_end:")
assert sum(1 for i in range(k0, k1) if L[i].startswith("    ")) == len(sz)
newL = L[:k0]; addr = 0; nextp = None; npad = 0; j = 0
def pad():
    global npad, addr
    newL.append(f"L_pad{npad}:"); newL.append(f"    s_cbranch_vccnz PADT{npad}"); npad += 1; addr += 4
for i in range(k0, k1):
    if L[i] == "L_al:":
        print("prologue bytes", addr, file=sys.stderr); assert addr + 768 + 4 <= 4096 or DBG
        newL += ["    s_branch L_al", ".p2align 12"]; addr = 4096; nextp = 4096
    if L[i - 1] == "L_tail:": pad()
    if L[i].startswith("    "):
        if nextp is not None and addr >= nextp and "s_endpgm" not in L[i]: pad(); nextp += 4096
        addr += sz[j]; j += 1
    newL.append(L[i])
newL += L[k1:]
L = [re.sub(r"PADT(\d+)", lambda m: f"L_pad{int(m.group(1)) + 4}" if int(m.group(1)) + 4 < npad else "L_resume", l) for l in newL]
print("pads", npad, "code bytes", addr, file=sys.stderr); assert addr <= 64 * NL * 128
print("\n".join(L))
```

```python
import sys, math, struct, re, io, contextlib, subprocess, tempfile
from sched import *
NAME = "standalone__factorization_afm__recsys"
opts = dict(a.split("=") for a in "sm=1,3,8 gy=3.8 latfar=370 y1=5.8 z0=5.4 z1=6.9 ti=3 tx=10.2 x0=18.3 x1=19.3 y0=3.9 nb0=100".split() + sys.argv[1:] if "=" in a)
def oi(k, d): return int(opts.get(k, d))
def of(k, d): return float(opts.get(k, d))
LAT_FAR = oi("latfar", 400); LAT_Z = oi("latz", 300); LAT_NEAR = oi("latnear", 300)
DBG = oi("dbg", 0); STEPST = oi("stepst", 0); LSP = of("lsp", 9); EPI = of("epi", 3.1); LOOK = oi("look", 30); LATE = of("late", 8)
VINIT = oi('vinit', 3); YE = oi("ye", 36); AUXT = oi("auxt", 5); PEEL = oi("peel", 2); RSGN = oi("rsgn", -1); NT = opts.get("nt", "xyzi")
YT = [0,4,3,2,1,5,7,3,2,6,9,0,3,7,8,9]
ZT = [2,8,6,7,1,4,0,9,1,5,9,4,5,8,1,6]
K10 = [("", lambda n: n), ("quad_perm:[1,0,3,2]", lambda n: n ^ 1), ("quad_perm:[2,3,0,1]", lambda n: n ^ 2)]
seen = set(); inval = 0
for k, (_, pi) in enumerate(K10):
    for n in range(16):
        a, b = ZT[n], YT[pi(n)]; key = (min(a, b), max(a, b))
        if a == b or key in seen: inval |= 1 << (16 * k + n)
        else: seen.add(key)
assert len(seen) == 45
STARS = [14, 15, 0, 4, 8, 12, 1, 5, 9, 13]
assert sorted(YT[l] for l in STARS) == list(range(10))
BASE = [("ror", t) for t in range(1, 8)] + [("star", 14)] + [("k10", k) for k in range(3)] + [("star", l) for l in STARS[1:]]
FULL = "row_mask:0xf bank_mask:0xf"
BIAS = 0; VX = 32; VY = 64; VZ = 96; F = [128, 144]; TMP = 160; ACC = 168; RF = 184; RF2 = 192; D9 = 200; ND9 = 3
MASKC = 212; DY = [216, 220]; SK = 224; EE = 226; EM = 231; EMB = 232; SIX = 233; NEGINF = 234; MX = 235; NUM = 236; DEN = 237
TA = 238; TB = 239; TC = 240; K64 = 241; LW = 242; LR = 243; IDX = 245; OX = 248; OY = 249; OZ = 250; GOFF = 251; OOFF = 252; VCS = 253; M1 = 254; FS = 255
AW = 0; AH = 128; AN9 = 160; ADP = 184; ASEL = 200; AZ = 204
S_IDX = 4; S_TAB = 6; S_W = 8; S_B = 10; S_H = 12; S_P = 14; S_OUT = 16; S_WAVE = 18; S_MA = 20; S_IT = 22; S_MAX = 24; S_M2 = 25; S_T = 26; S_MB = 28; S_OM = 30; S_SRD = 36; S_EPS = 23
LN9 = 32768
O_P = LN9; O_HH = LN9 + 256; O_Z = LN9 + 512; O_B = LN9 + 640; O_PN = LN9 + 896; O_SK = LN9 + 1152; SKW = 2560; SKP = 1280; RS = 80
LDS = O_SK + 4 * SKW
KS = 64
CSC = math.log2(math.e) * 2.0 ** KS
def f32(x): return "0x%08x" % struct.unpack("<I", struct.pack("<f", x))[0]

DOC = """
; ---------------------------------------------------------------------------------------------------------
; AFM forward, generated by a list scheduler (own script).  One wave per SIMD, 4 batch rows per wave.
;  * The 325 field pairs are covered by 20.5 "steps" of 16 pairs per row.  Three f32 "views" of the gathered
;    rows live in VGPRs (lane = field, lane group = slice of d); pair products come from DPP multiplies
;    (row_ror / row_newbcast / quad_perm) and are rounded to bf16 exactly like the reference's ei*ej.
;  * hid^T = W^T . pair^T + b : v_mfma 16x16x32 (W^T resident in AGPRs, bias as the C operand).
;  * ReLU + bf16 rounding of hid in one v_cvt_pk_bf16_f32 ... clamp: views are scaled by 2^-32 each and b by
;    2^-64 (exact powers of two), so the clamp's upper bound of 1.0 sits at hid = 2^64; the factor is undone
;    in the exponent constant of the softmax.
;  * e = relu(hid).h through v_smfmac (even/odd dword rows cover all of K); s = pair.p through a Gram product
;    (X*p).[X|Y]^T, smfmac for the three steps inside the second field set; out = sum(alpha*s).
;  * softmax subtracts the row's true maximum (running max + rescale for the last row of a wave).
;  * ii / jj are the fixed triu_indices(26,26,1) and are folded into the pair cover.
; ---------------------------------------------------------------------------------------------------------
""".strip().split("\n")
L = []
def e(s): L.append("    " + s)
for line in open("cdna_kernels/%s.s.ref" % NAME).read().split("\n"):
    if line.startswith("; @launch"): L.append(f"; @launch grid=(256,1,1) block=(256,1,1) lds={LDS}"); break
    L.append(line)
L += DOC + ['.amdgcn_target "amdgcn-amd-amdhsa--gfx950"', ".text", ".globl %s_kernel" % NAME, ".p2align 12", ".p2align 8",
      ".type %s_kernel,@function" % NAME, "%s_kernel:" % NAME]
NST = [0]
def stamp(force=False):
    if DBG and (not STEPST or force): e(f"s_memrealtime s[{40+2*NST[0]}:{41+2*NST[0]}]"); NST[0] += 1
ops = []; TT = [0.0, 0.0]; IT = [0]; MC = [0]
def at(t, inc): TT[0] = t; TT[1] = inc
def push(o): o.it = IT[0]; ops.append(o); return o
def valu(text, R, W, kind="valu", **kw):
    if kind in ("perm", "vmem", "ds"): kw["cost"] = 2
    o = Op(text, kind, R, W, prio=round(TT[0] + 1e-4, 3), **kw); TT[0] += TT[1]; return push(o)
def v(*r): return [f"v{x}" for x in r]
def view_load(raw, ireg):
    return [valu(f"global_load_dwordx4 {rng(raw+4*q,4)}, v{ireg}, s[{S_TAB}:{S_TAB+1}] offset:{64*q}", v(ireg), vr(raw+4*q,4), "vmem") for q in range(4)]
def wait_for(regs, ls, lat, lg=False):
    o = push(Op("wait", "wait", R=regs, W=regs, covers=ls, lat=lat, prio=round(TT[0] + 1e-4, 3))); o.lg = lg; return o
def cvt(d, a, b, sfx=""): valu(f"v_cvt_pk_bf16_f32 v{d}, v{a}, v{b}{sfx}", v(a, b), v(d))
def form(fb, P, ctrl, Q, t0, t1):
    at(t0 + 0.2, (t1 - t0 - 2.5) / 48)
    for i in range(32):
        d = TMP + i % 8
        if ctrl: valu(f"v_mul_f32_dpp v{d}, v{P+i}, v{Q+i} {ctrl} {FULL}", v(P+i, Q+i), v(d), "dpp")
        else: valu(f"v_mul_f32 v{d}, v{P+i}, v{Q+i}", v(P+i, Q+i), v(d))
        if i % 2: cvt(fb + i // 2, d - 1, d)
def mm(D, A, B, C=None, ap='a'):
    MC[0] += 1
    ct, cr = ("0", []) if C is None else (rng(C, 4), vr(C, 4))
    push(mfma(f"v_mfma_f32_16x16x32_bf16 {rng(D,4)}, {rng(A,4,ap)}, {rng(B,4)}, {ct}", vr(D,4), vr(A,4,ap), vr(B,4), cr))
def m4(D, A, B, last, C=None):
    MC[0] += 1
    o = mfma(f"v_mfma_f32_4x4x4_16b_bf16 {rng(D,4)}, {rng(A,2,'a')}, {rng(B,2)}, {rng(C,4) if C else 0}", vr(D,4), vr(A,2,'a'), vr(B,2), vr(C,4) if C else [], passes=2)
    o.occ = 4 if last else 2; o.free = o.occ - 1
    push(o)
def smf(D, A, B):
    MC[0] += 1
    o = mfma(f"v_smfmac_f32_16x16x64_bf16 {rng(D,4)}, {rng(A,4,'a')}, {rng(B,8)}, v{SIX}", vr(D,4), vr(A,4,'a') + v(SIX), vr(B,8), vr(D,4)); o.free = 1
    push(o)
deferred = []
def step_mm(fb, d9, var, init, ninth, fin, extra):
    it0 = IT[0]; held = []
    for t in range(8):
        acc = ACC + 4 * (t % 4)
        for i, ks in enumerate(range(3, -1, -1) if t % 2 else range(4)):
            mm(acc, AW + (t * 4 + ks) * 4, fb + 4 * ks, BIAS + 4 * t if i == 0 else acc)
        def epi(t=t, acc=acc, tt=MC[0] - 1 + EPI):
            at(tt, 1.0)
            for c in range(2): cvt((RF if t < 4 else RF2) + 2 * (t % 4) + c, acc + 2 * c, acc + 2 * c + 1, " clamp")
        if 4 <= t <= AUXT: held.append(epi)
        else: epi()
        if t == AUXT:
            if init is not None and (VINIT == 2 or (VINIT == 3 and init)): m4(d9, AZ, fb, True, init if init else None); init = None
            for cb in deferred: cb()
            deferred.clear(); IT[0] = it0
            if init is not None and VINIT:
                at(MC[0] - 14, 2)
                if init: mov(d9, init)
                for r in range(1 if init else 0, 4 if init else 2): valu(f"v_mov_b32 v{d9+r}, 0", [], v(d9+r))
            elif init is not None: mm(d9, AZ, fb, init if init else None)
            if ninth: smf(d9, AN9 + 8 * var, fb); smf(d9, AN9 + 8 * var + 4, fb + 8)
            smf(d9, AH + 8 * var, RF)
            for h_ in held: h_()
        for cb in extra.get(t, []): cb()
        IT[0] = it0
    def late():
        IT[0] = it0
        smf(d9, AH + 8 * var + 4, RF2)
        if fin: fin()
    deferred.append(late)
def swap(w, a, b): valu(f"v_permlane{w}_swap_b32 v{a}, v{b}", v(a, b), v(a, b), "perm")
def add(d, a, b): valu(f"v_add_f32 v{d}, v{a}, v{b}", v(a, b), v(d))
def mov(d, a): valu(f"v_mov_b32 v{d}, v{a}", v(a), v(d))
def dmax():
    for c in ("row_ror:8 " + FULL, "row_ror:4 " + FULL, "row_ror:2 " + FULL, "row_ror:1 " + FULL, "row_bcast:15 row_mask:0xa bank_mask:0xf", "row_bcast:31 row_mask:0xc bank_mask:0xf"):
        valu(f"v_max_f32_dpp v{MX}, v{MX}, v{MX} {c}", v(MX), v(MX), "dpp")
def scale_max(d):
    valu(f"v_mul_f32 v{d}, v{VCS}, v{MX}", v(MX, VCS), v(d))
    valu(f"v_fma_f32 v{d}, |v{d}|, s{S_EPS}, v{d}", v(d), v(d))
def expsum(TL, smax):
    for i, (x, s) in enumerate(TL):
        valu(f"v_fma_f32 v{x}, v{x}, v{VCS}, -s{smax}", [f"s{smax}"] + v(x, VCS), v(x))
        valu(f"v_exp_f32_e64 v{x}, v{x} clamp", v(x), v(x), "trans", cost=2)
        if i == 0: valu(f"v_mul_f32 v{NUM}, v{x}, v{s}", v(x, s), v(NUM))
        else: valu(f"v_fmac_f32 v{NUM}, v{x}, v{s}", v(x, s, NUM), v(NUM))
        if i == 1: add(DEN, TL[0][0], x)
        elif i > 1: add(DEN, DEN, x)
def tiles_of(par): return [(EE, SK), (EMB if par else EM, SK + 1), (EE + 1, DY[par] + 2), (EE + 2, DY[par] + 3), (EE + 3, DY[par]), (EE + 4, DY[par] + 1)]
def skew_read(par):
    rd = [valu(f"ds_read_b32 v{SK+q}, v{LR+q} offset:{SKP*par}", v(LR+q) + [f"lds{par}"], v(SK+q), "ds") for q in range(2)]
    TT[0] += 10; wait_for(v(SK, SK+1), rd, 30, lg=True)
    valu(f"v_mov_b32_dpp v{DY[par]+2}, v{SK+1} quad_perm:[0,1,2,3] row_mask:0x7 bank_mask:0xf", v(SK+1, DY[par]+2), v(DY[par]+2), "dpp")
def softmax(par, t0, t1, t2):
    TL = tiles_of(par); E = [x[0] for x in TL]
    at(t1 - 30, 4); skew_read(par)
    o0 = len(ops)
    at(t0, (t1 - t0) / 12)
    valu(f"v_max3_f32 v{MX}, v{E[0]}, v{E[1]}, v{E[2]}", v(*E[:3]), v(MX))
    valu(f"v_max3_f32 v{MX}, v{MX}, v{E[3]}, v{E[4]}", v(MX, E[3], E[4]), v(MX))
    valu(f"v_max_f32 v{MX}, v{MX}, v{E[5]}", v(MX, E[5]), v(MX))
    dmax()
    scale_max(MX)
    valu(f"v_readlane_b32 s{S_MAX}, v{MX}, 63", v(MX), [f"s{S_MAX}"], "readlane")
    at(t1, (t2 - t1) / 28)
    expsum(TL, S_MAX)
    swap(32, NUM, DEN)
    if par: add(TB, NUM, DEN)
    else: mov(TC, TA); add(TA, NUM, DEN)
    for o in ops[o0:]: o.sm = True
def salu(text, R, W): return valu(text, R, W, "salu")
def steps_of(el): return BASE if el % 2 == 0 else [("mrg", 8)] + BASE
def fbuf(steps, si): return VZ if si == 0 else F[(si - (len(steps) - 20)) % 2]
def do_form(steps, si, t0, t1):
    kind, a = steps[si]; fb = fbuf(steps, si)
    if kind == "star": form(fb, VY, f"row_newbcast:{a}", VX, t0, t1)
    elif kind == "k10": form(fb, VY, K10[a][0], VZ, t0, t1)
    else: form(fb, VX, f"row_ror:{a}", VX, t0, t1)
SM0, SM1, SM2 = [float(x) for x in opts.get("sm", "2,5,17").split(",")]
def slots(b0, b1, n=4): return [b0 + (b1 - b0) * (j + 0.5) / n for j in range(n)]
XP0, XP1, GX = of("xp0", 0.0), of("xp1", 1.1), of("gx", 1.4)
GY, Y0, Y1, Z0, Z1, X0, X1 = of("gy", 3.0), of("y0", 3.2), of("y1", 5.6), of("z0", 5.2), of("z1", 6.9), of("x0", 18.5), of("x1", 19.5)
NBY, NBZ, NBX = oi("nby", 1), oi("nbz", 1), oi("nbx", 2)
def plan(off):
    P = [(p, 4) for p in slots(XP0, XP1, 2)] + [(GX, 4), (GY + off, 4)]
    for (a_, b_, n_) in ((Y0, Y1, NBY), (Z0, Z1, NBZ), (X0, X1, NBX)): P += [(p + off, 8 // n_) for p in slots(a_, b_, n_)]
    return P
def pos(p): return (int(p), int((p % 1) * 8))
def nm_of(steps):
    off = len(steps) - 20; r = []
    for si, (kind, _) in enumerate(steps):
        n = 34 + (2 if kind == "k10" else 0) + (1 if ((si < off or (si - off) % 4 == 0) and VINIT in (0, 2)) or (VINIT == 3 and si - off == 8) else 0)
        r.append(n + sum(c for p, c in plan(off) if int(p) == si))
    return r
NEL = 10; CUT = []; STB = []; d9c = [0]
for el in range(NEL):
    par = el % 2; it = el // 2; nit = (el + 1) // 2
    steps = steps_of(el); nsteps = steps_of(el + 1); N = len(steps); off = N - 20
    IT[0] = it; B0 = MC[0]
    if par == 0: CUT.append(B0); d9c[0] = 0
    ST = [0]
    for m in nm_of(steps): ST.append(ST[-1] + m)
    if it == 2: STB += [B0 - CUT[2] + x for x in ST[:-1]]
    def S(x, B0=B0, ST=ST, off=off, N=N):
        x += off; i = int(math.floor(x))
        return B0 + ST[i] + ((x - i) * (ST[i + 1] - ST[i]) if i < N else 0)
    def newd9():
        if d9c[0] == oi('skip', 10): d9c[0] += 1
        d = D9 + 4 * (d9c[0] % ND9); d9c[0] += 1; return d
    o1 = len(ops)
    at(B0 + 1 - YE, LSP); ly = view_load(VY + 16, IDX + 1)
    for o in ops[o1:]: o.nb = o.prio - 1
    if el == 0: do_form(steps, 0, -40, 0)
    extra = {}
    def reg(p, cb): extra.setdefault(pos(p), []).append(cb)
    XR = VZ + 16; dy = DY[par]
    dxh = []
    for q, p in enumerate(slots(XP0, XP1, 2)):
        def cb(q=q, dy=dy, dxh=dxh):
            if q == 1: dxh.append(newd9())
            dst = [VY, VY + 4, VY + 8, VY + 12] if q == 0 else [VY + 8, VY + 12, dy, dxh[0]]
            for c in range(4): m4(dst[c], ADP + 8 * q + 2 * c, XR + 8 * q + 2 * c, c == 3)
            at(MC[0] + 1, 0.5)
            for c in range(4): cvt(VY + 8 * q + 2 * c, dst[c], dst[c] + 1); cvt(VY + 8 * q + 2 * c + 1, dst[c] + 2, dst[c] + 3)
        reg(p, cb)
    lz = []; li = []
    def gx(par=par, lz=lz, li=li, nit=nit, S=S, el=el, dxh=dxh):
        d = dxh[0]
        for ks in range(4): mm(d, XR + 4 * ks, VY + 4 * ks, d if ks else None, 'v')
        at(MC[0] + 3, 0); valu(f"ds_write_b128 v{LW}, {rng(d,4)} offset:{SKP*par}", v(LW) + vr(d, 4), [f"lds{par}"], "ds")
        o2 = len(ops); at(MC[0] + 1, LSP); lz += view_load(VZ + 16, IDX + 2)
        IT[0] = nit; at(S(of("ti", 7.5)), LSP)
        li += [valu(f"buffer_load_dword v{IDX+k}, v{[OX,OY,OZ][k]}, s[{S_SRD}:{S_SRD+3}], s{S_IT} offen offset:{(64 if k else 0) + 104 * par}", v([OX,OY,OZ][k]) + [f"s{S_IT}"], v(IDX+k), "vmem") for k in range(3)]
        if par:
            salu(f"s_addk_i32 s{S_IT}, 208", [f"s{S_IT}"], [f"s{S_IT}", "scc"]); salu(f"s_cmp_lt_u32 s{S_IT}, {104 * (oi('iters', 4) + 1)}", [f"s{S_IT}"], ["scc"])
        for o in ops[o2:]: o.nb = o.prio - 1
    reg(GX, gx)
    def gy(dy=dy, ly=ly):
        at(MC[0] - 3, 0); wait_for(vr(VY + 16, 16), ly, LAT_FAR)
        for ks in range(4): mm(dy, VY + 16 + 4 * ks, VY + 4 * ks, dy if ks else None, 'v')
    reg(GY + off, gy)
    def unpack_at(ps, V, raw, loads, lat, itv, pre=None, post=None):
        nq = 4 // len(ps)
        for j, p in enumerate(ps):
            def cb(j=j):
                IT[0] = itv
                if j == 0 and loads is not None: at(MC[0] - 3, 0); wait_for(vr(raw, 16), loads, lat)
                qs = range(nq * j, nq * j + nq)
                if pre:
                    for q in qs: pre(q)
                for c in range(2 * qs[0], 2 * qs[-1] + 2): m4(V + 4 * c, ASEL, raw + 2 * c, c == 2 * qs[-1] + 1)
                if post:
                    for q in qs: post(q)
            reg(p + off, cb)
    unpack_at(slots(Y0, Y1, NBY), VY, VY + 16, None, 0, it)
    unpack_at(slots(Z0, Z1, NBZ), VZ, VZ + 16, lz, LAT_Z, it)
    lx = []; nk, na = nsteps[0]
    def xpre(q, nk=nk, S=S):
        if nk != "mrg": return
        at(S(X0) + (S(X1) - S(X0)) * q / 4 - 8, 0.7)
        for i in range(8 * q, 8 * q + 8):
            valu(f"v_mul_f32_dpp v{VY+i%16}, v{VX+i}, v{VX+i} row_shl:8 {FULL} bound_ctrl:0", v(VX+i), v(VY+i%16), "dpp")
    def xpost(q, nk=nk, na=na, S=S):
        ta, tb = S(19.2), S(20) - 2.5
        at(ta + (tb - ta) * q / 4, (tb - ta) / 48)
        for i in range(8 * q, 8 * q + 8):
            if nk == "mrg":
                d = VY + i % 16
                valu(f"v_mul_f32_dpp v{d}, v{VX+i}, v{VX+i} row_shr:8 row_mask:0xf bank_mask:0xc", v(VX+i, d), v(d), "dpp")
            else:
                d = TMP + i % 8
                valu(f"v_mul_f32_dpp v{d}, v{VX+i}, v{VX+i} row_ror:{na} {FULL}", v(VX+i), v(d), "dpp")
            if i % 2: cvt(VZ + i // 2, d - 1, d)
    unpack_at(slots(X0, X1, NBX), VX, VZ + 16, lx, LAT_FAR, nit, xpre, xpost)
    for si in range(N):
        kind, a = steps[si]; bs = si - off
        if si + 1 < N: do_form(steps, si + 1, S(bs), S(bs + 1))
        if bs == 9:
            IT[0] = nit
            at(S(of("tx", 11.2)), 2.0); wait_for(vr(IDX, 3), li, LAT_NEAR)
            for k in range(3): valu(f"v_lshl_add_u32 v{IDX+k}, v{IDX+k}, 8, v{GOFF}", v(IDX+k, GOFF), v(IDX+k))
            TT[1] = LSP; o2 = len(ops); lx += view_load(VZ + 16, IDX)
            for o in ops[o2:]: o.nb = o.prio - 1
            IT[0] = it
        fb = fbuf(steps, si)
        ex = {t: extra[(si, t)] for t in range(8) if (si, t) in extra}
        if bs < 0:
            d9 = newd9()
            def fin(S=S, d9=d9):
                at(MC[0] + 4, 2.0)
                add(d9, d9, d9 + 1)
                valu(f"v_cndmask_b32 v{EM}, v{NEGINF}, v{d9}, s[{S_MA}:{S_MA+1}]", v(NEGINF, d9), v(EM))
                valu(f"v_cndmask_b32 v{EMB}, v{NEGINF}, v{d9}, s[{S_MB}:{S_MB+1}]", v(NEGINF, d9), v(EMB))
                softmax(0, S(SM0 + 0.4), S(SM1 + 0.4), S(SM2 + 0.4))
            step_mm(fb, d9, 3, 0, False, fin, ex)
        else:
            var = bs % 4; q = bs // 4
            if var == 0: d9 = newd9()
            fin = None
            if var == 3:
                def fin(d9=d9, q=q, par=par, dy=dy):
                    at(MC[0] + 4, 3.0)
                    add(EE + q, d9, d9 + 1)
                    if q == 2:
                        add(d9 + 2, d9 + 2, d9 + 3)
                        valu(f"v_mul_f32_dpp v{dy+3}, v{d9+2}, v{K64} quad_perm:[0,1,2,3] row_mask:0x7 bank_mask:0xf", v(d9+2, K64, dy+3), v(dy+3), "dpp")
                    if q == 4 and par:
                        b1 = MC[0] - (4 * AUXT + 9)
                        softmax(1, b1 + 38 * SM0 + 9, b1 + 38 * SM1, b1 + 38 * SM2)
            step_mm(fb, d9, var, (MASKC if q == 2 else 0) if var == 0 else None, kind == "k10", fin, ex)
for cb in deferred: cb()
ST = STB
out, st = schedule(ops, look=LOOK, late=LATE)
assert verify(out) == 0
lines = finalize(out)
cuts = [i for i, o in enumerate(out) if o.kind == "mfma" and o.g in CUT]
body = lines[cuts[2]:cuts[3]]
assert body == lines[cuts[3]:cuts[4]], "body not periodic"
bops = out[cuts[2]:cuts[3]]
pre_ops = [o for o in out[:cuts[2]] if o.kind != "nop" and o.it >= 2]
assert sum(1 for o in pre_ops if o.kind == 'vmem') == 11 and sum(1 for o in pre_ops if o.kind == 'salu') == 2 and not any(o.kind == "ds" for o in pre_ops)
assert [o.text for o in out[:cuts[2]] if o.kind == "vmem"][-4:] == [o.text for o in pre_ops if f"v{IDX+1}," in o.text and "dwordx4" in o.text]
nf = sum(o.cost for o in bops if o.kind not in ("mfma", "nop"))
print(st, "body", len(body), "est cycles/iter", est_cycles(bops), "issue", sum(4 * (getattr(o, "occ", 4) - o.free) for o in bops if o.kind == "mfma") + nf * 4,
      "pipe", sum(4 * getattr(o, "occ", 4) for o in bops if o.kind == "mfma"), "pre", len(pre_ops), "nops in body", sum(1 for o in bops if o.kind == "nop"), file=sys.stderr)
if oi("prof", 0):
    seg = []; cur_ = []; nm_ = 0
    for o in bops:
        if o.kind == "mfma":
            if nm_ in ST and cur_: seg.append(cur_); cur_ = []
            nm_ += 1
        cur_.append(o)
    seg.append(cur_)
    print(" ".join(f"{i}:{est_cycles(sg + [sg[0]]) - 8}/{sum(4 * getattr(o, 'occ', 4) for o in sg if o.kind == 'mfma')}" for i, sg in enumerate(seg)), file=sys.stderr)
def clone(o, **kw):
    if o.kind == "nop": return o
    if o.kind == "mfma": o2 = mfma(o.text, o.W, [r for r in o.R if r in o.AB], [], o.C, passes=o.passes); o2.free = o.free; o2.occ = getattr(o, 'occ', 4)
    else: o2 = Op(o.text, o.kind, o.R, o.W, cost=o.cost)
    for k_, v_ in kw.items(): setattr(o2, k_, v_)
    return o2
e("s_cmp_ge_u32 s2, 256"); e("s_cbranch_scc1 L_done")
stamp()
e("s_load_dwordx4 s[4:7], s[0:1], 0"); e("s_load_dwordx4 s[8:11], s[0:1], 32")
e("s_load_dwordx4 s[12:15], s[0:1], 48"); e("s_load_dwordx2 s[16:17], s[0:1], 64")
T = VY
vN, vG, vL, vW0, vW1, vZ, vPF, vSM, vT0, vT1, vT2, vWV, vTR, vNA, vHA, vBA = T, T+1, T+2, T+3, T+4, T+5, T+6, T+7, T+8, T+9, T+10, T+11, T+12, T+20, T+24, T+28
vM0, vM1, vBS, vPR = T + 30, T + 31, RF, F[0]
vm = []; dsq = []
def vmem(s, tag): e(s); vm.append(tag)
def vwait(tag): e(f"s_waitcnt vmcnt({len(vm) - 1 - max(i for i, t in enumerate(vm) if t == tag)})")
def ds(s, tag): e(s); dsq.append(tag)
def dwait(tag): e(f"s_waitcnt lgkmcnt({min(15, len(dsq) - 1 - max(i for i, t in enumerate(dsq) if t == tag))})")
def smask(r, val): e(f"s_mov_b32 s{r}, 0x{val & 0xffffffff:08x}"); e(f"s_mov_b32 s{r+1}, 0x{val >> 32:08x}")
e(f"v_lshrrev_b32 v{vWV}, 6, v0"); e(f"v_and_b32 v{vN}, 15, v0"); e(f"v_readfirstlane_b32 s{S_WAVE}, v{vWV}")
NL = 6
e("s_getpc_b64 s[32:33]"); L.append("L_pfbase:")
e("s_getreg_b32 s3, hwreg(HW_REG_HW_ID, 13, 2)"); e("s_getreg_b32 s19, hwreg(HW_REG_HW_ID, 8, 2)"); e("s_lshl2_add_u32 s3, s3, s19")
e("s_getreg_b32 s19, hwreg(HW_REG_HW_ID, 4, 2)"); e("s_lshl2_add_u32 s3, s3, s19"); e(f"s_mul_i32 s3, s3, {NL * 128}")
e(f"v_min_u32 v{vPF}, {NL - 1}, v{vN}"); e(f"v_lshl_add_u32 v{vPF}, v{vPF}, 7, s3"); e(f"v_min_u32 v{vPF}, L_end-L_pfbase-4, v{vPF}")
vmem(f"global_load_dword v{FS}, v{vPF}, s[32:33]", "pf")
e("s_lshl_b32 s3, s2, 2"); e(f"s_add_u32 s3, s3, s{S_WAVE}"); e("s_mul_i32 s19, s3, 416")
e(f"v_lshl_add_u32 v{OX}, v{vN}, 2, s19")
e(f"v_bfe_u32 v{vG}, v0, 4, 2")
e(f"s_lshl_b32 s{S_T}, s{S_WAVE}, 13")
e(f"v_lshrrev_b32 v{vT2}, 1, v{vN}"); e(f"v_xor_b32 v{vT0}, v{vT2}, v{vG}"); e(f"v_lshlrev_b32 v{vT0}, 5, v{vT0}")
e(f"v_and_b32 v{vT1}, 1, v0"); e(f"v_lshl_add_u32 v{vT0}, v{vT1}, 4, v{vT0}"); e(f"v_lshl_add_u32 v{vT0}, v{vG}, 8, v{vT0}")
e(f"v_add_u32 v{vW0}, s{S_T}, v{vT0}"); e(f"v_xor_b32 v{vW1}, 0x80, v{vW0}")
e(f"s_add_u32 s{S_T+1}, s{S_T}, 0x1000"); e(f"s_mov_b32 m0, s{S_T}")
e("s_waitcnt lgkmcnt(0)")
stamp()
vmem(f"global_load_dword v{IDX}, v{OX}, s[{S_IDX}:{S_IDX+1}]", "idx0")
for half in range(2):
    for q in range(4): vmem(f"global_load_lds_dwordx4 v{vW1 if q & 2 else vW0}, s[{S_W}:{S_W+1}] offset:{1024*q}", "wdma")
    if half == 0: e(f"v_add_u32 v{vW0}, 0x1000, v{vW0}"); e(f"s_mov_b32 m0, s{S_T+1}"); e(f"v_add_u32 v{vW1}, 0x1000, v{vW1}")
e(f"v_and_b32 v{vL}, 63, v0"); e(f"v_lshlrev_b32 v{vSM}, 2, v{vL}")
e(f"v_cmp_eq_u32 vcc, 0, v{vWV}")
e(f"v_lshlrev_b32 v{vT0}, 2, v{vT1}"); e(f"v_lshl_add_u32 v{vT0}, v{vT2}, 5, v{vT0}"); e(f"v_lshl_add_u32 v{vT0}, v{vG}, 3, v{vT0}")
e(f"v_cndmask_b32 v{vSM}, v{vSM}, v{vT0}, vcc")
e(f"v_cmp_eq_u32 vcc, 2, v{vWV}")
e(f"v_bfe_u32 v{vW1}, v0, 5, 1"); e(f"v_lshlrev_b32 v{vW1}, 2, v{vW1}"); e(f"v_and_b32 v{vT0}, 31, v0"); e(f"v_lshl_add_u32 v{vT0}, v{vT0}, 3, v{vW1}")
e(f"v_cndmask_b32 v{vSM}, v{vSM}, v{vT0}, vcc")
e(f"v_cmp_eq_u32 vcc, 3, v{vWV}")
e(f"v_lshl_add_u32 v{vW1}, v{vT1}, 5, v{vW1}"); e(f"v_and_b32 v{vT0}, 3, v{vT2}"); e(f"v_lshl_add_u32 v{vW1}, v{vT0}, 3, v{vW1}")
e(f"v_bfe_u32 v{vT0}, v0, 3, 2"); e(f"v_lshl_add_u32 v{vW1}, v{vT0}, 6, v{vW1}")
e(f"v_cndmask_b32 v{vSM}, v{vSM}, v{vW1}, vcc")
e(f"s_mov_b32 s{S_T+2}, {O_P}"); e(f"s_cmp_eq_u32 s{S_WAVE}, 1"); e(f"s_cselect_b32 s{S_T+2}, {O_PN}, s{S_T+2}")
e(f"s_cmp_eq_u32 s{S_WAVE}, 3"); e(f"s_cselect_b32 s{S_T+2}, {O_HH}, s{S_T+2}"); e(f"s_cselect_b64 s[34:35], s[{S_H}:{S_H+1}], s[{S_P}:{S_P+1}]")
e(f"s_cmp_eq_u32 s{S_WAVE}, 0"); e(f"s_cselect_b32 s{S_T+2}, {O_B}, s{S_T+2}"); e(f"s_mov_b32 m0, s{S_T+2}"); e(f"s_cselect_b64 s[34:35], s[{S_B}:{S_B+1}], s[34:35]")
vmem(f"global_load_lds_dword v{vSM}, s[34:35]", "wdma")
e(f"v_lshlrev_b32 v{GOFF}, 4, v{vG}")
def nib(tab): return sum(x << (4 * i) for i, x in enumerate(tab))
blockA = len(L)
smask(S_MA, nib(YT)); smask(S_MB, nib(ZT))
e(f"v_lshlrev_b32 v{OZ}, 2, v{vN}")
e(f"v_lshrrev_b64 v[{vT0}:{vT0+1}], v{OZ}, s[{S_MA}:{S_MA+1}]"); e(f"v_and_b32 v{OY}, 15, v{vT0}")
e(f"v_lshrrev_b64 v[{vT0}:{vT0+1}], v{OZ}, s[{S_MB}:{S_MB+1}]"); e(f"v_and_b32 v{OZ}, 15, v{vT0}")
e(f"v_lshl_add_u32 v{OY}, v{OY}, 2, s19"); e(f"v_lshl_add_u32 v{OZ}, v{OZ}, 2, s19")
for r in range(1, 2 if VINIT == 1 else 4): e(f"v_mov_b32 v{MASKC+r}, 0")
e(f"v_lshlrev_b32 v{vL}, 1, v{vL}")
ds(f"ds_write_b16 v{vL}, v{MASKC+1} offset:{O_Z}", "z")
e(f"v_and_b32 v{vT1}, 1, v{vG}"); e(f"v_lshrrev_b32 v{vT0}, 2, v{vN}"); e(f"v_lshl_or_b32 v{vT1}, v{vT1}, 2, v{vT0}")
e(f"v_lshl_add_u32 v{vT0}, v{vG}, 3, v{vT0}"); e(f"v_lshlrev_b32 v{vT0}, 8, v{vT0}"); e(f"v_lshl_add_u32 v{vT0}, v{vT1}, 5, v{vT0}")
e(f"v_and_b32 v{vT1}, 3, v{vN}"); e(f"v_lshl_add_u32 v{vTR}, v{vT1}, 3, v{vT0}")
for t in range(1, 8): e(f"v_xor_b32 v{vTR+t}, {t << 5}, v{vTR}")
e(f"v_lshlrev_b32 v{vBA}, 6, v{vG}")
e(f"s_mov_b32 s{S_SRD}, s{S_IDX}"); e(f"s_mov_b32 s{S_SRD+1}, s{S_IDX+1}"); e(f"s_mov_b32 s{S_SRD+2}, {4096*104}"); e(f"s_mov_b32 s{S_SRD+3}, 0x00020000")
e("s_lshl_b32 s3, s3, 3"); e(f"v_lshl_add_u32 v{OOFF}, v{vG}, 1, s3")
blockB = len(L)
e(f"v_and_b32 v{vT1}, 1, v{vN}"); e(f"v_lshlrev_b32 v{vT0}, 4, v{vT1}"); e(f"v_mov_b32 v{vM1}, 0xffff"); e(f"v_lshlrev_b32 v{vM1}, v{vT0}, v{vM1}")
smask(S_MA, 0x3333333333333333)
e(f"v_cndmask_b32 v{vM0}, 0, v{vM1}, s[{S_MA}:{S_MA+1}]"); e(f"v_sub_u32 v{vM1}, v{vM1}, v{vM0}")
sv = (127 - KS // 2) << 7; sb = (127 - KS) << 7
for j, m_ in enumerate((vM0, vM1)):
    e(f"v_and_b32 v{vT0}, 0x{sv * 0x10001:08x}, v{m_}"); e(f"v_accvgpr_write_b32 a{ASEL+j}, v{vT0}"); e(f"v_and_b32 v{vBS+j}, 0x{sb * 0x10001:08x}, v{m_}")
for r in [AZ + r for r in range({0: 4, 1: 0}.get(VINIT, 2))]: e(f"v_accvgpr_write_b32 a{r}, 0")
e(f"v_mul_u32_u24 v{SIX}, 0xaaaa, v{vT1}"); e(f"v_add_u32 v{SIX}, 0x4444, v{SIX}")
e(f"v_xor_b32 v{vZ}, 32, v{GOFF}"); e(f"v_add_u32 v{vZ}, {O_Z}, v{vZ}")
e(f"v_lshl_add_u32 v{vW0}, v{vT1}, 7, v{GOFF}"); e(f"v_add_u32 v{vW1}, {O_P}, v{vW0}"); e(f"v_add_u32 v{vW0}, {O_HH}, v{vW0}")
e(f"v_cndmask_b32 v{vW0}, v{vZ}, v{vW0}, s[{S_MA}:{S_MA+1}]"); e(f"v_cndmask_b32 v{vW1}, v{vW1}, v{vZ}, s[{S_MA}:{S_MA+1}]")
for var in range(4):
    smask(S_MA, 0x000F000F000F000F << (4 * var))
    e(f"v_cndmask_b32 v{vHA+var}, v{vZ}, v{vW0}, s[{S_MA}:{S_MA+1}]")
    if var < 3: e(f"v_cndmask_b32 v{vNA+var}, v{vZ}, v{vW1}, s[{S_MA}:{S_MA+1}]")
e(f"v_mov_b32 v{NEGINF}, 0xff800000"); e(f"v_mov_b32 v{VCS}, {f32(CSC)}"); e(f"v_mov_b32 v{K64}, {f32(2.0 ** KS)}")
smask(S_MA, inval); e(f"v_cndmask_b32 v{MASKC}, v{MASKC+1}, v{NEGINF}, s[{S_MA}:{S_MA+1}]")
e(f"s_mul_i32 s{S_T+1}, s{S_WAVE}, {SKW}"); e(f"s_add_u32 s{S_T+1}, s{S_T+1}, {O_SK}")
e(f"v_mul_u32_u24 v{vT0}, {RS}, v{vN}"); e(f"v_add_u32 v{vT0}, s{S_T+1}, v{vT0}"); e(f"v_add_u32 v{LW}, v{vT0}, v{GOFF}")
e(f"v_{'sub' if RSGN < 0 else 'add'}_u32 v{vT1}, v{vN}, v{vG}")
for q in range(2):
    e(f"v_add_u32 v{vT2}, {RSGN * (4 * q + 1)}, v{vT1}"); e(f"v_and_b32 v{vT2}, 15, v{vT2}"); e(f"v_lshl_add_u32 v{LR+q}, v{vT2}, 2, v{vT0}")
smask(S_MA, 0xff << 48); smask(S_MB, 0xff00 << 48); smask(S_OM, 0x0001000100010001); e(f"s_movk_i32 s{S_IT}, 104"); e(f"s_mov_b32 s{S_EPS}, {f32(-2.0 ** -23)}")
if oi('defa', 0): blockB = blockA
setup = L[blockB:]; del L[blockB:]
NB0 = oi("nb0", 24); NB1 = oi("nb1", 0)
L += setup[:NB0]; setup = setup[NB0:]
stamp()
vwait("idx0"); stamp()
e(f"v_lshl_add_u32 v{IDX}, v{IDX}, 8, v{GOFF}")
for q in range(4): vmem(f"global_load_dwordx4 {rng(VZ+16+4*q,4)}, v{IDX}, s[{S_TAB}:{S_TAB+1}] offset:{64*q}", "view0")
L += setup[:NB1]; setup = setup[NB1:]
for k in range(1, 3): vmem(f"global_load_dword v{IDX+k}, v{[OX,OY,OZ][k]}, s[{S_IDX}:{S_IDX+1}] offset:64", "idx1")
def warm():
    e("s_mov_b64 vcc, -1")
    for w in range(3): e(f"s_cmp_eq_u32 s{S_WAVE}, {w}"); e(f"s_cbranch_scc1 L_pad{w}")
    e("s_branch L_pad3"); L.append("L_resume:"); e("s_mov_b64 vcc, 0")
if oi("wpos", 1) == 1: warm()
vwait("wdma"); e("s_waitcnt lgkmcnt(0)")
stamp(); e("s_barrier"); stamp()
trs = [f"ds_read_b64_tr_b16 {rng(AW+(t*4+ks)*4+2*u,2,'a')}, v{vTR+t} offset:{8192*ks+1024*u}" for t in range(8) for ks in range(4) for u in range(2)]
fill = [l.strip() for l in setup]
def tr(n, nf=1):
    for _ in range(n):
        if trs: ds(trs.pop(0), "tr")
        for _ in range(nf):
            if fill: e(fill.pop(0))
for k in range(4): ds(f"ds_read_b128 {rng(BIAS+16+4*k,4)}, v{vBA} offset:{O_B+16*k}", "bb")
for k in range(4): ds(f"ds_read_b128 {rng(vPR+4*k,4)}, v{GOFF} offset:{O_PN+64*k}", "bb")
tr(15, 2)
dwait("bb")
for c in range(8):
    fill += [f"v_mfma_f32_4x4x4_16b_bf16 {rng(BIAS+4*c,4)}, {rng(vBS,2)}, {rng(BIAS+16+2*c,2)}, 0"]
    for r in range(2 * c, 2 * c + 2): fill += [f"v_and_b32 v{vPR+r}, v{vM1 if r % 2 else vM0}, v{vPR+r}", f"v_accvgpr_write_b32 a{ADP+r}, v{vPR+r}"]
tr(len(trs), 2)
while fill: e(fill.pop(0))
for var in range(4):
    for u in range(2):
        ds(f"ds_read_b128 {rng(AH+8*var+4*u,4,'a')}, v{vHA+var} offset:{64*u}", "aux")
        if var < 3: ds(f"ds_read_b128 {rng(AN9+8*var+4*u,4,'a')}, v{vNA+var} offset:{64*u}", "aux")
if oi("wpos", 1) == 3: warm()
stamp()
L.append("L_al:")
assert vm[-6:] == ["view0"] * 4 + ["idx1"] * 2
pre2 = []
for q in range(4):
    w = Op("wait", "wait", R=vr(VZ+16+4*q,4), W=vr(VZ+16+4*q,4) + ["order"], covers=[], prio=1e5); w.extra_after = 5 - q; pre2.append(w)
pre = [o for o in pre_ops if (o.kind in VALUK or o.kind == "mfma") and not o.text.startswith("v_lshl_add_u32")]
for i, o in enumerate(sorted(pre, key=lambda o: o.seq)): pre2.append(clone(o, prio=i))
w = Op("wait", "wait", R=vr(IDX+1,2), W=vr(IDX+1,2) + ["order"], covers=[], prio=12); w.extra_after = 0; pre2.append(w)
for k in range(1, 3): pre2.append(Op(f"v_lshl_add_u32 v{IDX+k}, v{IDX+k}, 8, v{GOFF}", "valu", v(IDX+k), v(IDX+k), prio=12))
for q in range(4): pre2.append(Op(f"global_load_dwordx4 {rng(VY+16+4*q,4)}, v{IDX+1}, s[{S_TAB}:{S_TAB+1}] offset:{64*q}", "vmem", v(IDX+1), vr(VY+16+4*q,4) + ["order"], prio=20 + 8 * q, cost=2))
po, _ = schedule(pre2, look=1e3); assert verify(po) == 0
for s_ in finalize(po): e(s_)
e("s_waitcnt lgkmcnt(0)")
for k in range(9):
    chk = [clone(o, seq=i) for i, o in enumerate(po)] + [Op(f"s_nop {k}", "nop")] + [clone(o, seq=10000 + i) for i, o in enumerate(bops[:40])]
    with contextlib.redirect_stdout(io.StringIO()): nb_ = verify(chk)
    if nb_ == 0: break
assert nb_ == 0
if k: e(f"s_nop {k - 1}")
if DBG: e("s_mov_b32 s34, 0")
L.append("L_loop:")
if DBG and not STEPST: e("s_mov_b32 m0, s34"); e("s_memrealtime s[32:33]"); e("s_waitcnt lgkmcnt(0)"); e(f"s_movreld_b32 s{40+2*NST[0]}, s32"); e("s_add_u32 s34, s34, 2"); NST[0] += 4
mi = [i for i, o in enumerate(bops) if o.kind == "mfma"]
xi = mi[ST[-PEEL]]
nm_ = 0
for i, s in enumerate(body):
    if i == xi: e("s_cbranch_scc0 L_tail")
    if s.startswith("v_mfma") or s.startswith("v_smfmac"):
        if STEPST and nm_ in ST[::STEPST]: stamp(True)
        nm_ += 1
    e(s)
if STEPST: stamp(True)
e("s_branch L_loop"); L.append("L_tail:")
stamp()
assert not any(o.kind != "nop" and o.it == 1 for o in bops[xi:]) and not any(o.kind == "salu" for o in bops[xi:])
rest = [o for o in bops[xi:] + out[cuts[3]:cuts[4]] if o.kind != "nop" and o.it == 2 and not getattr(o, "sm", False)]
rest = [o for o in rest if not (o.kind in ("ds", "wait") or o.text.startswith("v_mov_b32_dpp"))]
assert not any(o.kind == "vmem" for o in rest)
ops = []; IT[0] = 0
for o in sorted(rest, key=lambda o: o.seq): push(clone(o, prio=None if o.kind == "mfma" else 1e5 + o.prio))
at(1e6, 1)
skew_read(1)
TL = tiles_of(1)
valu(f"v_max3_f32 v{MX}, v{TL[0][0]}, v{TL[1][0]}, v{TL[2][0]}", v(*[x[0] for x in TL[:3]]), v(MX))
valu(f"v_max3_f32 v{MX}, v{MX}, v{TL[3][0]}, v{TL[4][0]}", v(MX, TL[3][0], TL[4][0]), v(MX))
dmax()
scale_max(M1)
valu(f"v_readlane_b32 s{S_MAX}, v{M1}, 63", v(M1), [f"s{S_MAX}"], "readlane")
valu(f"v_mov_b32 v{M1}, s{S_MAX}", [f"s{S_MAX}"], v(M1))
expsum(TL[:5], S_MAX)
swap(16, TC, TB); add(TC, TC, TB)
for c in (8, 4, 2, 1): valu(f"v_add_f32_dpp v{TC}, v{TC}, v{TC} row_ror:{c} {FULL}", v(TC), v(TC), "dpp")
x, s_ = TL[5]
valu(f"v_max_f32 v{MX}, v{MX}, v{x}", v(MX, x), v(MX))
dmax()
scale_max(MX)
valu(f"v_readlane_b32 s{S_M2}, v{MX}, 63", v(MX), [f"s{S_M2}"], "readlane")
valu(f"v_fma_f32 v{x}, v{x}, v{VCS}, -s{S_M2}", [f"s{S_M2}"] + v(x, VCS), v(x))
valu(f"v_subrev_f32 v{FS}, s{S_M2}, v{M1}", [f"s{S_M2}"] + v(M1), v(FS))
valu(f"v_exp_f32_e64 v{x}, v{x} clamp", v(x), v(x), "trans", cost=2)
valu(f"v_exp_f32 v{FS}, v{FS}", v(FS), v(FS), "trans", cost=2)
valu(f"v_mul_f32 v{s_}, v{x}, v{s_}", v(x, s_), v(s_))
valu(f"v_fma_f32 v{DEN}, v{DEN}, v{FS}, v{x}", v(DEN, FS, x), v(DEN))
valu(f"v_fma_f32 v{NUM}, v{NUM}, v{FS}, v{s_}", v(NUM, FS, s_), v(NUM))
swap(32, NUM, DEN); add(NUM, NUM, DEN)
swap(16, TA, NUM); add(TA, TA, NUM)
for c in (8, 4, 2, 1): valu(f"v_add_f32_dpp v{TA}, v{TA}, v{TA} row_ror:{c} {FULL}", v(TA), v(TA), "dpp")
swap(32, TC, TA)
valu(f"v_rcp_f32 v{TA}, v{TA}", v(TA), v(TA), "trans", cost=2)
valu(f"v_mul_f32 v{TC}, v{TC}, v{TA}", v(TC, TA), v(TC))
cvt(TC, TC, TC)
NP = 24
pref = [clone(o, prio=0) for o in bops[xi - NP:xi]]
assert not any(o.kind == "nop" for o in pref)
for o in pref:
    if o.kind in ("wait", "vmem"): o.kind = "salu"
to, _ = schedule(pref + ops, look=1e9, fixed=NP); assert verify(to) == 0
to = to[NP:]
print("peeled part est", est_cycles(bops[xi:]), "tail est", est_cycles(to), "pre est", est_cycles(po), file=sys.stderr)
for s in finalize(to): e(s)
stamp()
if DBG == 1:
    e("s_load_dwordx2 s[34:35], s[0:1], 80"); e("s_waitcnt lgkmcnt(0)")
    e("s_lshl_b32 s3, s3, 4"); e("v_mov_b32 v1, s3")
    for k in range(NST[0]): e(f"v_mov_b32 v2, s{40+2*k}"); e(f"global_store_dword v1, v2, s[34:35] offset:{4*k}")
    e(f"v_mov_b32 v2, {NST[0]}"); e("global_store_dword v1, v2, s[34:35] offset:124")
e(f"s_mov_b64 exec, s[{S_OM}:{S_OM+1}]")
e(f"global_store_short v{OOFF}, v{TC}, s[{S_OUT}:{S_OUT+1}]")
L.append("L_done:"); e("s_endpgm"); L.append("L_end:")
L += ['.section .rodata,"a"', ".p2align 6", ".amdhsa_kernel %s_kernel" % NAME,
      "  .amdhsa_next_free_vgpr 512", "  .amdhsa_next_free_sgpr %d" % (100 if DBG else 40), "  .amdhsa_accum_offset 256",
      "  .amdhsa_group_segment_fixed_size 0", "  .amdhsa_kernarg_size 88", "  .amdhsa_user_sgpr_count 2",
      "  .amdhsa_user_sgpr_kernarg_segment_ptr 1", "  .amdhsa_system_sgpr_workgroup_id_x 1",
      "  .amdhsa_float_denorm_mode_32 3", ".end_amdhsa_kernel"]
for i, l in enumerate(L):
    if l == "L_loop:": NT = opts.get("ntl", "")
    m = re.match(r"\s+global_load_dwordx4 v\[\d+:\d+\], v(\d+), s\[6:7\]", l)
    if m and "xyz"[int(m.group(1)) - IDX] in NT: L[i] = l + " nt"
    if "i" in NT and (re.match(r"\s+global_load_dword v\d+, v\d+, s\[4:5\]", l) or "buffer_load_dword" in l): L[i] = l + " nt"
txt = "\n".join(L)
for w in range(4): txt = txt.replace(f"L_pad{w}", "L_resume")
with tempfile.TemporaryDirectory() as d:
    open(d + "/a.s", "w").write(txt)
    subprocess.run(["clang", "-x", "assembler", "-target", "amdgcn-amd-amdhsa", "-mcpu=gfx950", "-c", d + "/a.s", "-o", d + "/a.o"], check=True)
    dis = subprocess.run(["llvm-objdump", "-d", "--mcpu=gfx950", d + "/a.o"], capture_output=True, text=True).stdout
sz = [len(m.group(1).split()) * 4 for m in re.finditer(r"// [0-9A-F]{12}: ((?:[0-9A-F]{8} ?)+)", dis)]
k0 = L.index("%s_kernel:" % NAME); k1 = L.index("L_end:")
assert sum(1 for i in range(k0, k1) if L[i].startswith("    ")) == len(sz)
newL = L[:k0]; addr = 0; nextp = None; npad = 0; j = 0
def pad():
    global npad, addr
    newL.append(f"L_pad{npad}:"); newL.append(f"    s_cbranch_vccnz PADT{npad}"); npad += 1; addr += 4
for i in range(k0, k1):
    if L[i] == "L_al:":
        print("prologue bytes", addr, file=sys.stderr); assert addr + 768 + 4 <= 4096 or DBG
        newL += ["    s_branch L_al", ".p2align 12"]; addr = 4096; nextp = 4096
    if L[i - 1] == "L_tail:": pad()
    if L[i].startswith("    "):
        if nextp is not None and addr >= nextp and "s_endpgm" not in L[i]: pad(); nextp += 4096
        addr += sz[j]; j += 1
    newL.append(L[i])
newL += L[k1:]
L = [re.sub(r"PADT(\d+)", lambda m: f"L_pad{int(m.group(1)) + 4}" if int(m.group(1)) + 4 < npad else "L_resume", l) for l in newL]
print("pads", npad, "code bytes", addr, file=sys.stderr); assert addr <= 64 * NL * 128
print("\n".join(L))
```
